```python
import torch

def _softmax(x, axis=-1):
    return torch.softmax(x, dim=axis)
def _gelu(x):
    return torch.nn.functional.gelu(x, approximate="tanh")
def _silu(x):
    return torch.nn.functional.silu(x)
def _sigmoid(x):
    return torch.sigmoid(x)
def _layernorm(x, axis=-1, eps=1e-5):
    m = x.mean(dim=axis, keepdim=True)
    v = x.var(dim=axis, keepdim=True, unbiased=False)
    return (x - m) / torch.sqrt(v + eps)
def _scatter_add(tgt, idx, src, axis=0):
    return tgt.clone().index_add_(axis, idx, src)
def _segment_sum(src, seg, n):
    out = torch.zeros((n,) + src.shape[1:], dtype=src.dtype)
    return out.index_add_(0, seg, src)
def _pad(x, pw):
    flat = tuple(v for pair in reversed(pw) for v in pair)
    return torch.nn.functional.pad(x, flat)

kernel_name = 'interleave_layers__linear_kernel_hedgehog__geglu_ffn__prompt'

def setup_inputs():

    _w = (lambda a: (lambda t: t.to(torch.bfloat16) if t.is_floating_point() else t)(torch.as_tensor(a)))
    def _A_setup():
        B, S, D, H = 1, 2048, 512, 32
        Dh = D // H
        return {
            "x": _w((lambda *s: torch.randn(*s, dtype=torch.bfloat16) * 0.05)(B, S, D)),
            "wqkv": _w((lambda *s: torch.randn(*s, dtype=torch.bfloat16) * 0.2)(D, 3 * D)),
            "w_phi": _w((lambda *s: torch.randn(*s, dtype=torch.bfloat16) * 0.2)(H, Dh, Dh) * (Dh ** -0.5)),
            "wo": _w((lambda *s: torch.randn(*s, dtype=torch.bfloat16) * 0.05)(D, D)),
        }
    _A_in = _A_setup()

    def _B_setup():
        B, S, D, F = 1, 2048, 512, 1792
        return {
            "x": _w((lambda *s: torch.randn(*s, dtype=torch.bfloat16) * 0.05)(B, S, D)),
            "w_gate": _w((lambda *s: torch.randn(*s, dtype=torch.bfloat16) * 0.05)(D, F)),
            "w_up": _w((lambda *s: torch.randn(*s, dtype=torch.bfloat16) * 0.05)(D, F)),
            "w_down": _w((lambda *s: torch.randn(*s, dtype=torch.bfloat16) * 0.05)(F, D)),
        }
    _B_in = _B_setup()

    return {
        "A_x": _A_in["x"],
        "A_wqkv": _A_in["wqkv"],
        "A_w_phi": _A_in["w_phi"],
        "A_wo": _A_in["wo"],
        "B_x": _B_in["x"],
        "B_w_gate": _B_in["w_gate"],
        "B_w_up": _B_in["w_up"],
        "B_w_down": _B_in["w_down"],
    }

def reference(A_x, A_wqkv, A_w_phi, A_wo, B_x, B_w_gate, B_w_up, B_w_down):
    def _A_ref(x, wqkv, w_phi, wo):
        B, S, D = x.shape
        H = 32; Dh = D // H
        qkv = (lambda x, *d: x.permute(*d))((x @ wqkv).reshape(B, S, 3, H, Dh), 2, 0, 3, 1, 4)
        q, k, v = qkv[0], qkv[1], qkv[2]
        pq = torch.einsum("bhsd,hdf->bhsf", q, w_phi)
        pk = torch.einsum("bhsd,hdf->bhsf", k, w_phi)
        phi_q = torch.concatenate([_softmax(pq, axis=-1), _softmax(-pq, axis=-1)], axis=-1)
        phi_k = torch.concatenate([_softmax(pk, axis=-1), _softmax(-pk, axis=-1)], axis=-1)
        kv = torch.einsum("bhsf,bhsd->bhfd", phi_k, v)
        z  = torch.einsum("bhsf->bhf", phi_k)
        num = torch.einsum("bhqf,bhfd->bhqd", phi_q, kv)
        den = torch.einsum("bhqf,bhf->bhq", phi_q, z)[..., None] + 1e-6
        o = num / den
        return (lambda x, *d: x.permute(*d))(o, 0, 2, 1, 3).reshape(B, S, D) @ wo

    def _B_ref(x, w_gate, w_up, w_down):
        return (_gelu(x @ w_gate) * (x @ w_up)) @ w_down

    x = A_x
    x = x + _A_ref(_layernorm(x, axis=-1), A_wqkv, A_w_phi, A_wo)
    x = x + _B_ref(_layernorm(x, axis=-1), B_w_gate, B_w_up, B_w_down)
    x = x + _A_ref(_layernorm(x, axis=-1), A_wqkv, A_w_phi, A_wo)
    x = x + _B_ref(_layernorm(x, axis=-1), B_w_gate, B_w_up, B_w_down)
    return x
```

```python
import re

REG_RE = re.compile(r'^(-|\|)?(abs\()?([vas])(\d+|\[(\d+):(\d+)\])\)?\|?$')
TRANS = ('v_exp_f32', 'v_log_f32', 'v_rcp_f32', 'v_rsq_f32', 'v_sqrt_f32', 'v_sin_f32', 'v_cos_f32')


def parse_reg(tok):
    tok = tok.strip()
    if tok in ('vcc', 'exec', 'm0', 'scc'):
        return [tok]
    if tok in ('vcc_lo', 'vcc_hi'):
        return ['vcc']
    if tok in ('exec_lo', 'exec_hi'):
        return ['exec']
    m = REG_RE.match(tok)
    if not m:
        return []
    kind = m.group(3)
    if m.group(5) is not None:
        lo, hi = int(m.group(5)), int(m.group(6))
    else:
        lo = hi = int(m.group(4))
    return [f'{kind}{i}' for i in range(lo, hi + 1)]


class Ins:
    __slots__ = ('text', 'op', 'kind', 'rd', 'wr', 'srcc', 'srcab', 'data', 'cost', 'tok')

    def __init__(self, text):
        self.text = text
        body = text.split(';')[0].strip()
        parts = body.split(None, 1)
        op = parts[0]
        self.op = op
        rest = parts[1] if len(parts) > 1 else ''
        ops, depth, cur = [], 0, ''
        for ch in rest:
            if ch in '[(':
                depth += 1
            if ch in '])':
                depth -= 1
            if ch == ',' and depth == 0:
                ops.append(cur.strip())
                cur = ''
            else:
                cur += ch
        if cur.strip():
            ops.append(cur.strip())
        mods = []
        if ops:
            last = ops[-1].split()
            ops[-1] = last[0]
            mods = last[1:]
        regs = [parse_reg(o) for o in ops]
        rd, wr = [], []
        self.srcc, self.srcab, self.data = [], [], []
        self.tok = None
        flat = lambda ls: [r for l in ls for r in l]
        if op.startswith('v_mfma'):
            self.kind = 'mfma'
            wr = regs[0]
            self.srcab = regs[1] + regs[2]
            self.srcc = regs[3]
            rd = self.srcab + self.srcc
        elif op.startswith('buffer_load') or op.startswith('global_load'):
            if 'lds' in mods or op.startswith('global_load_lds'):
                self.kind = 'dma'
                rd = flat(regs) + ['m0']
            else:
                self.kind = 'vload'
                wr = regs[0]
                rd = flat(regs[1:])
        elif op.startswith('buffer_store'):
            self.kind = 'vstore'
            rd = flat(regs)
            self.data = regs[0]
        elif op.startswith('global_store'):
            self.kind = 'vstore'
            rd = flat(regs)
            self.data = regs[1]
        elif op.startswith('buffer_atomic') or op.startswith('global_atomic'):
            self.kind = 'vload' if 'sc0' in mods else 'vstore'
            rd = flat(regs)
            if 'sc0' in mods:
                wr = regs[0]
        elif op.startswith('buffer_') :
            self.kind = 'vstore'
        elif op.startswith('ds_read') or op.startswith('ds_bpermute') or op.startswith('ds_swizzle'):
            self.kind = 'dsload'
            wr = regs[0]
            rd = flat(regs[1:])
        elif op.startswith('ds_'):
            self.kind = 'dsstore'
            rd = flat(regs)
        elif op.startswith('s_load') or op.startswith('s_memtime') or op.startswith('s_memrealtime') or op.startswith('s_buffer_load'):
            self.kind = 'smem'
            wr = regs[0]
            rd = flat(regs[1:])
        elif op.startswith('s_'):
            self.kind = 'salu'
            if op.startswith('s_cmp') or op.startswith('s_bitcmp'):
                rd = flat(regs)
            elif op in ('s_waitcnt', 's_nop', 's_barrier', 's_endpgm', 's_sleep', 's_setprio') or op.startswith('s_cbranch') or op == 's_branch':
                pass
            else:
                wr = regs[0] if regs else []
                rd = flat(regs[1:])
                if 'saveexec' in op:
                    wr = wr + ['exec']
        elif op.startswith('v_'):
            self.kind = 'valu'
            if (op.startswith('v_permlane') and 'swap' in op) or op.startswith('v_swap'):
                wr = regs[0] + regs[1]
                rd = regs[0] + regs[1]
            elif op.startswith('v_cmpx'):
                wr = regs[0] + ['exec']
                rd = flat(regs[1:])
            elif op.startswith(('v_add_co', 'v_sub_co', 'v_addc_co', 'v_subb_co', 'v_mad_u64')):
                wr = regs[0] + regs[1]
                rd = flat(regs[2:])
            else:
                wr = regs[0]
                rd = flat(regs[1:])
                if op.startswith(('v_fmac', 'v_dot2c', 'v_writelane')):
                    rd = rd + regs[0]
                if 'dpp' in op or any(m.startswith(('row_', 'quad_perm', 'wave_')) for m in mods):
                    rd = rd + regs[0]
        else:
            raise ValueError('unknown instruction: ' + text)
        self.rd, self.wr = rd, wr
        base = op.replace('_e32', '').replace('_e64', '')
        if self.kind == 'mfma':
            self.cost = 8
        elif base in TRANS or op.startswith('v_permlane'):
            self.cost = 8
        else:
            self.cost = 4

    @property
    def is_trans(self):
        return self.op.replace('_e32', '').replace('_e64', '') in TRANS

    @property
    def is_dpp(self):
        return 'dpp' in self.op or ' row_' in self.text or 'quad_perm' in self.text

    @property
    def passes(self):
        return 8 if '32x32' in self.op else 4


class Tok:
    def __init__(self, cnt, seq, certain):
        self.cnt, self.seq, self.certain = cnt, seq, certain
        self.done = False


class Prog:
    def __init__(self):
        self.lines = []
        self.hist = []
        self.vm = []
        self.lg = []
        self.sm = []
        self.pend = {}
        self.div = 0
        self.nins = 0
        self.uid = 0
        self.nops = 0
        self.alts = []
        self.cyc = 0

    def raw(self, text):
        self.lines.append(text)

    def comment(self, text):
        self.lines.append('    ; ' + text)

    def label(self, name):
        self.lines.append(name + ':')

    def newlabel(self, base='L'):
        self.uid += 1
        return f'{base}_{self.uid}'

    def _need(self, ins):
        n = self._need1(ins, self.hist)
        for a in self.alts:
            n = max(n, self._need1(ins, a[0]))
        return n

    def _need1(self, ins, hist):
        need = 0
        dist = 0
        rd, wr = set(ins.rd), set(ins.wr)
        isv = ins.kind == 'valu'
        for prev, st in reversed(hist):
            if dist >= 20:
                break
            req = 0
            pw = set(prev.wr)
            if prev.kind == 'mfma':
                n = 12 if prev.passes == 8 else 8
                if ins.kind == 'mfma':
                    if pw & set(ins.srcab):
                        req = max(req, n)
                    if pw & set(ins.srcc):
                        if not (prev.wr == ins.srcc and prev.passes == ins.passes):
                            req = max(req, n - 2)
                    elif pw & wr:
                        req = max(req, n)
                else:
                    if pw & (rd | wr):
                        req = max(req, n)
                    if (isv or ins.kind in ('vload', 'dsload')) and set(prev.srcc) & wr:
                        req = max(req, 7 if prev.passes == 8 else 3)
            elif prev.kind == 'valu':
                pv = {r for r in pw if r[0] in 'va' and r not in ('vcc',)}
                ps = {r for r in pw if r[0] == 's' or r == 'vcc'}
                if ins.kind == 'mfma':
                    if pv & rd:
                        req = max(req, 2)
                    if 'exec' in pw:
                        req = max(req, 4)
                if isv:
                    if ins.op.startswith('v_permlane') and pv & rd:
                        req = max(req, 2)
                    if ins.is_dpp and pv & rd:
                        req = max(req, 2)
                    if ins.op.startswith(('v_readfirstlane', 'v_readlane')) and pv & rd:
                        req = max(req, 1)
                    if prev.is_trans and pv & rd and not ins.is_trans:
                        req = max(req, 1)
                    if prev.is_trans and pv & rd and ins.is_trans:
                        req = max(req, 1)
                    if ps & rd:
                        req = max(req, 4 if ins.op.startswith(('v_readlane', 'v_writelane')) else 2)
                    if ins.op.startswith('v_cndmask') and 'vcc' in ps and 'vcc' in ins.text:
                        req = max(req, 2)
                    if 'exec' in pw and (ins.is_dpp):
                        req = max(req, 5)
                    if 'exec' in pw and ins.op.startswith(('v_readlane', 'v_readfirstlane', 'v_writelane', 'v_permlane')):
                        req = max(req, 4)
                    if ('sdwa' in prev.op or 'op_sel' in prev.text) and not prev.op.startswith('v_pk_') and pv & (rd | wr):
                        req = max(req, 1)
                if prev.op.startswith('v_dot2'):
                    same = ins.op == prev.op
                    if pv & (rd | wr):
                        if same and ins.wr == prev.wr and not (pv & set(parse_srcab(ins))):
                            pass
                        else:
                            req = max(req, 3)
                if ins.kind in ('vload', 'vstore', 'dma') and ps & rd:
                    req = max(req, 5)
                if prev.is_trans and ins.kind in ('vstore', 'dsstore', 'vload', 'dsload', 'dma', 'mfma') and pv & rd:
                    req = max(req, 2)
            elif prev.kind == 'vstore':
                if len(prev.data) >= 3 and set(prev.data) & wr:
                    req = max(req, 2)
            elif prev.kind == 'dsstore':
                pass
            elif prev.kind == 'salu':
                if 'm0' in pw and ins.kind == 'dma':
                    req = max(req, 1)
                if 'exec' in pw and ins.kind == 'mfma':
                    req = max(req, 0)
            need = max(need, req - dist)
            dist += st
        return need

    def _push(self, ins, states=1):
        self.lines.append('    ' + ins.text)
        self.hist.append((ins, states))
        if len(self.hist) > 40:
            self.hist = self.hist[-30:]
        for a in self.alts:
            a[0].append((ins, states))
            a[1] += states
        self.alts = [a for a in self.alts if a[1] < 24]
        self.nins += 1
        self.cyc += ins.cost if states == 1 else 4 * states

    def nop(self, n):
        while n > 0:
            k = min(n, 16)
            self._push(Ins(f's_nop {k-1}'), k)
            self.nops += 1
            n -= k

    def _count_after(self, lst, tok):
        i = lst.index(tok)
        return sum(1 for t in lst[i + 1:] if t.certain or t.certain is None and False)

    def _retire(self, lst, tok):
        i = lst.index(tok)
        for t in lst[:i + 1]:
            t.done = True
        del lst[:i + 1]

    def wait(self, *toks):
        vmn, lgn = None, None
        for tok in toks:
            if tok is None or tok.done:
                continue
            if tok.cnt == 'vm':
                n = self._younger(self.vm, tok)
                vmn = n if vmn is None else min(vmn, n)
            elif tok.cnt == 'lg':
                n = 0 if self.sm else self._younger(self.lg, tok)
                lgn = n if lgn is None else min(lgn, n)
            else:
                lgn = 0
        if vmn is None and lgn is None:
            return
        s = 's_waitcnt'
        if vmn is not None:
            s += f' vmcnt({min(vmn, 63)})'
        if lgn is not None:
            s += f' lgkmcnt({min(lgn, 15)})'
        self._push(Ins(s))
        for tok in toks:
            if tok is None or tok.done:
                continue
            if tok.cnt == 'vm':
                self._retire_div(self.vm, tok)
            elif tok.cnt == 'lg':
                self._retire_div(self.lg, tok)
        if lgn == 0:
            self._retire_all_lg()
        self._clean()

    def _younger(self, lst, tok):
        i = lst.index(tok)
        return sum(1 for t in lst[i + 1:] if t.certain == 0 or (self.div and t.certain == self.div))

    def _retire_div(self, lst, tok):
        i = lst.index(tok)
        keep = []
        for t in lst[:i + 1]:
            if self.div and t.certain != self.div:
                self.divdone.append(t)
                t.done = True
                keep.append(t)
            else:
                t.done = True
        lst[:i + 1] = keep

    def _retire_all_lg(self):
        if self.lg:
            self._retire_div(self.lg, self.lg[-1])
        if self.sm:
            self._retire_div(self.sm, self.sm[-1])

    def _clean(self):
        if not self.div:
            self.pend = {r: t for r, t in self.pend.items() if not t.done}

    def wait_vm_all(self):
        live = [t for t in self.vm if not t.done]
        self._push(Ins('s_waitcnt vmcnt(0)'))
        if self.vm:
            self._retire_div(self.vm, self.vm[-1])
        self._clean()

    def wait_lg_all(self):
        self._push(Ins('s_waitcnt lgkmcnt(0)'))
        self._retire_all_lg()
        self._clean()

    def begin_div(self):
        assert not self.div
        self.uid += 1
        self.div = self.uid
        self.divdone = []
        self.divhist = list(self.hist)

    def end_div(self):
        for t in self.divdone:
            t.done = False
        self.div = 0
        self.divdone = []
        self.alts.append([self.divhist, 0])
        self._clean()

    def I(self, text):
        ins = text if isinstance(text, Ins) else Ins(text)
        toks = []
        for r in ins.rd + ins.wr:
            t = self.pend.get(r)
            if t is not None and not t.done:
                toks.append(t)
        if toks:
            self.wait(*toks)
        n = self._need(ins)
        if n > 0:
            self.nop(n)
        self._push(ins)
        tok = None
        if ins.kind in ('vload', 'vstore', 'dma'):
            tok = Tok('vm', 0, self.div)
            self.vm.append(tok)
            live = sum(1 for t in self.vm if not t.done)
            assert live <= 63, 'too many outstanding VMEM ops: %d' % live
        elif ins.kind in ('dsload', 'dsstore'):
            tok = Tok('lg', 0, self.div)
            self.lg.append(tok)
        elif ins.kind == 'smem':
            tok = Tok('sm', 0, self.div)
            self.sm.append(tok)
        if ins.kind in ('vload', 'dsload', 'smem'):
            for r in ins.wr:
                self.pend[r] = tok
        ins.tok = tok
        return tok

    def text(self):
        return '\n'.join(self.lines) + '\n'


def parse_srcab(ins):
    return [r for r in ins.rd if r not in ins.wr]
```

```python
S, D, H, DH, F = 2048, 512, 32, 16, 1792
NTB = 64

WS_BYTES = 0x2900000
EPOCH = 0x0
FL0 = 0x001000
FLG = 0x010000
FLI = 0x050000
PROF = 0x060000
W13 = 0x100000
BLK = 33 * 1024
W2 = 0x680000
W4 = 0x700000
XF = 0x900000
XF_SZ = 0x200000
ST = 0x1100000
ST_SZ = 0x80000
OF = 0x1300000
OF_SZ = 0x200000
HF = 0x1700000
HF_SZ = 0x700000
KVP = 0x2500000
KVP_SZ = 0x200000
KVQ = 640

RING = 0
SCR = 4 * BLK
LDS_BYTES = 163840
TRP = 200


def pi(hf, j):
    return 8 * (j >> 2) + 4 * hf + (j & 3)
```

```python
import sys, os, math, struct, copy
sys.path.insert(0, os.path.dirname(os.path.abspath(__file__)))
from asmlib import Prog, Ins
from layout import *

NAME = 'interleave_layers__linear_kernel_hedgehog__geglu_ffn__prompt'


def f2u(x):
    return struct.unpack('<I', struct.pack('<f', x))[0]


def hx(x):
    return '0x%x' % x


def vr(a, n=1, k='v'):
    return f'{k}{a}' if n == 1 else f'{k}[{a}:{a+n-1}]'


WS, WSP, WSS, WSN, OUT, INS = 's[4:7]', 's[8:11]', 's[12:15]', 's[16:19]', 's[20:23]', 's[24:27]'
TAG = 28
sG, sJ, sW, sL = 's30', 's31', 's32', 's33'
sRB = [34, 35, 36, 37]
sW13 = 's38'
sT0, sT1, sT2, sT3 = 's39', 's62', 's63', 's64'
sTB = 's65'
sTBP = 's66'
sC = 's67'
sLX = 's68'
sLS = 's69'
sLO = 's70'
sLH = 's71'
sFI = 's72'
sFG = 's73'
sCNT = 's74'
sXCC = 's75'
sEX = 's[76:77]'
sM = 's[78:79]'
sONE = 's80'
sQ4 = 's81'
sDBG = 's[58:59]'
vL16, vL4 = 'v0', 'v1'
vRB = [2, 3, 4, 5]
vTW, vTA, vTB_, vKV = 'v6', 'v7', 'v8', 'v9'
vRW = [10, 11, 12]
vRR = 'v13'
vL16P = 'v14'
vOUT = 'v15'
PHI = 16
PQ = 24
MF = 40
vC1, vC3, vS2, vRS = 'v44', 'v45', 'v46', 'v47'
TMP = 48
vFL = 'v62'
vP = 63
ACC = 64
X = 128
STG = 224


def A(i):
    return ACC + 16 * i


class Gen:
    def __init__(self, stop=None, prof=False, fast=False):
        self.p = Prog()
        self.stop = stop
        self.prof = prof
        self.fast = fast
        self.nstamp = 0
        self.dma = {}
        self.stg = 0
        self.late = 0

    def I(self, t):
        return self.p.I(t)

    def stamp(self, name):
        if not self.prof:
            return
        p = self.p
        self.stamps.append(name)
        p.I(f's_memtime {sM}')
        p.wait_lg_all()
        p.I(f'v_writelane_b32 v{vP}, s78, {self.nstamp}')
        self.nstamp += 1

    def srd(self, base, lo, hi, nrec):
        I = self.I
        I(f's_mov_b32 s{base}, s{lo}')
        I(f's_and_b32 s{base+1}, s{hi}, 0xffff')
        I(f's_mov_b32 s{base+2}, {hx(nrec)}')
        I(f's_mov_b32 s{base+3}, 0x20000')

    def st_group(self, data, n, voff, soff, imm=0):
        op = {1: 'buffer_store_dword', 2: 'buffer_store_dwordx2', 4: 'buffer_store_dwordx4'}[n]
        o = f' offset:{imm}' if imm else ''
        toks = []
        if self.fast:
            toks.append(self.I(f'{op} {vr(data, n)}, {voff}, {WSP}, {soff} offen{o}'))
            toks.append(self.I(f'{op} {vr(data, n)}, {voff}, {WSS}, {soff} offen{o} sc1'))
        else:
            toks.append(self.I(f'{op} {vr(data, n)}, {voff}, {WS}, {soff} offen{o} sc1'))
        return toks

    def poll(self, loads, mask_low=False, code=1, sleep=1):
        p, I = self.p, self.I
        lp, done = p.newlabel('poll'), p.newlabel('polled')
        I(f's_mov_b32 {sCNT}, 0')
        p.label(lp)
        for i, (vo, so, imm) in enumerate(loads):
            o = f' offset:{imm}' if imm else ''
            I(f'buffer_load_dwordx2 {vr(TMP+2*i, 2)}, {vo}, {WS}, {so} offen{o} sc1')
        p.wait_vm_all()
        for i in range(len(loads)):
            if mask_low:
                I(f'v_and_b32 v{TMP+10}, -16, v{TMP+2*i}')
                I(f'v_mov_b32 v{TMP+11}, v{TMP+2*i+1}')
                src = vr(TMP + 10, 2)
            else:
                src = vr(TMP + 2 * i, 2)
            I(f'v_cmp_ne_u64 vcc, s[{TAG}:{TAG+1}], {src}')
            if i == 0:
                I(f's_mov_b64 {sM}, vcc')
            else:
                I(f's_or_b64 {sM}, {sM}, vcc')
        I(f's_cmp_eq_u64 {sM}, 0')
        I(f's_cbranch_scc1 {done}')
        if sleep:
            I(f's_sleep {sleep}')
        I(f's_add_u32 {sCNT}, {sCNT}, 1')
        I(f's_cmp_lt_u32 {sCNT}, 0x20000')
        I(f's_cbranch_scc1 {lp}')
        I(f's_mov_b32 {sCNT}, {code}')
        I('s_branch L_timeout')
        p.label(done)

    def hop(self, kind, toks, extra_wait=()):
        p, I = self.p, self.I
        p.wait(*toks)
        I('s_barrier')
        skip = p.newlabel('hop')
        I(f's_cmp_lg_u32 {sW}, 0')
        I(f's_cbranch_scc1 {skip}')
        p.begin_div()
        I(f'v_mov_b32 v{TMP}, s{TAG}')
        I(f'v_mov_b32 v{TMP+1}, s{TAG+1}')
        I(f's_lshl_b32 {sT0}, {sJ}, 3')
        I(f'v_mov_b32 {vFL}, {sT0}')
        I(f's_add_u32 {sT1}, {sFI}, {kind * 2048}')
        I(f's_mov_b64 exec, 1')
        self.st_group(TMP, 2, vFL, sT1)
        I(f's_mov_b64 exec, -1')
        I(f'v_lshrrev_b32 {vFL}, 1, {vL16}')
        I(f'v_and_b32 {vFL}, 0x78, {vFL}')
        self.poll([(vFL, sT1, 0)], code=16 + kind, sleep=0)
        p.end_div()
        p.label(skip)
        p.wait(*extra_wait)
        I('s_barrier')

    def dma_block(self, name, slot, tile, srd=WS):
        toks = []
        self.dma[name] = toks
        I = self.I
        steps = []

        def grp(k):
            def f():
                I(f's_add_u32 m0, s{sRB[slot]}, {k * 4096}')
                I(f's_add_u32 {sT3}, {sW13}, {tile * BLK + k * 4096}')
                toks.append(I(f'buffer_load_dwordx4 {vL16}, {srd}, {sT3} offen lds'))
            return f

        def one(i):
            def f():
                toks.append(I(f'buffer_load_dwordx4 {vL16}, {srd}, {sT3} offen offset:{i * 1024} lds'))
            return f

        def cs():
            I(f's_add_u32 m0, s{sRB[slot]}, {sQ4}')
            I(f's_add_u32 {sT3}, {sW13}, {sQ4}')
            I(f's_add_u32 {sT3}, {sT3}, {tile * BLK}')
            toks.append(I(f'buffer_load_dword {vL4}, {srd}, {sT3} offen lds'))
        for k in range(2):
            steps += [grp(k), one(1), one(2), one(3)]
        steps.append(cs)
        return steps

    def wread(self, slot, idx):
        r = vr(STG + 4 * (self.stg % 8), 4, 'a')
        self.stg += 1
        tok = self.I(f'ds_read_b128 {r}, v{vRB[slot]} offset:{idx * 1024}')
        return r, tok

    def mstream(self, steps, events=None, fill=None, depth=6, cuts=()):
        p, I = self.p, self.I
        events = events or {}
        fill = list(fill or [])
        cuts = dict(cuts)
        n = len(steps)
        regs = [None] * n
        toks = [None] * n
        nread = 0
        lastread_gap = -10

        def issue_read(g):
            nonlocal nread, lastread_gap
            if nread >= n:
                return False
            if nread in cuts:
                if g - lastread_gap < 2 and nread - g > 2:
                    return False
                p.wait(toks[nread - 1])
                cuts.pop(nread)()
            _, slot, idx, _, _ = steps[nread]
            regs[nread], toks[nread] = self.wread(slot, idx)
            nread += 1
            lastread_gap = g
            return True
        while nread < min(depth, n) and issue_read(-1 if nread not in cuts else 10**6):
            pass
        pend = []
        for g, (acc, slot, idx, breg, first) in enumerate(steps):
            while nread <= g:
                issue_read(10**6)
            due = [i for i, f in enumerate(fill) if len(f) > 2 and f[2] <= g]
            if due:
                self.late += due[-1] + 1
                self.run(fill[:due[-1] + 1])
                del fill[:due[-1] + 1]
            if not toks[g].done and g + 1 < nread - 2:
                p.wait(toks[g + 1])
            c = '0' if first else vr(acc, 16)
            I(f'v_mfma_f32_32x32x16_bf16 {vr(acc, 16)}, {regs[g]}, {breg}, {c}')
            start = p.cyc
            k = 0
            while nread < min(n, g + 1 + depth) and k < 2:
                if not issue_read(g):
                    break
                k += 1
            pend += events.get(g, [])
            if pend:
                pend.pop(0)()
            while fill and fill[0][0] <= g:
                it = fill[0][1]
                cost = Ins(it).cost if isinstance(it, str) else 4
                if p.cyc - start + cost > 24:
                    break
                fill.pop(0)
                if isinstance(it, str):
                    I(it)
                else:
                    it()
        for f in pend:
            f()
        return fill

    def run(self, items):
        for it in items:
            if isinstance(it, tuple):
                it = it[1]
            if isinstance(it, str):
                self.I(it)
            else:
                it()

    def prologue(self):
        p, I = self.p, self.I
        I('s_cmp_ge_u32 s2, 256')
        I('s_cbranch_scc1 L_end')
        I('s_load_dwordx16 s[40:55], s[0:1], 0x0')
        I('s_load_dwordx4 s[56:59], s[0:1], 0x40')
        I('s_load_dwordx2 s[60:61], s[0:1], 0x50')
        I('v_lshrrev_b32 v2, 6, v0')
        I(f'v_readfirstlane_b32 {sW}, v2')
        I('v_and_b32 v63, 63, v0')
        I(f'v_lshlrev_b32 {vL16}, 4, v63')
        I(f'v_lshlrev_b32 {vL4}, 2, v63')
        I(f's_getreg_b32 {sXCC}, hwreg(HW_REG_XCC_ID, 0, 4)')
        I(f's_and_b32 {sT0}, s2, 7')
        I(f's_lshr_b32 {sT1}, s2, 3')
        I(f's_and_b32 {sJ}, {sT1}, 15')
        I(f's_lshr_b32 {sT1}, {sT1}, 4')
        I(f's_lshl_b32 {sG}, {sT0}, 1')
        I(f's_add_u32 {sG}, {sG}, {sT1}')
        I(f's_mov_b32 {sONE}, 0x3f803f80')
        p.wait_lg_all()
        I(f's_load_dwordx2 s[{TAG}:{TAG+1}], s[60:61], 0x0')
        self.srd(4, 60, 61, WS_BYTES)
        self.srd(8, 60, 61, 0)
        self.srd(12, 60, 61, WS_BYTES)
        self.srd(16, 60, 61, WS_BYTES)
        self.srd(20, 56, 57, S * D * 2)
        self.srd(24, 40, 41, S * D * 2)
        I('v_and_b32 v48, 31, v63')
        I('v_lshrrev_b32 v49, 5, v63')
        I('v_and_b32 v50, 15, v63')
        I('v_bfe_u32 v51, v63, 4, 1')
        self.p0()

    def wtask(self, ldsbase, srdptrs, nbytes, rp, soff_src, ntile, dst, with_cs, e_reg):
        p, I = self.p, self.I
        pair = len(srdptrs) == 2
        I('v_lshrrev_b32 v52, 3, v63')
        I(f's_mov_b32 {sT0}, {rp}')
        I(f'v_mul_lo_u32 v52, v52, {sT0}')
        I('v_and_b32 v53, 7, v63')
        I('v_lshl_add_u32 v52, v53, 4, v52')
        toks = []
        for m, ptr in enumerate(srdptrs):
            self.srd(24, ptr, ptr + 1, nbytes)
            for pc in range(8):
                I(f's_mov_b32 m0, {ldsbase + m * 8192 + pc * 1024}')
                I(f's_add_u32 {sT0}, {soff_src}, {pc * 8 * rp}')
                toks.append(I(f'buffer_load_dwordx4 v52, {INS}, {sT0} offen lds'))
        I('v_lshrrev_b32 v53, 2, v50')
        I('v_lshl_add_u32 v53, v49, 2, v53')
        I('v_lshlrev_b32 v53, 7, v53')
        I('v_and_b32 v54, 3, v50')
        I('v_lshl_add_u32 v53, v54, 3, v53')
        I(f'v_lshl_add_u32 v53, v51, {13 if pair else 5}, v53')
        I(f'v_add_u32 v53, {ldsbase}, v53')
        I('v_lshlrev_b32 v54, 4, v48')
        p.wait(*toks)
        st = []
        for ct in range(ntile):
            base = X + 16 * ct
            for ks in range(4):
                for rd in range(2):
                    off = ks * 2048 + rd * 1024 + ct * (32 if pair else 64)
                    I(f'ds_read_b64_tr_b16 {vr(base + 4 * ks + 2 * rd, 2)}, v53 offset:{off}')
        for ct in range(ntile):
            base = X + 16 * ct
            dst(ct)
            for ks in range(4):
                o = f' offset:{ks * 1024}' if ks else ''
                st.append(I(f'buffer_store_dwordx4 {vr(base + 4 * ks, 4)}, {vL16}, {WS}, {sT2} offen{o} sc1'))
            if with_cs:
                I('v_mov_b32 v56, 0')
                for r in range(16):
                    I(f'v_dot2c_f32_bf16 v56, {sONE}, v{base + r}')
                I('v_mov_b32 v57, v56')
                I('v_permlane32_swap_b32 v56, v57')
                I('v_add_f32 v56, v56, v57')
                I('v_cvt_pk_bf16_f32 v57, v56, v56')
                I('v_lshlrev_b32 v57, 16, v57')
                I('v_sub_f32 v57, v56, v57')
                I(f'v_cvt_pk_bf16_f32 v{58 + ct}, v56, v57')
                st.append(I(f'buffer_store_dword v{58 + ct}, v54, {WS}, {sT1} offen sc1'))
        return st

    def p0(self):
        p, I = self.p, self.I
        l_w2, l_w3, l_done, l_wo, l_dn = (p.newlabel(x) for x in ('p0w2', 'p0w3', 'p0done', 'p0wo', 'p0dn'))
        p.begin_div()
        I(f's_cmp_eq_u32 {sW}, 2')
        I(f's_cbranch_scc1 {l_w2}')
        I(f's_cmp_eq_u32 {sW}, 3')
        I(f's_cbranch_scc1 {l_w3}')
        I('s_lshr_b32 s82, s2, 2')
        I('s_and_b32 s83, s2, 3')
        I('s_lshl_b32 s83, s83, 1')
        I(f's_add_u32 s83, s83, {sW}')
        I('v_lshlrev_b32 v52, 10, v48')
        I('v_lshl_add_u32 v52, v49, 4, v52')
        I(f's_lshl_b32 {sT0}, s82, 15')
        I(f's_lshl_b32 {sT1}, s83, 7')
        I(f's_add_u32 {sT1}, {sT1}, {sT0}')
        for u in range(4):
            o = f' offset:{u * 32}' if u else ''
            I(f'buffer_load_dwordx4 {vr(X + 4 * u, 4)}, v52, {INS}, {sT1} offen{o}')
        I(f's_lshl_b32 {sT1}, s83, 12')
        I(f's_add_u32 {sT1}, {sT1}, {sT0}')
        I(f's_add_u32 {sT1}, {sT1}, {hx(XF)}')
        I('v_mov_b32 v56, 0')
        I('v_mov_b32 v57, 0')
        for u in range(4):
            b = X + 4 * u
            I(f'v_permlane32_swap_b32 v{b}, v{b+2}')
            I(f'v_permlane32_swap_b32 v{b+1}, v{b+3}')
            o = f' offset:{u * 1024}' if u else ''
            I(f'buffer_store_dwordx4 {vr(b, 4)}, {vL16}, {WS}, {sT1} offen{o} sc1')
        for r in range(16):
            I(f'v_dot2c_f32_bf16 v56, {sONE}, v{X + r}')
            I(f'v_dot2c_f32_bf16 v57, v{X + r}, v{X + r}')
        I('v_permlane32_swap_b32 v56, v57')
        I('v_add_f32 v56, v56, v57')
        I('v_mov_b32 v57, 0')
        I('v_mov_b32 v58, 0')
        I('v_mov_b32 v59, 0')
        I(f's_lshl_b32 {sT0}, s82, 13')
        I(f's_lshl_b32 {sT1}, s83, 10')
        I(f's_add_u32 {sT1}, {sT1}, {sT0}')
        I(f's_add_u32 {sT1}, {sT1}, {hx(ST)}')
        I(f'buffer_store_dwordx4 v[56:59], {vL16}, {WS}, {sT1} offen sc1')
        p.nop(2)
        I(f's_cmp_eq_u32 {sW}, 1')
        I(f's_cbranch_scc1 {l_dn}')
        I('s_cmp_ge_u32 s2, 64')
        I(f's_cbranch_scc1 {l_done}')
        I('s_and_b32 s82, s2, 7')
        I('s_lshr_b32 s83, s2, 3')
        I('s_lshl_b32 s84, s83, 16')
        I(f's_lshl_b32 {sT0}, s82, 7')
        I(f's_add_u32 s84, s84, {sT0}')

        def dst_wo(ct):
            I(f's_lshl_b32 {sT2}, s82, 16')
            I(f's_lshl_b32 {sT0}, s83, 12')
            I(f's_add_u32 {sT2}, {sT2}, {sT0}')
            I(f's_add_u32 {sT2}, {sT2}, {hx(W2 + ct * 32768)}')
        self.wtask(0, [46], D * D * 2, 1024, 's84', 2, dst_wo, False, None)
        I(f's_branch {l_done}')
        p.label(l_dn)
        I('s_cmp_ge_u32 s2, 224')
        I(f's_cbranch_scc1 {l_done}')
        I('s_and_b32 s82, s2, 7')
        I('s_lshr_b32 s83, s2, 3')
        I('s_lshl_b32 s84, s83, 16')
        I(f's_lshl_b32 {sT0}, s82, 7')
        I(f's_add_u32 s84, s84, {sT0}')

        def dst_dn(ct):
            I(f's_mul_i32 {sT2}, s82, {2 * 112 * 1024}')
            I(f's_lshl_b32 {sT0}, s83, 12')
            I(f's_add_u32 {sT2}, {sT2}, {sT0}')
            I(f's_add_u32 {sT2}, {sT2}, {hx(W4 + ct * 112 * 1024)}')
        self.wtask(8192, [54], F * D * 2, 1024, 's84', 2, dst_dn, False, None)
        I(f's_branch {l_done}')
        p.label(l_w2)
        I('s_cmp_ge_u32 s2, 192')
        I(f's_cbranch_scc1 {l_done}')
        I('s_and_b32 s83, s2, 7')
        I('s_lshr_b32 s82, s2, 3')
        I(f's_mul_i32 s84, s83, {64 * 3072}')
        I(f's_lshl_b32 {sT0}, s82, 7')
        I(f's_add_u32 s84, s84, {sT0}')
        I('s_lshr_b32 s85, s82, 3')
        I('s_add_u32 s85, s85, 2')
        I('s_cmp_ge_u32 s85, 3')
        I(f's_cselect_b32 {sT0}, 3, 0')
        I(f's_sub_u32 s85, s85, {sT0}')
        I(f's_and_b32 {sT0}, s82, 7')
        I(f's_mul_i32 {sT0}, {sT0}, 20')
        I(f's_add_u32 s85, s85, {sT0}')
        self.cs_off()

        def dst_qkv(ct):
            I(f's_add_u32 {sT0}, s85, {10 * ct}')
            I(f's_mul_i32 {sT0}, {sT0}, {BLK}')
            I(f's_add_u32 {sT0}, {sT0}, {hx(W13)}')
            I(f's_lshl_b32 {sT2}, s83, 12')
            I(f's_add_u32 {sT2}, {sT2}, {sT0}')
            I(f's_add_u32 {sT1}, {sT0}, s86')
        self.wtask(16384, [42], D * 3 * D * 2, 3072, 's84', 2, dst_qkv, True, 's83')
        I(f's_branch {l_done}')
        p.label(l_w3)
        I('s_getpc_b64 s[82:83]')
        p.label('L_pc')
        I('s_sub_u32 s82, s82, L_pc-' + NAME + '_kernel')
        I('s_subb_u32 s83, s83, 0')
        I(f's_lshr_b32 {sT0}, s2, 3')
        I(f's_and_b32 {sT0}, {sT0}, 3')
        I(f's_lshl_b32 {sT0}, {sT0}, 13')
        I('v_lshlrev_b32 v52, 7, v63')
        I(f'v_add_u32 v52, {sT0}, v52')
        I('v_min_u32 v52, L_codeend-' + NAME + '_kernel-4, v52')
        I('global_load_dword v61, v52, s[82:83]')
        I('s_cmp_ge_u32 s2, 224')
        I(f's_cbranch_scc1 {l_done}')
        I('s_and_b32 s83, s2, 7')
        I('s_lshr_b32 s82, s2, 3')
        I(f's_mul_i32 s84, s83, {64 * 3584}')
        I(f's_lshl_b32 {sT0}, s82, 7')
        I(f's_add_u32 s84, s84, {sT0}')
        self.cs_off()

        def dst_gu(ct):
            I(f's_lshl_b32 {sT0}, s82, 2')
            I(f's_add_u32 {sT0}, {sT0}, {ct}')
            I(f's_mul_i32 {sT1}, {sT0}, 147')
            I(f's_lshr_b32 {sT1}, {sT1}, 10')
            I(f's_mul_i32 {sT1}, {sT1}, 3')
            I(f's_add_u32 {sT0}, {sT0}, {sT1}')
            I(f's_add_u32 {sT0}, {sT0}, 3')
            I(f's_mul_i32 {sT0}, {sT0}, {BLK}')
            I(f's_add_u32 {sT0}, {sT0}, {hx(W13)}')
            I(f's_lshl_b32 {sT2}, s83, 12')
            I(f's_add_u32 {sT2}, {sT2}, {sT0}')
            I(f's_add_u32 {sT1}, {sT0}, s86')
        self.wtask(24576, [50, 52], D * F * 2, 3584, 's84', 4, dst_gu, True, 's83')
        p.label(l_done)
        p.end_div()
        p.nop(4)
        p.wait_vm_all()
        p.wait_lg_all()
        I(f's_add_u32 s{TAG}, s{TAG}, 0x7f4a7c10')
        I(f's_addc_u32 s{TAG+1}, s{TAG+1}, 0x9e3779b9')
        I(f's_and_b32 s{TAG}, s{TAG}, -16')
        I('s_barrier')
        skip = p.newlabel('p0post')
        I(f's_cmp_lg_u32 {sW}, 0')
        I(f's_cbranch_scc1 {skip}')
        p.begin_div()
        I(f's_or_b32 {sT0}, s{TAG}, {sXCC}')
        I(f'v_mov_b32 v{TMP}, {sT0}')
        I(f'v_mov_b32 v{TMP+1}, s{TAG+1}')
        I(f's_lshl_b32 {sT0}, s2, 7')
        I(f'v_mov_b32 {vFL}, {sT0}')
        I(f's_mov_b32 {sT1}, {hx(FL0)}')
        I('s_mov_b64 exec, 1')
        I(f'buffer_store_dwordx2 {vr(TMP, 2)}, {vFL}, {WS}, {sT1} offen sc1')
        I('s_mov_b64 exec, -1')
        p.end_div()
        p.label(skip)
        self.setup()
        skip = p.newlabel('p0poll')
        I(f's_cmp_lg_u32 {sW}, 0')
        I(f's_cbranch_scc1 {skip}')
        p.begin_div()
        I(f'v_lshlrev_b32 {vFL}, 3, {vL16}')
        I(f's_mov_b32 {sT0}, {hx(FL0)}')
        I(f's_mov_b32 {sT1}, {hx(FL0 + 8192)}')
        I(f's_mov_b32 {sT2}, {hx(FL0 + 16384)}')
        I(f's_mov_b32 {sT3}, {hx(FL0 + 24576)}')
        self.poll([(vFL, sT0, 0), (vFL, sT1, 0), (vFL, sT2, 0), (vFL, sT3, 0)], mask_low=True, code=1, sleep=8)
        p.end_div()
        p.label(skip)
        I('s_barrier')

    def cs_off(self):
        I = self.I
        I('s_lshr_b32 s86, s83, 2')
        I('s_lshl_b32 s86, s86, 9')
        I(f's_and_b32 {sT0}, s83, 3')
        I(f's_lshl_b32 {sT0}, {sT0}, 2')
        I(f's_add_u32 s86, s86, {sT0}')
        I(f's_add_u32 s86, s86, {32 * 1024}')

    def setup(self):
        p, I = self.p, self.I
        I('v_and_b32 v52, 31, v63')
        I('v_lshrrev_b32 v53, 5, v63')
        I('v_and_b32 v54, 15, v63')
        I('v_bfe_u32 v55, v63, 4, 1')
        self.srd(24, 44, 45, H * DH * DH * 2)
        I('v_lshlrev_b32 v56, 7, v53')
        I('v_lshl_add_u32 v56, v54, 1, v56')
        I(f's_lshl_b32 {sT0}, {sJ}, 10')
        for h in range(2):
            for j in range(8):
                d0 = pi(0, j)
                I(f'buffer_load_ushort v{X + 8 * h + j}, v56, {INS}, {sT0} offen offset:{h * 512 + d0 * 32}')
        I(f's_lshl_b32 {sTB}, {sG}, 2')
        I(f's_lshr_b32 {sT0}, {sJ}, 3')
        I(f's_lshl_b32 {sT0}, {sT0}, 1')
        I(f's_add_u32 {sTBP}, {sTB}, {sT0}')
        I(f's_add_u32 {sTB}, {sTB}, {sW}')
        I(f's_and_b32 {sC}, {sJ}, 7')
        I(f's_lshl_b32 {sT0}, {sW}, 13')
        for b in range(4):
            I(f's_add_u32 s{sRB[b]}, {sT0}, {RING + b * BLK}')
            I(f'v_add_u32 v{vRB[b]}, {RING + b * BLK}, {vL16}')
        I(f's_mul_i32 {sW13}, {sJ}, {10 * BLK}')
        I(f's_add_u32 {sW13}, {sW13}, {hx(W13)}')
        I(f's_add_u32 {sW13}, {sW13}, {sT0}')
        I(f's_lshl_b32 {sQ4}, {sW}, 8')
        I(f's_add_u32 {sQ4}, {sQ4}, 32768')
        I(f's_sub_u32 {sQ4}, {sQ4}, {sT0}')
        I(f's_lshl_b32 {sT0}, {sW}, 5')
        I(f'v_add_u32 {vTW}, {sT0}, v52')
        I(f'v_mul_u32_u24 {vTW}, {TRP}, {vTW}')
        I(f'v_lshl_add_u32 {vTW}, v53, 3, {vTW}')
        I(f'v_add_u32 {vTW}, {SCR}, {vTW}')
        I('v_lshrrev_b32 v56, 2, v54')
        I('v_lshl_add_u32 v56, v53, 2, v56')
        I(f'v_mul_u32_u24 v56, {TRP}, v56')
        I(f'v_add_u32 v56, {SCR}, v56')
        I('v_and_b32 v57, 3, v54')
        I('v_lshlrev_b32 v57, 3, v57')
        I(f's_and_b32 {sT0}, {sW}, 1')
        I(f'v_xor_b32 v58, {sT0}, v55')
        I('v_lshl_add_u32 v58, v58, 5, v57')
        I(f's_lshr_b32 {sT1}, {sW}, 1')
        I(f's_lshl_b32 {sT0}, {sT1}, 6')
        I(f'v_add3_u32 {vTA}, v56, v58, {sT0}')
        I(f's_lshl_b32 {sT0}, {sT1}, 5')
        I(f's_add_u32 {sT0}, {sT0}, 128')
        I(f'v_add_u32 v57, {sT0}, v57')
        I('v_mov_b32 v58, 192')
        I('v_cmp_eq_u32 vcc, 0, v55')
        I('v_cndmask_b32 v57, v58, v57, vcc')
        I(f'v_add_u32 {vTB_}, v56, v57')
        I('v_lshl_add_u32 v57, v53, 4, v54')
        I('v_lshlrev_b32 v57, 4, v57')
        I('v_lshlrev_b32 v58, 4, v53')
        I('v_add_u32 v58, 512, v58')
        I(f'v_cndmask_b32 {vKV}, v58, v57, vcc')
        for u in range(1, 4):
            I(f's_xor_b32 {sT0}, {sW}, {u}')
            I(f's_mul_i32 {sT0}, {sT0}, 6144')
            I(f's_add_u32 {sT0}, {sT0}, {SCR + (u - 1) * 2048}')
            I(f'v_add_u32 v{vRW[u-1]}, {sT0}, {vL16}')
        I(f's_mul_i32 {sT0}, {sW}, 6144')
        I(f's_add_u32 {sT0}, {sT0}, {SCR}')
        I(f'v_add_u32 {vRR}, {sT0}, {vL16}')
        I(f's_and_b32 {sT0}, {sW}, 1')
        I(f's_lshl_b32 {sT0}, {sT0}, 8')
        I(f'v_xor_b32 {vL16P}, {sT0}, {vL16}')
        I(f'v_lshlrev_b32 {vOUT}, 10, v52')
        I(f'v_lshl_add_u32 {vOUT}, v53, 4, {vOUT}')
        I('v_lshlrev_b32 v57, 31, v55')
        I('v_lshrrev_b32 v58, 16, v57')
        I('v_or_b32 v57, v57, v58')
        for h in range(2):
            for r in range(4):
                I(f'v_lshl_or_b32 v{PHI + 4 * h + r}, v{X + 8 * h + 2 * r + 1}, 16, v{X + 8 * h + 2 * r}')
                I(f'v_xor_b32 v{PHI + 4 * h + r}, v57, v{PHI + 4 * h + r}')
        I(f's_mov_b32 {sL}, 0')
        I(f'v_mov_b32 v{vP}, 0')

    def first_loads(self):
        p, I = self.p, self.I
        for i, nm in enumerate(('k', 'v', 'q', 't0')):
            self.run(self.dma_block(nm, i, i))
        p.wait_vm_all()
        for cbl in range(2):
            I(f's_lshr_b32 {sT0}, {sW}, 1')
            I(f's_xor_b32 {sT0}, {sT0}, {cbl}')
            I(f's_lshl_b32 {sT1}, {sC}, 1')
            I(f's_add_u32 {sT0}, {sT0}, {sT1}')
            I(f's_mul_i32 {sT0}, {sT0}, 112')
            I(f's_mul_i32 {sT1}, {sW}, 28')
            I(f's_add_u32 {sT0}, {sT0}, {sT1}')
            I(f's_lshl_b32 {sT0}, {sT0}, 10')
            I(f's_add_u32 {sT0}, {sT0}, {hx(W4)}')
            for i in range(28):
                if i and i % 4 == 0:
                    I(f's_add_u32 {sT0}, {sT0}, 4096')
                o = f' offset:{(i % 4) * 1024}' if i % 4 else ''
                I(f'buffer_load_dwordx4 {vr(4 * (cbl * 28 + i), 4, "a")}, {vL16P}, {WS}, {sT0} offen{o} sc1')
        p.wait_vm_all()
        I('s_barrier')

    def layer_consts(self):
        I = self.I
        I(f's_mul_i32 {sLX}, {sL}, {2 * XF_SZ}')
        I(f's_mul_i32 {sLS}, {sL}, {2 * ST_SZ}')
        I(f's_mul_i32 {sLO}, {sL}, {OF_SZ}')
        I(f's_mul_i32 {sLH}, {sL}, {HF_SZ}')
        I(f's_lshl_b32 {sFI}, {sL}, 14')
        I(f's_lshl_b32 {sT0}, {sG}, 7')
        I(f's_add_u32 {sFI}, {sFI}, {sT0}')
        I(f's_add_u32 {sFI}, {sFI}, {hx(FLI)}')
        I(f's_lshl_b32 {sFG}, {sL}, 4')
        I(f's_add_u32 {sFG}, {sFG}, {sJ}')
        I(f's_lshl_b32 {sFG}, {sFG}, 2')
        I(f's_add_u32 {sFG}, {sFG}, {sW}')
        I(f's_lshl_b32 {sFG}, {sFG}, 11')
        I(f's_add_u32 {sFG}, {sFG}, {hx(FLG)}')
        I(f's_cmp_eq_u32 {sL}, 0')
        I(f's_cselect_b32 s18, {hx(WS_BYTES)}, 0')

    def load_x(self, which, streg):
        I = self.I
        I(f's_lshl_b32 {sT0}, {sTB}, 13')
        I(f's_add_u32 {sT0}, {sT0}, {sLS}')
        I(f's_add_u32 {sT0}, {sT0}, {hx(ST + which * ST_SZ)}')
        I(f's_lshl_b32 {sT1}, {sTB}, 15')
        I(f's_add_u32 {sT1}, {sT1}, {sLX}')
        I(f's_add_u32 {sT1}, {sT1}, {hx(XF + which * XF_SZ)}')

        def xl(ks):
            if ks and ks % 4 == 0:
                I(f's_add_u32 {sT1}, {sT1}, 4096')
            o = f' offset:{(ks % 4) * 1024}' if ks % 4 else ''
            I(f'buffer_load_dwordx4 {vr(X + 4 * ks, 4)}, {vL16}, {WS}, {sT1} offen{o} sc1')
        for ks in range(16):
            xl(ks)
        for c in range(8):
            if c == 4:
                I(f's_add_u32 {sT0}, {sT0}, 4096')
            o = f' offset:{(c % 4) * 1024}' if c % 4 else ''
            I(f'buffer_load_dwordx4 {vr(streg[c], 4)}, {vL16}, {WS}, {sT0} offen{o} sc1')
        for ks in range(16, 32):
            xl(ks)

    def stats_code(self, streg):
        regs = [streg[c] + i for c in range(8) for i in range(4)]
        out = []
        while len(regs) > 1:
            nxt = []
            for a, b in zip(regs[0::2], regs[1::2]):
                out.append(f'v_add_f32 v{a}, v{a}, v{b}')
                nxt.append(a)
            regs = nxt
        s = regs[0]
        t = s + 1
        out += [f'v_mul_f32 v{s}, {hx(f2u(1.0 / 512))}, v{s}',
                f'v_mov_b32 v{t}, v{s}',
                f'v_permlane32_swap_b32 v{s}, v{t}',
                f'v_fma_f32 v{t}, -v{s}, v{s}, v{t}',
                f'v_max_f32 v{t}, 0, v{t}',
                f'v_add_f32 {vS2}, {hx(f2u(1e-5))}, v{t}',
                f'v_rsq_f32 {vRS}, {vS2}',
                f'v_cvt_pk_bf16_f32 v{MF}, -v{s}, -v{s}',
                f'v_mov_b32 v{MF+1}, v{MF}',
                f'v_mov_b32 v{MF+2}, v{MF}',
                f'v_mov_b32 v{MF+3}, v{MF}']
        return out

    def feature_map(self, src, sink, between=()):
        p, I = self.p, self.I
        KF = TMP
        for r in range(8):
            I(f'v_cvt_pk_bf16_f32 v{KF + r}, v{src + 2 * r}, v{src + 2 * r + 1}')
        for h in range(2):
            I(f'v_mfma_f32_32x32x16_bf16 {vr(A(2 + h), 16)}, {vr(PHI + 4 * h, 4)}, {vr(KF + 4 * h, 4)}, 0')
        I(f'v_mul_f32 {vC1}, {hx(f2u(math.log2(math.e)))}, {vRS}')
        self.run(between)
        M = TMP + 8
        m = lambda h, s: M + 2 * h + s
        for h in range(2):
            for s in range(2):
                b = A(2 + h) + 8 * s
                I(f'v_max3_f32 v{m(h, s)}, v{b}, v{b+1}, v{b+2}')
                I(f'v_max3_f32 v{TMP + 2 * h + s}, v{b+3}, v{b+4}, v{b+5}')
                I(f'v_max3_f32 v{m(h, s)}, v{b+6}, v{b+7}, v{m(h, s)}')
                I(f'v_max_f32 v{m(h, s)}, v{m(h, s)}, v{TMP + 2 * h + s}')

        def cross(op):
            for h in range(2):
                I(f'v_permlane32_swap_b32 v{m(h, 0)}, v{m(h, 1)}')
            for h in range(2):
                I(f'{op} v{m(h, 0)}, v{m(h, 0)}, v{m(h, 1)}')
        cross('v_max_f32')
        for h in range(2):
            I(f'v_mul_f32 v{m(h, 0)}, v{m(h, 0)}, {vC1}')
        for h in range(2):
            I(f'v_mov_b32 v{m(h, 1)}, v{m(h, 0)}')
        for h in range(2):
            I(f'v_permlane32_swap_b32 v{m(h, 0)}, v{m(h, 1)}')
        c2 = 'v[44:45]'
        for h in range(2):
            for s in range(2):
                b = A(2 + h) + 8 * s
                mm = vr(M + 2 * h, 2)
                for r in range(0, 8, 2):
                    I(f'v_pk_fma_f32 {vr(b + r, 2)}, {vr(b + r, 2)}, {c2}, {mm} op_sel:[0,0,{s}] op_sel_hi:[1,0,{s}] neg_lo:[0,0,1] neg_hi:[0,0,1]')
        for h in range(2):
            for r in range(16):
                I(f'v_exp_f32 v{A(2 + h) + r}, v{A(2 + h) + r}')
        for h in range(2):
            for s in range(2):
                b = A(2 + h) + 8 * s
                t = TMP + 4 * h + 2 * s
                I(f'v_pk_add_f32 {vr(t, 2)}, {vr(b, 2)}, {vr(b + 2, 2)}')
                I(f'v_pk_add_f32 {vr(t, 2)}, {vr(t, 2)}, {vr(b + 4, 2)}')
                I(f'v_pk_add_f32 {vr(t, 2)}, {vr(t, 2)}, {vr(b + 6, 2)}')
                I(f'v_add_f32 v{m(h, s)}, v{t}, v{t+1}')
        cross('v_add_f32')
        for h in range(2):
            I(f'v_rcp_f32 v{m(h, 0)}, v{m(h, 0)}')
        for h in range(2):
            I(f'v_mov_b32 v{m(h, 1)}, v{m(h, 0)}')
        for h in range(2):
            I(f'v_permlane32_swap_b32 v{m(h, 0)}, v{m(h, 1)}')
        for h in range(2):
            for s in range(2):
                b = A(2 + h) + 8 * s
                mm = vr(M + 2 * h, 2)
                for r in range(0, 8, 2):
                    I(f'v_pk_mul_f32 {vr(b + r, 2)}, {vr(b + r, 2)}, {mm} op_sel:[0,{s}] op_sel_hi:[1,{s}]')
            for g in range(4):
                sink(h, g, A(2 + h) + 4 * g)

    def p1(self):
        p, I = self.p, self.I
        streg = [A(2) + 4 * c for c in range(8)]
        self.load_x(0, streg)
        steps = []
        for ks in range(32):
            steps.append((A(0), 0, ks, vr(X + 4 * ks, 4), ks == 0))
            steps.append((A(1), 1, ks, vr(X + 4 * ks, 4), ks == 0))
        steps.append((A(0), 0, 32, vr(MF, 4), False))
        steps.append((A(1), 1, 32, vr(MF, 4), False))
        left = self.mstream(steps, fill=[(34, t, 64) for t in self.stats_code(streg)])
        assert not left
        self.stamp('p1 kv gemm')
        vep = []
        for r in range(16):
            vep.append(f'v_mul_f32 v{A(1) + r}, v{A(1) + r}, {vRS}')
        for g in range(4):
            b = A(1) + 4 * g
            vep.append(f'v_cvt_pk_bf16_f32 v{b}, v{b}, v{b+1}')
            vep.append(f'v_cvt_pk_bf16_f32 v{b+1}, v{b+2}, v{b+3}')
            vep.append(f'ds_write_b64 {vTW}, {vr(b, 2)} offset:{128 + 16 * g}')
        vep.append(f'v_mov_b32 v{A(1) + 2}, {sONE}')
        vep.append(f'v_mov_b32 v{A(1) + 3}, {sONE}')
        vep.append(f'v_and_b32 v{A(1) + 6}, -16, {vTW}')

        def ones():
            I(f'v_lshrrev_b32 v{A(1) + 6}, 9, {vL16}')
            I(f'v_lshlrev_b32 v{A(1) + 6}, 3, v{A(1) + 6}')
            I(f'v_sub_u32 v{A(1) + 6}, {vTW}, v{A(1) + 6}')
            I(f'ds_write_b64 v{A(1) + 6}, {vr(A(1) + 2, 2)} offset:192')
        vep[-1] = ones

        def sink_k(h, g, b):
            I(f'v_cvt_pk_bf16_f32 v{b}, v{b}, v{b+1}')
            I(f'v_cvt_pk_bf16_f32 v{b+1}, v{b+2}, v{b+3}')
            I(f'ds_write_b64 {vTW}, {vr(b, 2)} offset:{64 * h + 16 * g}')
        self.feature_map(A(0), sink_k, between=vep)
        p.wait_lg_all()
        I('s_barrier')
        self.stamp('p1 k softmax')
        fr = [A(1) + 4 * i for i in range(12)] + [PQ + 4 * i for i in range(4)]
        for s in range(8):
            for o, (base, reg) in enumerate(((vTA, fr[2 * s]), (vTB_, fr[2 * s + 1]))):
                for rd in range(2):
                    I(f'ds_read_b64_tr_b16 {vr(reg + 2 * rd, 2)}, {base} offset:{(16 * s + 8 * rd) * TRP}')
            if s >= 2:
                k = s - 2
                I(f'v_mfma_f32_32x32x16_bf16 {vr(A(0), 16)}, {vr(fr[2 * k], 4)}, {vr(fr[2 * k + 1], 4)}, {"0" if k == 0 else vr(A(0), 16)}')
        for k in (6, 7):
            I(f'v_mfma_f32_32x32x16_bf16 {vr(A(0), 16)}, {vr(fr[2 * k], 4)}, {vr(fr[2 * k + 1], 4)}, {vr(A(0), 16)}')
        I(f's_lshl_b32 {sT0}, {sJ}, 2')
        I(f's_add_u32 {sT0}, {sT0}, {sW}')
        I(f's_mul_i32 s82, {sT0}, {16 * 2 * KVQ}')
        I(f's_add_u32 s82, s82, {sLO}')
        I(f's_add_u32 s82, s82, {hx(KVP)}')
        I(f's_mul_i32 {sT0}, {sG}, {2 * KVQ}')
        I(f's_add_u32 {sT0}, {sT0}, s82')
        kvt = [I(f'buffer_store_dwordx4 {vr(A(0), 4)}, {vKV}, {WS}, {sT0} offen sc1'),
               I(f'buffer_store_dwordx4 {vr(A(0) + 4, 4)}, {vKV}, {WS}, {sT0} offen offset:{KVQ} sc1')]
        self.stamp('p1 kv partial')

        def post():
            I(f'v_mov_b32 v{TMP}, s{TAG}')
            I(f'v_mov_b32 v{TMP+1}, s{TAG+1}')
            I(f's_lshl_b32 {sT0}, {sG}, 7')
            I(f'v_mov_b32 {vFL}, {sT0}')
            p.wait(*kvt)
            I('s_mov_b64 exec, 1')
            I(f'buffer_store_dwordx2 {vr(TMP, 2)}, {vFL}, {WS}, {sFG} offen sc1')
            I('s_mov_b64 exec, -1')
        steps = [(A(1), 2, ks, vr(X + 4 * ks, 4), ks == 0) for ks in range(32)] + [(A(1), 2, 32, vr(MF, 4), False)]
        ev = {0: self.dma_block('t1', 0, 4) + self.dma_block('t2', 1, 5), 24: [post]}
        self.mstream(steps, events=ev)
        I('s_barrier')
        self.run(self.dma_block('t3', 2, 6))
        for cbl in range(2):
            I(f's_lshr_b32 {sT0}, {sW}, 1')
            I(f's_xor_b32 {sT0}, {sT0}, {cbl}')
            I(f's_lshl_b32 {sT1}, {sC}, 1')
            I(f's_add_u32 {sT0}, {sT0}, {sT1}')
            I(f's_lshl_b32 {sT0}, {sT0}, 2')
            I(f's_add_u32 {sT0}, {sT0}, {sW}')
            I(f's_lshl_b32 {sT0}, {sT0}, 13')
            I(f's_add_u32 {sT0}, {sT0}, {hx(W2)}')
            for i in range(8):
                if i == 4:
                    I(f's_add_u32 {sT0}, {sT0}, 4096')
                o = f' offset:{(i % 4) * 1024}' if i % 4 else ''
                I(f'buffer_load_dwordx4 {vr(X + 4 * (cbl * 8 + i), 4)}, {vL16P}, {WS}, {sT0} offen{o} sc1')

        def sink_q(h, g, b):
            d = PQ + 8 * h + 2 * g
            I(f'v_cvt_pk_bf16_f32 v{d}, v{b}, v{b+1}')
            I(f'v_cvt_pk_bf16_f32 v{d+1}, v{b+2}, v{b+3}')
        self.feature_map(A(1), sink_q)
        self.stamp('p1 q done')

    def p2a(self):
        p, I = self.p, self.I
        I(f'v_lshlrev_b32 {vFL}, 3, {vL16}')
        I(f'v_and_b32 {vFL}, 0x780, {vFL}')
        self.poll([(vFL, sFG, 0)], code=2, sleep=2)
        self.stamp('G polled')
        regs = [ACC + 4 * i for i in range(16)] + [X + 64 + 4 * i for i in range(16)]
        I(f's_mov_b32 {sT0}, s82')
        for g in range(16):
            if g and g % 3 == 0:
                I(f's_add_u32 {sT0}, {sT0}, {6 * KVQ}')
            for q in range(2):
                off = ((g % 3) * 2 + q) * KVQ
                o = f' offset:{off}' if off else ''
                I(f'buffer_load_dwordx4 {vr(regs[2 * g + q], 4)}, {vKV}, {WS}, {sT0} offen{o} sc1')
        for g in range(1, 16):
            for q in range(2):
                for h in range(0, 4, 2):
                    I(f'v_pk_add_f32 {vr(regs[q] + h, 2)}, {vr(regs[q] + h, 2)}, {vr(regs[2 * g + q] + h, 2)}')
        for r in range(4):
            I(f'v_cvt_pk_bf16_f32 v{TMP + r}, v{ACC + 2 * r}, v{ACC + 2 * r + 1}')
        I(f's_lshl_b32 {sT0}, {sW}, 10')
        I(f's_add_u32 {sT0}, {sT0}, {SCR}')
        I(f'v_add_u32 {vFL}, {sT0}, {vL16}')
        I(f'ds_write_b128 {vFL}, {vr(TMP, 4)}')
        I(f'v_add_u32 {vFL}, {SCR}, {vL16}')
        p.wait_lg_all()
        I('s_barrier')
        self.stamp('gathered')
        for i in range(4):
            I(f'ds_read_b128 {vr(A(2) + 4 * i, 4)}, {vFL} offset:{i * 1024}')
        for s in range(2):
            for h in range(2):
                I(f'v_mfma_f32_32x32x16_bf16 {vr(A(h), 16)}, {vr(A(2) + 4 * (2 * h + s), 4)}, {vr(PQ + 8 * h + 4 * s, 4)}, {"0" if s == 0 else vr(A(h), 16)}')
        I(f's_lshl_b32 {sT0}, {sTB}, 15')
        I(f's_lshl_b32 {sT1}, {sJ}, 11')
        I(f's_add_u32 {sT0}, {sT0}, {sT1}')
        I(f's_add_u32 {sT0}, {sT0}, {sLO}')
        I(f's_add_u32 {sT0}, {sT0}, {hx(OF)}')
        toks = []
        for h in range(2):
            b = A(h)
            I(f'v_add_f32 v{b + 8}, {hx(f2u(1e-6))}, v{b + 8}')
            I(f'v_rcp_f32 v{b + 8}, v{b + 8}')
            for r in range(0, 8, 2):
                I(f'v_pk_mul_f32 {vr(b + r, 2)}, {vr(b + r, 2)}, {vr(b + 8, 2)} op_sel_hi:[1,0]')
            for r in range(4):
                I(f'v_cvt_pk_bf16_f32 v{b + 12 + r}, v{b + 2 * r}, v{b + 2 * r + 1}')
            toks += self.st_group(b + 12, 4, vL16, sT0, h * 1024)
        self.res_load(0)
        self.stamp('o stored')
        self.hop(0, toks)
        self.stamp('o hop')

    def res_load(self, which):
        I = self.I
        I(f's_lshl_b32 {sT1}, {sTBP}, 15')
        I(f's_lshl_b32 {sT2}, {sC}, 12')
        I(f's_add_u32 {sT1}, {sT1}, {sT2}')
        I(f's_lshl_b32 {sT2}, {sW}, 10')
        I(f's_add_u32 s83, {sT1}, {sT2}')
        I(f's_add_u32 {sT1}, s83, {sLX}')
        I(f's_add_u32 {sT1}, {sT1}, {hx(XF + which * XF_SZ)}')
        I(f'buffer_load_dwordx4 {vr(PQ, 4)}, {vL16}, {WS}, {sT1} offen sc1')
        I(f's_add_u32 {sT1}, {sT1}, 32768')
        I(f'buffer_load_dwordx4 {vr(PQ + 4, 4)}, {vL16}, {WS}, {sT1} offen sc1')

    def res_init(self):
        I = self.I
        for tbi in range(2):
            b = A(2 * tbi)
            for r in range(4):
                I(f'v_lshlrev_b32 v{b + 2 * r}, 16, v{PQ + 4 * tbi + r}')
                I(f'v_and_b32 v{b + 2 * r + 1}, 0xffff0000, v{PQ + 4 * tbi + r}')
            for r in range(8, 16):
                I(f'v_mov_b32 v{b + r}, 0')

    def reduce_write(self, tbi):
        I = self.I
        src = [A(2 * tbi) + 8, A(2 * tbi + 1), A(2 * tbi + 1) + 8]
        for u in range(3):
            I(f'ds_write_b128 v{vRW[u]}, {vr(src[u], 4)}')
            I(f'ds_write_b128 v{vRW[u]}, {vr(src[u] + 4, 4)} offset:1024')

    def finalize(self, tbi, which, maybe_final):
        p, I = self.p, self.I
        b = A(2 * tbi)
        dst = [b + 8, b + 12, b + 16, b + 20, b + 24, b + 28]
        for u in range(3):
            for q in range(2):
                I(f'ds_read_b128 {vr(dst[2 * u + q], 4)}, {vRR} offset:{u * 2048 + q * 1024}')
        for u in range(3):
            for q in range(2):
                for h in range(0, 4, 2):
                    I(f'v_pk_add_f32 {vr(b + 4 * q + h, 2)}, {vr(b + 4 * q + h, 2)}, {vr(dst[2 * u + q] + h, 2)}')
        o = b + 8
        for r in range(4):
            I(f'v_cvt_pk_bf16_f32 v{o + r}, v{b + 2 * r}, v{b + 2 * r + 1}')
        toks = []
        if maybe_final:
            lf, le = p.newlabel('fin'), p.newlabel('fine')
            I(f's_cmp_eq_u32 {sL}, 0')
            I(f's_cbranch_scc1 {lf}')
            p.begin_div()
            I(f'v_permlane32_swap_b32 v{o}, v{o+2}')
            I(f'v_permlane32_swap_b32 v{o+1}, v{o+3}')
            I(f's_add_u32 {sT0}, {sTBP}, {tbi}')
            I(f's_lshl_b32 {sT0}, {sT0}, 15')
            I(f's_lshl_b32 {sT1}, {sC}, 7')
            I(f's_add_u32 {sT0}, {sT0}, {sT1}')
            I(f's_lshl_b32 {sT1}, {sW}, 5')
            I(f's_add_u32 {sT0}, {sT0}, {sT1}')
            I(f'buffer_store_dwordx4 {vr(o, 4)}, {vOUT}, {OUT}, {sT0} offen')
            I(f's_branch {le}')
            p.end_div()
            p.label(lf)
            p.begin_div()
        I(f's_add_u32 {sT0}, s83, {sLX}')
        I(f's_add_u32 {sT0}, {sT0}, {hx(XF + which * XF_SZ + tbi * 32768)}')
        toks += self.st_group(o, 4, vL16, sT0)
        I(f'v_mov_b32 v{b}, 0')
        I(f'v_mov_b32 v{b+1}, 0')
        for r in range(4):
            I(f'v_dot2c_f32_bf16 v{b}, {sONE}, v{o + r}')
            I(f'v_dot2c_f32_bf16 v{b+1}, v{o + r}, v{o + r}')
        I(f's_add_u32 {sT0}, {sTBP}, {tbi}')
        I(f's_lshl_b32 {sT0}, {sT0}, 13')
        I(f's_lshl_b32 {sT1}, {sC}, 10')
        I(f's_add_u32 {sT0}, {sT0}, {sT1}')
        I(f's_lshl_b32 {sT1}, {sW}, 2')
        I(f's_add_u32 {sT0}, {sT0}, {sT1}')
        I(f's_add_u32 {sT0}, {sT0}, {sLS}')
        I(f's_add_u32 {sT0}, {sT0}, {hx(ST + which * ST_SZ)}')
        I(f'v_permlane32_swap_b32 v{b}, v{b+1}')
        I(f'v_add_f32 v{b}, v{b}, v{b+1}')
        toks += self.st_group(b, 1, vL16, sT0)
        if maybe_final:
            p.end_div()
            p.label(le)
        return toks

    def p2(self):
        p, I = self.p, self.I
        I(f's_lshl_b32 {sT0}, {sTBP}, 15')
        I(f's_lshl_b32 {sT1}, {sW}, 13')
        I(f's_add_u32 {sT0}, {sT0}, {sT1}')
        I(f's_add_u32 {sT0}, {sT0}, {sLO}')
        I(f's_add_u32 {sT0}, {sT0}, {hx(OF)}')
        for tbi in range(2):
            for i in range(8):
                if i == 4:
                    I(f's_add_u32 {sT0}, {sT0}, 4096')
                o = f' offset:{(i % 4) * 1024}' if i % 4 else ''
                I(f'buffer_load_dwordx4 {vr(X + 64 + 4 * (tbi * 8 + i), 4)}, {vL16}, {WS}, {sT0} offen{o} sc1')
            if tbi == 0:
                I(f's_add_u32 {sT0}, {sT0}, {32768 - 4096}')
        self.res_init()

        def mm(tbi):
            for i in range(8):
                for cbl in range(2):
                    acc = A(2 * tbi + cbl)
                    c = '0' if (i == 0 and cbl == 1) else vr(acc, 16)
                    I(f'v_mfma_f32_32x32x16_bf16 {vr(acc, 16)}, {vr(X + 4 * (cbl * 8 + i), 4)}, {vr(X + 64 + 4 * (tbi * 8 + i), 4)}, {c}')
        toks = self.tail(mm, 1, False)
        self.stamp('p2 done')
        self.hop(1, toks, extra_wait=self.dma['t0'] + self.dma['t1'] + self.dma['t2'] + self.dma['t3'])
        self.stamp('x1 hop')

    def tail(self, mm, which, maybe_final):
        p, I = self.p, self.I
        mm(0)
        self.reduce_write(0)
        p.wait_lg_all()
        I('s_barrier')
        toks = self.finalize(0, which, maybe_final)
        mm(1)
        I('s_barrier')
        self.reduce_write(1)
        p.wait_lg_all()
        I('s_barrier')
        toks += self.finalize(1, which, maybe_final)
        return toks

    def geglu(self, acc, tile, toks):
        out = []
        T = [TMP + i for i in range(8)]
        for r in range(8):
            out.append(f'v_mul_f32 v{T[r]}, v{acc + r}, v{acc + r}')
        for r in range(8):
            out.append(f'v_fma_f32 v{T[r]}, v{T[r]}, {vC3}, {vC1}')
        for r in range(8):
            out.append(f'v_mul_f32 v{T[r]}, v{T[r]}, v{acc + r}')
        for r in range(8):
            out.append(f'v_exp_f32 v{T[r]}, v{T[r]}')
            out.append(f'v_mul_f32 v{acc + 8 + r}, v{acc + r}, v{acc + 8 + r}')
        for r in range(8):
            out.append(f'v_fma_f32 v{T[r]}, v{T[r]}, {vS2}, {vS2}')
        for r in range(8):
            out.append(f'v_rcp_f32 v{T[r]}, v{T[r]}')
            if r:
                out.append(f'v_mul_f32 v{acc + 7 + r}, v{acc + 7 + r}, v{T[r-1]}')
        out.append(f'v_cvt_pk_bf16_f32 v{TMP + 8}, v{acc + 8}, v{acc + 9}')
        out.append(f'v_mul_f32 v{acc + 15}, v{acc + 15}, v{T[7]}')
        for r in range(1, 4):
            out.append(f'v_cvt_pk_bf16_f32 v{TMP + 8 + r}, v{acc + 8 + 2 * r}, v{acc + 9 + 2 * r}')

        def store():
            if tile == 4:
                self.I(f's_add_u32 s84, s84, 4096')
            toks.extend(self.st_group(TMP + 8, 4, vL16, 's84', (tile % 4) * 1024))
        out.append(store)
        return out

    def p3(self):
        p, I = self.p, self.I
        streg = [A(3) + 4 * c for c in range(4)] + [PQ + 4 * c for c in range(4)]
        self.load_x(1, streg)
        I(f's_mul_i32 s84, {sTB}, {112 * 1024}')
        I(f's_mul_i32 {sT0}, {sJ}, {7 * 1024}')
        I(f's_add_u32 s84, s84, {sT0}')
        I(f's_add_u32 s84, s84, {sLH}')
        I(f's_add_u32 s84, s84, {hx(HF)}')
        slot = lambda t: (3 + t) % 4
        acc = lambda t: A(t % 4)
        xr = lambda ks: vr(X + 4 * ks, 4) if ks < 32 else vr(MF, 4)
        steps = []
        n2 = 0
        for ks in range(33):
            steps.append((acc(0), slot(0), ks, xr(ks), ks == 0))
            steps.append((acc(1), slot(1), ks, xr(ks), ks == 0))
            if ks % 3 == 2 and ks < 32:
                steps.append((acc(2), slot(2), n2, xr(n2), n2 == 0))
                n2 += 1
        end = {0: len(steps) - 2, 1: len(steps) - 1}
        start = {}
        for t in range(2, 7):
            start[t] = len(steps)
            for ks in range(n2 if t == 2 else 0, 33):
                steps.append((acc(t), slot(t), ks, xr(ks), ks == 0))
            end[t] = len(steps) - 1
        c1 = -2.0 * math.sqrt(2.0 / math.pi) * math.log2(math.e)
        st = self.stats_code(streg) + [
            f'v_mul_f32 {vC1}, {hx(f2u(c1))}, {vRS}',
            f'v_mul_f32 {vC3}, {vRS}, {vRS}',
            f'v_mul_f32 {vC3}, {hx(f2u(0.044715))}, {vC3}',
            f'v_mul_f32 {vC3}, {vC3}, {vC1}']
        fill = [(40, t, end[0]) for t in st]
        toks = []
        for t in range(6):
            fill += [(end[t] + 3, it, start.get(t + 4, 10**6)) for it in self.geglu(acc(t), t, toks)]
        ev = {}
        cuts = {}
        pendq = []

        def cut(frees, needs):
            def f():
                for nm in needs:
                    p.wait(*self.dma[nm])
                I('s_barrier')
                for (nm, sl, tile, srd) in frees:
                    pendq.extend(self.dma_block(nm, sl, tile, srd))
            return f
        cuts[start[2]] = cut([('t4', slot(4), 7, WS), ('t5', slot(5), 8, WS)], [])
        cuts[start[3]] = cut([('t6', slot(6), 9, WS)], [])
        cuts[start[4]] = cut([('k', slot(7), 0, WSN)], ['t4'])
        cuts[start[5]] = cut([('v', slot(8), 1, WSN)], ['t5'])
        cuts[start[6]] = cut([('q', slot(9), 2, WSN)], ['t6'])

        def drain():
            if pendq:
                pendq.pop(0)()
        for g in range(len(steps)):
            ev[g] = [drain]
        left = self.mstream(steps, events=ev, fill=fill, cuts=cuts)
        while pendq:
            drain()
        self.res_load(1)
        self.run(left)
        self.run(self.geglu(acc(6), 6, toks))
        self.stamp('p3 done')
        self.hop(2, toks)
        self.run(self.dma_block('t0', slot(10), 3, WSN))
        self.stamp('h hop')

    def p4(self):
        p, I = self.p, self.I
        I(f's_mul_i32 {sT0}, {sTBP}, {112 * 1024}')
        I(f's_mul_i32 {sT1}, {sW}, {28 * 1024}')
        I(f's_add_u32 {sT0}, {sT0}, {sT1}')
        I(f's_add_u32 {sT0}, {sT0}, {sLH}')
        I(f's_add_u32 s85, {sT0}, {hx(HF)}')
        order = [(tbi, i) for tbi in range(2) for i in range(28)]
        nl = 0

        def load():
            nonlocal nl
            if nl >= len(order):
                return
            tbi, i = order[nl]
            if i % 4 == 0:
                I(f's_add_u32 s86, s85, {tbi * 112 * 1024 + i * 1024}')
            o = f' offset:{(i % 4) * 1024}' if i % 4 else ''
            I(f'buffer_load_dwordx4 {vr(X + 4 * (nl % 32), 4)}, {vL16}, {WS}, s86 offen{o} sc1')
            nl += 1
        for _ in range(30):
            load()
        self.res_init()

        def mm(tbi):
            for i in range(28):
                n = tbi * 28 + i
                for cbl in range(2):
                    acc = A(2 * tbi + cbl)
                    c = '0' if (i == 0 and cbl == 1) else vr(acc, 16)
                    I(f'v_mfma_f32_32x32x16_bf16 {vr(acc, 16)}, {vr(4 * (cbl * 28 + i), 4, "a")}, {vr(X + 4 * (n % 32), 4)}, {c}')
                load()
        toks = self.tail(mm, 2, True)
        self.stamp('p4 done')
        I(f's_cmp_lg_u32 {sL}, 0')
        I('s_cbranch_scc1 L_finish')
        p.wait_vm_all()
        self.hop(3, [], extra_wait=self.dma['k'] + self.dma['v'] + self.dma['q'])
        self.stamp('x2 hop')

    def body(self):
        p, I = self.p, self.I
        self.nstamp = 1
        self.stamps = ['start']
        self.stg = 0
        self.layer_consts()
        self.stamp('layer start')
        for name, f in (('p1', self.p1), ('p2a', self.p2a), ('p2', self.p2), ('p3', self.p3), ('p4', self.p4)):
            f()
            if self.stop == name:
                I('s_branch L_finish')
        for a, b in ((0, 2), (1, 3)):
            I(f's_mov_b32 {sT0}, s{sRB[a]}')
            I(f's_mov_b32 s{sRB[a]}, s{sRB[b]}')
            I(f's_mov_b32 s{sRB[b]}, {sT0}')
            I(f'v_swap_b32 v{vRB[a]}, v{vRB[b]}')
        if self.prof:
            I(f'v_mov_b32 v{TMP}, v{vP}')
            self.dump_prof(0)
        I(f's_mov_b32 {sL}, 1')
        p.nop(4)
        I('s_branch L_layer')

    def dump_prof(self, half):
        I = self.I
        I(f's_lshl_b32 {sT0}, s2, 2')
        I(f's_add_u32 {sT0}, {sT0}, {sW}')
        I(f's_lshl_b32 {sT0}, {sT0}, 9')
        I(f's_add_u32 {sT0}, {sT0}, {hx(PROF + half * 256)}')
        I(f'buffer_store_dword v{TMP}, {vL4}, {WS}, {sT0} offen')

    def build(self):
        p, I = self.p, self.I
        self.stamps = []
        if self.prof:
            I('s_memtime s[88:89]')
        self.prologue()
        if self.prof:
            I(f'v_writelane_b32 v{vP}, s88, 0')
            self.nstamp = 40
            self.stamp('p0 synced')
        if self.stop == 'p0':
            I('s_branch L_finish')
        self.first_loads()
        p.nop(8)
        p.label('L_layer')
        head = p.lines
        prev = None
        uid0 = p.uid
        for it in range(4):
            p.lines = []
            p.uid = uid0
            p.hist = []
            p.alts = []
            self.body()
            if prev is not None and it >= 2 and prev == p.lines:
                break
            prev = p.lines
        else:
            raise RuntimeError('loop body did not converge')
        p.lines = head + p.lines
        p.hist = []
        p.alts = []
        p.label('L_finish')
        p.nop(16)
        if self.prof:
            I(f'v_mov_b32 v{TMP}, v{vP}')
            self.dump_prof(1)
        I('s_cmp_lg_u32 s2, 0')
        I('s_cbranch_scc1 L_end')
        I(f's_cmp_lg_u32 {sW}, 0')
        I('s_cbranch_scc1 L_end')
        I(f'v_mov_b32 v{TMP+2}, s{TAG}')
        I(f'v_mov_b32 v{TMP+3}, s{TAG+1}')
        I(f'v_mov_b32 {vFL}, 0')
        I('s_mov_b64 exec, 1')
        I(f'buffer_store_dwordx2 {vr(TMP + 2, 2)}, {vFL}, {WS}, 0 offen')
        p.label('L_end')
        I('s_endpgm')
        p.label('L_timeout')
        I(f'v_mov_b32 v{TMP}, {sCNT}')
        I(f'v_mov_b32 v{TMP+1}, 0')
        I('s_mov_b64 exec, 1')
        I(f'global_store_dword v{TMP+1}, v{TMP}, {sDBG}')
        I('s_endpgm')
        p.label('L_codeend')
        return self.wrap(p.text())

    def wrap(self, body):
        ref = open(os.path.join(os.path.dirname(os.path.abspath(__file__)), '..', 'cdna_kernels', NAME + '.s.ref')).read()
        hdr = []
        for line in ref.splitlines():
            if line.startswith('; @launch'):
                break
            hdr.append(line)
        out = '\n'.join(hdr) + '\n'
        out += f'; @launch grid=(256,1,1) block=(256,1,1) lds={LDS_BYTES}\n'
        out += '.amdgcn_target "amdgcn-amd-amdhsa--gfx950"\n.text\n'
        out += f'.globl {NAME}_kernel\n.p2align 8\n.type {NAME}_kernel,@function\n{NAME}_kernel:\n'
        out += body
        out += f'''.section .rodata,"a"
.p2align 6
.amdhsa_kernel {NAME}_kernel
  .amdhsa_next_free_vgpr 512
  .amdhsa_next_free_sgpr 96
  .amdhsa_accum_offset 256
  .amdhsa_group_segment_fixed_size 0
  .amdhsa_kernarg_size 88
  .amdhsa_user_sgpr_count 2
  .amdhsa_user_sgpr_kernarg_segment_ptr 1
  .amdhsa_system_sgpr_workgroup_id_x 1
.end_amdhsa_kernel
'''
        return out


if __name__ == '__main__':
    import argparse
    ap = argparse.ArgumentParser()
    ap.add_argument('-o', default=None)
    ap.add_argument('--stop', default=None)
    ap.add_argument('--prof', action='store_true')
    ap.add_argument('--fast', action='store_true')
    a = ap.parse_args()
    g = Gen(stop=a.stop, prof=a.prof, fast=a.fast)
    txt = g.build()
    path = a.o or os.path.join(os.path.dirname(os.path.abspath(__file__)), '..', 'cdna_kernels', NAME + '.s')
    open(path, 'w').write(txt)
    if a.prof:
        open(path + '.stamps', 'w').write('\n'.join(g.stamps))
    print('wrote', path, 'lines', txt.count('\n'), 'late fill', g.late)
```

```python
import re

REG_RE = re.compile(r'^(-|\|)?(abs\()?([vas])(\d+|\[(\d+):(\d+)\])\)?\|?$')
TRANS = ('v_exp_f32', 'v_log_f32', 'v_rcp_f32', 'v_rsq_f32', 'v_sqrt_f32', 'v_sin_f32', 'v_cos_f32')


def parse_reg(tok):
    tok = tok.strip()
    if tok in ('vcc', 'exec', 'm0', 'scc'):
        return [tok]
    if tok in ('vcc_lo', 'vcc_hi'):
        return ['vcc']
    if tok in ('exec_lo', 'exec_hi'):
        return ['exec']
    m = REG_RE.match(tok)
    if not m:
        return []
    kind = m.group(3)
    if m.group(5) is not None:
        lo, hi = int(m.group(5)), int(m.group(6))
    else:
        lo = hi = int(m.group(4))
    return [f'{kind}{i}' for i in range(lo, hi + 1)]


class Ins:
    __slots__ = ('text', 'op', 'kind', 'rd', 'wr', 'srcc', 'srcab', 'data', 'cost', 'tok')

    def __init__(self, text):
        self.text = text
        body = text.split(';')[0].strip()
        parts = body.split(None, 1)
        op = parts[0]
        self.op = op
        rest = parts[1] if len(parts) > 1 else ''
        ops, depth, cur = [], 0, ''
        for ch in rest:
            if ch in '[(':
                depth += 1
            if ch in '])':
                depth -= 1
            if ch == ',' and depth == 0:
                ops.append(cur.strip())
                cur = ''
            else:
                cur += ch
        if cur.strip():
            ops.append(cur.strip())
        mods = []
        if ops:
            last = ops[-1].split()
            ops[-1] = last[0]
            mods = last[1:]
        regs = [parse_reg(o) for o in ops]
        rd, wr = [], []
        self.srcc, self.srcab, self.data = [], [], []
        self.tok = None
        flat = lambda ls: [r for l in ls for r in l]
        if op.startswith('v_mfma'):
            self.kind = 'mfma'
            wr = regs[0]
            self.srcab = regs[1] + regs[2]
            self.srcc = regs[3]
            rd = self.srcab + self.srcc
        elif op.startswith('buffer_load') or op.startswith('global_load'):
            if 'lds' in mods or op.startswith('global_load_lds'):
                self.kind = 'dma'
                rd = flat(regs) + ['m0']
            else:
                self.kind = 'vload'
                wr = regs[0]
                rd = flat(regs[1:])
        elif op.startswith('buffer_store'):
            self.kind = 'vstore'
            rd = flat(regs)
            self.data = regs[0]
        elif op.startswith('global_store'):
            self.kind = 'vstore'
            rd = flat(regs)
            self.data = regs[1]
        elif op.startswith('buffer_atomic') or op.startswith('global_atomic'):
            self.kind = 'vload' if 'sc0' in mods else 'vstore'
            rd = flat(regs)
            if 'sc0' in mods:
                wr = regs[0]
        elif op.startswith('buffer_') :
            self.kind = 'vstore'
        elif op.startswith('ds_read') or op.startswith('ds_bpermute') or op.startswith('ds_swizzle'):
            self.kind = 'dsload'
            wr = regs[0]
            rd = flat(regs[1:])
        elif op.startswith('ds_'):
            self.kind = 'dsstore'
            rd = flat(regs)
        elif op.startswith('s_load') or op.startswith('s_memtime') or op.startswith('s_memrealtime') or op.startswith('s_buffer_load'):
            self.kind = 'smem'
            wr = regs[0]
            rd = flat(regs[1:])
        elif op.startswith('s_'):
            self.kind = 'salu'
            if op.startswith('s_cmp') or op.startswith('s_bitcmp'):
                rd = flat(regs)
            elif op in ('s_waitcnt', 's_nop', 's_barrier', 's_endpgm', 's_sleep', 's_setprio') or op.startswith('s_cbranch') or op == 's_branch':
                pass
            else:
                wr = regs[0] if regs else []
                rd = flat(regs[1:])
                if 'saveexec' in op:
                    wr = wr + ['exec']
        elif op.startswith('v_'):
            self.kind = 'valu'
            if (op.startswith('v_permlane') and 'swap' in op) or op.startswith('v_swap'):
                wr = regs[0] + regs[1]
                rd = regs[0] + regs[1]
            elif op.startswith('v_cmpx'):
                wr = regs[0] + ['exec']
                rd = flat(regs[1:])
            elif op.startswith(('v_add_co', 'v_sub_co', 'v_addc_co', 'v_subb_co', 'v_mad_u64')):
                wr = regs[0] + regs[1]
                rd = flat(regs[2:])
            else:
                wr = regs[0]
                rd = flat(regs[1:])
                if op.startswith(('v_fmac', 'v_dot2c', 'v_writelane')):
                    rd = rd + regs[0]
                if 'dpp' in op or any(m.startswith(('row_', 'quad_perm', 'wave_')) for m in mods):
                    rd = rd + regs[0]
        else:
            raise ValueError('unknown instruction: ' + text)
        self.rd, self.wr = rd, wr
        base = op.replace('_e32', '').replace('_e64', '')
        if self.kind == 'mfma':
            self.cost = 8
        elif base in TRANS or op.startswith('v_permlane'):
            self.cost = 8
        else:
            self.cost = 4

    @property
    def is_trans(self):
        return self.op.replace('_e32', '').replace('_e64', '') in TRANS

    @property
    def is_dpp(self):
        return 'dpp' in self.op or ' row_' in self.text or 'quad_perm' in self.text

    @property
    def passes(self):
        return 8 if '32x32' in self.op else 4


class Tok:
    def __init__(self, cnt, seq, certain):
        self.cnt, self.seq, self.certain = cnt, seq, certain
        self.done = False


class Prog:
    def __init__(self):
        self.lines = []
        self.hist = []
        self.vm = []
        self.lg = []
        self.sm = []
        self.pend = {}
        self.div = 0
        self.nins = 0
        self.uid = 0
        self.nops = 0
        self.alts = []
        self.cyc = 0

    def raw(self, text):
        self.lines.append(text)

    def comment(self, text):
        self.lines.append('    ; ' + text)

    def label(self, name):
        self.lines.append(name + ':')

    def newlabel(self, base='L'):
        self.uid += 1
        return f'{base}_{self.uid}'

    def _need(self, ins):
        n = self._need1(ins, self.hist)
        for a in self.alts:
            n = max(n, self._need1(ins, a[0]))
        return n

    def _need1(self, ins, hist):
        need = 0
        dist = 0
        rd, wr = set(ins.rd), set(ins.wr)
        isv = ins.kind == 'valu'
        for prev, st in reversed(hist):
            if dist >= 20:
                break
            req = 0
            pw = set(prev.wr)
            if prev.kind == 'mfma':
                n = 12 if prev.passes == 8 else 8
                if ins.kind == 'mfma':
                    if pw & set(ins.srcab):
                        req = max(req, n)
                    if pw & set(ins.srcc):
                        if not (prev.wr == ins.srcc and prev.passes == ins.passes):
                            req = max(req, n - 2)
                    elif pw & wr:
                        req = max(req, n)
                else:
                    if pw & (rd | wr):
                        req = max(req, n)
                    if (isv or ins.kind in ('vload', 'dsload')) and set(prev.srcc) & wr:
                        req = max(req, 7 if prev.passes == 8 else 3)
            elif prev.kind == 'valu':
                pv = {r for r in pw if r[0] in 'va' and r not in ('vcc',)}
                ps = {r for r in pw if r[0] == 's' or r == 'vcc'}
                if ins.kind == 'mfma':
                    if pv & rd:
                        req = max(req, 2)
                    if 'exec' in pw:
                        req = max(req, 4)
                if isv:
                    if ins.op.startswith('v_permlane') and pv & rd:
                        req = max(req, 2)
                    if ins.is_dpp and pv & rd:
                        req = max(req, 2)
                    if ins.op.startswith(('v_readfirstlane', 'v_readlane')) and pv & rd:
                        req = max(req, 1)
                    if prev.is_trans and pv & rd and not ins.is_trans:
                        req = max(req, 1)
                    if prev.is_trans and pv & rd and ins.is_trans:
                        req = max(req, 1)
                    if ps & rd:
                        req = max(req, 4 if ins.op.startswith(('v_readlane', 'v_writelane')) else 2)
                    if ins.op.startswith('v_cndmask') and 'vcc' in ps and 'vcc' in ins.text:
                        req = max(req, 2)
                    if 'exec' in pw and (ins.is_dpp):
                        req = max(req, 5)
                    if 'exec' in pw and ins.op.startswith(('v_readlane', 'v_readfirstlane', 'v_writelane', 'v_permlane')):
                        req = max(req, 4)
                    if ('sdwa' in prev.op or 'op_sel' in prev.text) and not prev.op.startswith('v_pk_') and pv & (rd | wr):
                        req = max(req, 1)
                if prev.op.startswith('v_dot2'):
                    same = ins.op == prev.op
                    if pv & (rd | wr):
                        if same and ins.wr == prev.wr and not (pv & set(parse_srcab(ins))):
                            pass
                        else:
                            req = max(req, 3)
                if ins.kind in ('vload', 'vstore', 'dma') and ps & rd:
                    req = max(req, 5)
                if prev.is_trans and ins.kind in ('vstore', 'dsstore', 'vload', 'dsload', 'dma', 'mfma') and pv & rd:
                    req = max(req, 2)
            elif prev.kind == 'vstore':
                if len(prev.data) >= 3 and set(prev.data) & wr:
                    req = max(req, 2)
            elif prev.kind == 'dsstore':
                pass
            elif prev.kind == 'salu':
                if 'm0' in pw and ins.kind == 'dma':
                    req = max(req, 1)
                if 'exec' in pw and ins.kind == 'mfma':
                    req = max(req, 0)
            need = max(need, req - dist)
            dist += st
        return need

    def _push(self, ins, states=1):
        self.lines.append('    ' + ins.text)
        self.hist.append((ins, states))
        if len(self.hist) > 40:
            self.hist = self.hist[-30:]
        for a in self.alts:
            a[0].append((ins, states))
            a[1] += states
        self.alts = [a for a in self.alts if a[1] < 24]
        self.nins += 1
        self.cyc += ins.cost if states == 1 else 4 * states

    def nop(self, n):
        while n > 0:
            k = min(n, 16)
            self._push(Ins(f's_nop {k-1}'), k)
            self.nops += 1
            n -= k

    def _count_after(self, lst, tok):
        i = lst.index(tok)
        return sum(1 for t in lst[i + 1:] if t.certain or t.certain is None and False)

    def _retire(self, lst, tok):
        i = lst.index(tok)
        for t in lst[:i + 1]:
            t.done = True
        del lst[:i + 1]

    def wait(self, *toks):
        vmn, lgn = None, None
        for tok in toks:
            if tok is None or tok.done:
                continue
            if tok.cnt == 'vm':
                n = self._younger(self.vm, tok)
                vmn = n if vmn is None else min(vmn, n)
            elif tok.cnt == 'lg':
                n = 0 if self.sm else self._younger(self.lg, tok)
                lgn = n if lgn is None else min(lgn, n)
            else:
                lgn = 0
        if vmn is None and lgn is None:
            return
        s = 's_waitcnt'
        if vmn is not None:
            s += f' vmcnt({min(vmn, 63)})'
        if lgn is not None:
            s += f' lgkmcnt({min(lgn, 15)})'
        self._push(Ins(s))
        for tok in toks:
            if tok is None or tok.done:
                continue
            if tok.cnt == 'vm':
                self._retire_div(self.vm, tok)
            elif tok.cnt == 'lg':
                self._retire_div(self.lg, tok)
        if lgn == 0:
            self._retire_all_lg()
        self._clean()

    def _younger(self, lst, tok):
        i = lst.index(tok)
        return sum(1 for t in lst[i + 1:] if t.certain == 0 or (self.div and t.certain == self.div))

    def _retire_div(self, lst, tok):
        i = lst.index(tok)
        keep = []
        for t in lst[:i + 1]:
            if self.div and t.certain != self.div:
                self.divdone.append(t)
                t.done = True
                keep.append(t)
            else:
                t.done = True
        lst[:i + 1] = keep

    def _retire_all_lg(self):
        if self.lg:
            self._retire_div(self.lg, self.lg[-1])
        if self.sm:
            self._retire_div(self.sm, self.sm[-1])

    def _clean(self):
        if not self.div:
            self.pend = {r: t for r, t in self.pend.items() if not t.done}

    def wait_vm_all(self):
        live = [t for t in self.vm if not t.done]
        self._push(Ins('s_waitcnt vmcnt(0)'))
        if self.vm:
            self._retire_div(self.vm, self.vm[-1])
        self._clean()

    def wait_lg_all(self):
        self._push(Ins('s_waitcnt lgkmcnt(0)'))
        self._retire_all_lg()
        self._clean()

    def begin_div(self):
        assert not self.div
        self.uid += 1
        self.div = self.uid
        self.divdone = []
        self.divhist = list(self.hist)

    def end_div(self):
        for t in self.divdone:
            t.done = False
        self.div = 0
        self.divdone = []
        self.alts.append([self.divhist, 0])
        self._clean()

    def pending(self, text):
        ins = Ins(text)
        return [t for t in (self.pend.get(r) for r in ins.rd + ins.wr) if t is not None and not t.done]

    def I(self, text, also=()):
        ins = text if isinstance(text, Ins) else Ins(text)
        toks = [t for t in also if t is not None and not t.done]
        for r in ins.rd + ins.wr:
            t = self.pend.get(r)
            if t is not None and not t.done:
                toks.append(t)
        if toks:
            self.wait(*toks)
        n = self._need(ins)
        if n > 0:
            self.nop(n)
        self._push(ins)
        tok = None
        if ins.kind in ('vload', 'vstore', 'dma'):
            tok = Tok('vm', 0, self.div)
            self.vm.append(tok)
            live = sum(1 for t in self.vm if not t.done)
            assert live <= 63, 'too many outstanding VMEM ops: %d' % live
        elif ins.kind in ('dsload', 'dsstore'):
            tok = Tok('lg', 0, self.div)
            self.lg.append(tok)
        elif ins.kind == 'smem':
            tok = Tok('sm', 0, self.div)
            self.sm.append(tok)
        if ins.kind in ('vload', 'dsload', 'smem'):
            for r in ins.wr:
                self.pend[r] = tok
        ins.tok = tok
        return tok

    def text(self):
        return '\n'.join(self.lines) + '\n'


def parse_srcab(ins):
    return [r for r in ins.rd if r not in ins.wr]
```

```python
import sys, os, math, struct, copy
sys.path.insert(0, os.path.dirname(os.path.abspath(__file__)))
from asmlib import Prog, Ins
from layout import *

NAME = 'interleave_layers__linear_kernel_hedgehog__geglu_ffn__prompt'


def f2u(x):
    return struct.unpack('<I', struct.pack('<f', x))[0]


def hx(x):
    return '0x%x' % x


def vr(a, n=1, k='v'):
    return f'{k}{a}' if n == 1 else f'{k}[{a}:{a+n-1}]'


WS, WSP, WSS, WSN, OUT, INS = 's[4:7]', 's[8:11]', 's[12:15]', 's[16:19]', 's[20:23]', 's[24:27]'
TAG = 28
sG, sJ, sW, sL = 's30', 's31', 's32', 's33'
sRB = [34, 35, 36, 37]
sW13 = 's38'
sT0, sT1, sT2, sT3 = 's39', 's62', 's63', 's64'
sTB = 's65'
sTBP = 's66'
sC = 's67'
sLX = 's68'
sLS = 's69'
sLO = 's70'
sLH = 's71'
sFI = 's72'
sFG = 's73'
sCNT = 's74'
sXCC = 's75'
sEX = 's[76:77]'
sM = 's[78:79]'
sONE = 's80'
sQ4 = 's81'
sDBG = 's[58:59]'
vL16, vL4 = 'v0', 'v1'
vRB = [2, 3, 4, 5]
vTW, vTA, vTB_, vKV = 'v6', 'v7', 'v8', 'v9'
vRW = [10, 11, 12]
vRR = 'v13'
vL16P = 'v14'
vOUT = 'v15'
PHI = 16
PQ = 24
MF = 40
vC1, vC3, vS2, vRS = 'v44', 'v45', 'v46', 'v47'
TMP = 48
vFL = 'v62'
vP = 63
ACC = 64
X = 128
STG = 224


def A(i):
    return ACC + 16 * i


class Gen:
    def __init__(self, stop=None, prof=False, fast=False, mapping=1, inplace=False, nt=False, touch=False):
        self.mapping = mapping
        self.inplace = inplace
        self.nt = ' nt' if nt else ''
        self.touch = touch
        if inplace:
            global XF_SZ, ST_SZ, OF_SZ, HF_SZ
            XF_SZ = ST_SZ = OF_SZ = HF_SZ = 0
        self.p = Prog()
        self.stop = stop
        self.prof = prof
        self.fast = fast
        self.nstamp = 0
        self.dma = {}
        self.stg = 0
        self.late = 0
        self.LA = 10

    def I(self, t, also=()):
        return self.p.I(t, also)

    def stamp(self, name):
        if not self.prof:
            return
        p = self.p
        self.stamps.append(name)
        p.I(f's_memtime {sM}')
        p.wait_lg_all()
        p.I(f'v_writelane_b32 v{vP}, s78, {self.nstamp}')
        self.nstamp += 1

    def srd(self, base, lo, hi, nrec):
        I = self.I
        I(f's_mov_b32 s{base}, s{lo}')
        I(f's_and_b32 s{base+1}, s{hi}, 0xffff')
        I(f's_mov_b32 s{base+2}, {hx(nrec)}')
        I(f's_mov_b32 s{base+3}, 0x20000')

    def st_group(self, data, n, voff, soff, imm=0):
        op = {1: 'buffer_store_dword', 2: 'buffer_store_dwordx2', 4: 'buffer_store_dwordx4'}[n]
        o = f' offset:{imm}' if imm else ''
        toks = []
        if self.fast:
            toks.append(self.I(f'{op} {vr(data, n)}, {voff}, {WSP}, {soff} offen{o}'))
            toks.append(self.I(f'{op} {vr(data, n)}, {voff}, {WSS}, {soff} offen{o} sc1'))
        else:
            toks.append(self.I(f'{op} {vr(data, n)}, {voff}, {WS}, {soff} offen{o} sc1'))
        return toks

    def poll(self, loads, mask_low=False, code=1, sleep=1):
        p, I = self.p, self.I
        lp, done = p.newlabel('poll'), p.newlabel('polled')
        I(f's_mov_b32 {sCNT}, 0')
        p.label(lp)
        for i, (vo, so, imm) in enumerate(loads):
            o = f' offset:{imm}' if imm else ''
            I(f'buffer_load_dwordx2 {vr(TMP+2*i, 2)}, {vo}, {WS}, {so} offen{o} sc1')
        p.wait_vm_all()
        for i in range(len(loads)):
            if mask_low:
                I(f'v_and_b32 v{TMP+10}, -16, v{TMP+2*i}')
                I(f'v_mov_b32 v{TMP+11}, v{TMP+2*i+1}')
                src = vr(TMP + 10, 2)
            else:
                src = vr(TMP + 2 * i, 2)
            I(f'v_cmp_ne_u64 vcc, s[{TAG}:{TAG+1}], {src}')
            if i == 0:
                I(f's_mov_b64 {sM}, vcc')
            else:
                I(f's_or_b64 {sM}, {sM}, vcc')
        I(f's_cmp_eq_u64 {sM}, 0')
        I(f's_cbranch_scc1 {done}')
        if sleep:
            I(f's_sleep {sleep}')
        I(f's_add_u32 {sCNT}, {sCNT}, 1')
        I(f's_cmp_lt_u32 {sCNT}, 0x20000')
        I(f's_cbranch_scc1 {lp}')
        I(f's_mov_b32 {sCNT}, {code}')
        I('s_branch L_timeout')
        p.label(done)

    def hop(self, kind, toks, extra_wait=(), inside=None):
        p, I = self.p, self.I
        if inside:
            p.nop(2)
            inside()
        p.wait(*toks)
        I('s_barrier')
        skip = p.newlabel('hop')
        I(f's_cmp_lg_u32 {sW}, 0')
        I(f's_cbranch_scc1 {skip}')
        p.begin_div()
        I(f'v_mov_b32 v{TMP}, s{TAG}')
        I(f'v_mov_b32 v{TMP+1}, s{TAG+1}')
        I(f's_lshl_b32 {sT0}, {sJ}, 3')
        I(f'v_mov_b32 {vFL}, {sT0}')
        I(f's_add_u32 {sT1}, {sFI}, {kind * 2048}')
        I(f's_mov_b64 exec, 1')
        self.st_group(TMP, 2, vFL, sT1)
        I(f's_mov_b64 exec, -1')
        I(f'v_lshrrev_b32 {vFL}, 1, {vL16}')
        I(f'v_and_b32 {vFL}, 0x78, {vFL}')
        self.poll([(vFL, sT1, 0)], code=16 + kind, sleep=0)
        p.end_div()
        p.label(skip)
        p.wait(*extra_wait)
        I('s_barrier')

    def dma_block(self, name, slot, tile, srd=WS):
        toks = []
        self.dma[name] = toks
        I = self.I
        steps = []

        def grp(k):
            def f():
                I(f's_add_u32 m0, s{sRB[slot]}, {k * 4096}')
                I(f's_add_u32 {sT3}, {sW13}, {tile * BLK + k * 4096}')
                toks.append(I(f'buffer_load_dwordx4 {vL16}, {srd}, {sT3} offen{self.nt} lds'))
            return f

        def one(i):
            def f():
                toks.append(I(f'buffer_load_dwordx4 {vL16}, {srd}, {sT3} offen offset:{i * 1024}{self.nt} lds'))
            return f

        def cs():
            I(f's_add_u32 m0, s{sRB[slot]}, {sQ4}')
            I(f's_add_u32 {sT3}, {sW13}, {sQ4}')
            I(f's_add_u32 {sT3}, {sT3}, {tile * BLK}')
            toks.append(I(f'buffer_load_dword {vL4}, {srd}, {sT3} offen{self.nt} lds'))
        for k in range(2):
            steps += [grp(k), one(1), one(2), one(3)]
        steps.append(cs)
        return steps

    def wread(self, slot, idx):
        r = vr(STG + 4 * (self.stg % 8), 4, 'a')
        self.stg += 1
        tok = self.I(f'ds_read_b128 {r}, v{vRB[slot]} offset:{idx * 1024}')
        return r, tok

    def mstream(self, steps, events=None, fill=None, depth=6, cuts=(), bg=None, bg_gap=2):
        p, I = self.p, self.I
        events = events or {}
        fill = list(fill or [])
        cuts = dict(cuts)
        bg = bg if bg is not None else []
        n = len(steps)
        regs = [None] * n
        toks = [None] * n
        nread = 0
        lastread_gap = -10
        last_bg = -100

        def issue_read(g):
            nonlocal nread, lastread_gap
            if nread >= n:
                return False
            if nread in cuts:
                if g - lastread_gap < 2 and nread - g > 2:
                    return False
                p.wait(toks[nread - 1])
                cuts.pop(nread)()
            _, slot, idx, _, _ = steps[nread]
            if slot is None:
                regs[nread] = idx
            else:
                regs[nread], toks[nread] = self.wread(slot, idx)
            nread += 1
            lastread_gap = g
            return True

        def mtext(g):
            acc, slot, idx, breg, first = steps[g]
            c = '0' if first else vr(acc, 16)
            return f'v_mfma_f32_32x32x16_bf16 {vr(acc, 16)}, {regs[g]}, {breg}, {c}'
        while nread < min(depth, n) and issue_read(-1 if nread not in cuts else 10**6):
            pass
        for g in range(n):
            while nread <= g:
                issue_read(10**6)
            due = [i for i, f in enumerate(fill) if len(f) > 2 and f[2] <= g]
            if due:
                self.late += due[-1] + 1
                self.run(fill[:due[-1] + 1])
                del fill[:due[-1] + 1]
            also = []
            if toks[g] is not None and not toks[g].done:
                k = min(g + 2, nread - 4)
                if k > g:
                    also = [toks[k]]
            I(mtext(g), also)
            start = p.cyc
            k = 0
            while nread < min(n, g + 1 + depth) and k < 2:
                if not issue_read(g):
                    break
                k += 1
            for f in events.get(g, []):
                f()
            if bg and g - last_bg >= bg_gap:
                bg.pop(0)()
                last_bg = g
            budget = 24
            if g + 1 < n and regs[g + 1] is not None and p.pending(mtext(g + 1)):
                budget -= 4
            while fill and fill[0][0] <= g:
                it = fill[0][1]
                cost = Ins(it).cost if isinstance(it, str) else (8 if self.fast else 4)
                if p.cyc - start + cost > budget:
                    break
                fill.pop(0)
                if isinstance(it, str):
                    I(it)
                else:
                    it()
        return fill

    def run(self, items):
        for it in items:
            if isinstance(it, tuple):
                it = it[1]
            if isinstance(it, str):
                self.I(it)
            else:
                it()

    def prologue(self):
        p, I = self.p, self.I
        I('s_cmp_ge_u32 s2, 256')
        I('s_cbranch_scc1 L_end')
        I('s_load_dwordx16 s[40:55], s[0:1], 0x0')
        I('s_load_dwordx4 s[56:59], s[0:1], 0x40')
        I('s_load_dwordx2 s[60:61], s[0:1], 0x50')
        I('v_lshrrev_b32 v2, 6, v0')
        I(f'v_readfirstlane_b32 {sW}, v2')
        I('v_and_b32 v63, 63, v0')
        I(f'v_lshlrev_b32 {vL16}, 4, v63')
        I(f'v_lshlrev_b32 {vL4}, 2, v63')
        I(f's_getreg_b32 {sXCC}, hwreg(HW_REG_XCC_ID, 0, 4)')
        I(f's_and_b32 {sT0}, s2, 7')
        I(f's_lshr_b32 {sT1}, s2, 3')
        if self.mapping == 1:
            I(f's_and_b32 {sJ}, {sT1}, 15')
            I(f's_lshr_b32 {sT1}, {sT1}, 4')
            I(f's_lshl_b32 {sG}, {sT0}, 1')
            I(f's_add_u32 {sG}, {sG}, {sT1}')
        else:
            I(f's_and_b32 {sJ}, {sT0}, 1')
            I(f's_lshl_b32 {sJ}, {sJ}, 3')
            I(f's_and_b32 {sT2}, {sT1}, 7')
            I(f's_add_u32 {sJ}, {sJ}, {sT2}')
            I(f's_lshr_b32 {sG}, {sT0}, 1')
            I(f's_lshl_b32 {sG}, {sG}, 2')
            I(f's_lshr_b32 {sT1}, {sT1}, 3')
            I(f's_add_u32 {sG}, {sG}, {sT1}')
        I(f's_mov_b32 {sONE}, 0x3f803f80')
        p.wait_lg_all()
        I(f's_load_dwordx2 s[{TAG}:{TAG+1}], s[60:61], 0x0')
        self.srd(4, 60, 61, WS_BYTES)
        self.srd(8, 60, 61, 0)
        self.srd(12, 60, 61, WS_BYTES)
        self.srd(16, 60, 61, WS_BYTES)
        self.srd(20, 56, 57, S * D * 2)
        self.srd(24, 40, 41, S * D * 2)
        I('v_and_b32 v48, 31, v63')
        I('v_lshrrev_b32 v49, 5, v63')
        I('v_and_b32 v50, 15, v63')
        I('v_bfe_u32 v51, v63, 4, 1')
        self.p0()

    def wtask(self, ldsbase, srdptrs, nbytes, rp, soff_src, ntile, dst, with_cs, e_reg):
        p, I = self.p, self.I
        pair = len(srdptrs) == 2
        I('v_lshrrev_b32 v52, 3, v63')
        I(f's_mov_b32 {sT0}, {rp}')
        I(f'v_mul_lo_u32 v52, v52, {sT0}')
        I('v_and_b32 v53, 7, v63')
        I('v_lshl_add_u32 v52, v53, 4, v52')
        toks = []
        for m, ptr in enumerate(srdptrs):
            self.srd(24, ptr, ptr + 1, nbytes)
            for pc in range(8):
                I(f's_mov_b32 m0, {ldsbase + m * 8192 + pc * 1024}')
                I(f's_add_u32 {sT0}, {soff_src}, {pc * 8 * rp}')
                toks.append(I(f'buffer_load_dwordx4 v52, {INS}, {sT0} offen lds'))
        I('v_lshrrev_b32 v53, 2, v50')
        I('v_lshl_add_u32 v53, v49, 2, v53')
        I('v_lshlrev_b32 v53, 7, v53')
        I('v_and_b32 v54, 3, v50')
        I('v_lshl_add_u32 v53, v54, 3, v53')
        I(f'v_lshl_add_u32 v53, v51, {13 if pair else 5}, v53')
        I(f'v_add_u32 v53, {ldsbase}, v53')
        I('v_lshlrev_b32 v54, 4, v48')
        p.wait(*toks)
        st = []
        for ct in range(ntile):
            base = X + 16 * ct
            for ks in range(4):
                for rd in range(2):
                    off = ks * 2048 + rd * 1024 + ct * (32 if pair else 64)
                    I(f'ds_read_b64_tr_b16 {vr(base + 4 * ks + 2 * rd, 2)}, v53 offset:{off}')
        for ct in range(ntile):
            base = X + 16 * ct
            dst(ct)
            for ks in range(4):
                o = f' offset:{ks * 1024}' if ks else ''
                st.append(I(f'buffer_store_dwordx4 {vr(base + 4 * ks, 4)}, {vL16}, {WS}, {sT2} offen{o} sc1'))
            if with_cs:
                I('v_mov_b32 v56, 0')
                for r in range(16):
                    I(f'v_dot2c_f32_bf16 v56, {sONE}, v{base + r}')
                I('v_mov_b32 v57, v56')
                I('v_permlane32_swap_b32 v56, v57')
                I('v_add_f32 v56, v56, v57')
                I('v_cvt_pk_bf16_f32 v57, v56, v56')
                I('v_lshlrev_b32 v57, 16, v57')
                I('v_sub_f32 v57, v56, v57')
                I(f'v_cvt_pk_bf16_f32 v{58 + ct}, v56, v57')
                st.append(I(f'buffer_store_dword v{58 + ct}, v54, {WS}, {sT1} offen sc1'))
        return st

    def p0(self):
        p, I = self.p, self.I
        l_w2, l_w3, l_done, l_wo, l_dn = (p.newlabel(x) for x in ('p0w2', 'p0w3', 'p0done', 'p0wo', 'p0dn'))
        p.begin_div()
        I(f's_cmp_eq_u32 {sW}, 2')
        I(f's_cbranch_scc1 {l_w2}')
        I(f's_cmp_eq_u32 {sW}, 3')
        I(f's_cbranch_scc1 {l_w3}')
        I('s_lshr_b32 s82, s2, 2')
        I('s_and_b32 s83, s2, 3')
        I('s_lshl_b32 s83, s83, 1')
        I(f's_add_u32 s83, s83, {sW}')
        I('v_lshlrev_b32 v52, 10, v48')
        I('v_lshl_add_u32 v52, v49, 4, v52')
        I(f's_lshl_b32 {sT0}, s82, 15')
        I(f's_lshl_b32 {sT1}, s83, 7')
        I(f's_add_u32 {sT1}, {sT1}, {sT0}')
        for u in range(4):
            o = f' offset:{u * 32}' if u else ''
            I(f'buffer_load_dwordx4 {vr(X + 4 * u, 4)}, v52, {INS}, {sT1} offen{o}')
        I(f's_lshl_b32 {sT1}, s83, 12')
        I(f's_add_u32 {sT1}, {sT1}, {sT0}')
        I(f's_add_u32 {sT1}, {sT1}, {hx(XF)}')
        I('v_mov_b32 v56, 0')
        I('v_mov_b32 v57, 0')
        for u in range(4):
            b = X + 4 * u
            I(f'v_permlane32_swap_b32 v{b}, v{b+2}')
            I(f'v_permlane32_swap_b32 v{b+1}, v{b+3}')
            o = f' offset:{u * 1024}' if u else ''
            I(f'buffer_store_dwordx4 {vr(b, 4)}, {vL16}, {WS}, {sT1} offen{o} sc1')
        for r in range(16):
            I(f'v_dot2c_f32_bf16 v56, {sONE}, v{X + r}')
            I(f'v_dot2c_f32_bf16 v57, v{X + r}, v{X + r}')
        I('v_permlane32_swap_b32 v56, v57')
        I('v_add_f32 v56, v56, v57')
        I('v_mov_b32 v57, 0')
        I('v_mov_b32 v58, 0')
        I('v_mov_b32 v59, 0')
        I(f's_lshl_b32 {sT0}, s82, 13')
        I(f's_lshl_b32 {sT1}, s83, 10')
        I(f's_add_u32 {sT1}, {sT1}, {sT0}')
        I(f's_add_u32 {sT1}, {sT1}, {hx(ST)}')
        I(f'buffer_store_dwordx4 v[56:59], {vL16}, {WS}, {sT1} offen sc1')
        p.nop(2)
        I(f's_cmp_eq_u32 {sW}, 1')
        I(f's_cbranch_scc1 {l_dn}')
        I('s_cmp_ge_u32 s2, 64')
        I(f's_cbranch_scc1 {l_done}')
        I('s_and_b32 s82, s2, 7')
        I('s_lshr_b32 s83, s2, 3')
        I('s_lshl_b32 s84, s83, 16')
        I(f's_lshl_b32 {sT0}, s82, 7')
        I(f's_add_u32 s84, s84, {sT0}')

        def dst_wo(ct):
            I(f's_lshl_b32 {sT2}, s82, 16')
            I(f's_lshl_b32 {sT0}, s83, 12')
            I(f's_add_u32 {sT2}, {sT2}, {sT0}')
            I(f's_add_u32 {sT2}, {sT2}, {hx(W2 + ct * 32768)}')
        self.wtask(0, [46], D * D * 2, 1024, 's84', 2, dst_wo, False, None)
        I(f's_branch {l_done}')
        p.label(l_dn)
        I('s_cmp_ge_u32 s2, 224')
        I(f's_cbranch_scc1 {l_done}')
        I('s_and_b32 s82, s2, 7')
        I('s_lshr_b32 s83, s2, 3')
        I('s_lshl_b32 s84, s83, 16')
        I(f's_lshl_b32 {sT0}, s82, 7')
        I(f's_add_u32 s84, s84, {sT0}')

        def dst_dn(ct):
            I(f's_mul_i32 {sT2}, s82, {2 * 112 * 1024}')
            I(f's_lshl_b32 {sT0}, s83, 12')
            I(f's_add_u32 {sT2}, {sT2}, {sT0}')
            I(f's_add_u32 {sT2}, {sT2}, {hx(W4 + ct * 112 * 1024)}')
        self.wtask(8192, [54], F * D * 2, 1024, 's84', 2, dst_dn, False, None)
        I(f's_branch {l_done}')
        p.label(l_w2)
        I('s_cmp_ge_u32 s2, 192')
        I(f's_cbranch_scc1 {l_done}')
        I('s_and_b32 s83, s2, 7')
        I('s_lshr_b32 s82, s2, 3')
        I(f's_mul_i32 s84, s83, {64 * 3072}')
        I(f's_lshl_b32 {sT0}, s82, 7')
        I(f's_add_u32 s84, s84, {sT0}')
        I('s_lshr_b32 s85, s82, 3')
        I('s_add_u32 s85, s85, 2')
        I('s_cmp_ge_u32 s85, 3')
        I(f's_cselect_b32 {sT0}, 3, 0')
        I(f's_sub_u32 s85, s85, {sT0}')
        I(f's_and_b32 {sT0}, s82, 7')
        I(f's_mul_i32 {sT0}, {sT0}, 20')
        I(f's_add_u32 s85, s85, {sT0}')
        self.cs_off()

        def dst_qkv(ct):
            I(f's_add_u32 {sT0}, s85, {10 * ct}')
            I(f's_mul_i32 {sT0}, {sT0}, {BLK}')
            I(f's_add_u32 {sT0}, {sT0}, {hx(W13)}')
            I(f's_lshl_b32 {sT2}, s83, 12')
            I(f's_add_u32 {sT2}, {sT2}, {sT0}')
            I(f's_add_u32 {sT1}, {sT0}, s86')
        self.wtask(16384, [42], D * 3 * D * 2, 3072, 's84', 2, dst_qkv, True, 's83')
        I(f's_branch {l_done}')
        p.label(l_w3)
        I('s_getpc_b64 s[82:83]')
        p.label('L_pc')
        I('s_sub_u32 s82, s82, L_pc-' + NAME + '_kernel')
        I('s_subb_u32 s83, s83, 0')
        I(f's_lshr_b32 {sT0}, s2, 3')
        I(f's_and_b32 {sT0}, {sT0}, 3')
        I(f's_lshl_b32 {sT0}, {sT0}, 13')
        I('v_lshlrev_b32 v52, 7, v63')
        I(f'v_add_u32 v52, {sT0}, v52')
        I('v_min_u32 v52, L_codeend-' + NAME + '_kernel-4, v52')
        I('global_load_dword v61, v52, s[82:83]')
        I('s_cmp_ge_u32 s2, 224')
        I(f's_cbranch_scc1 {l_done}')
        I('s_and_b32 s83, s2, 7')
        I('s_lshr_b32 s82, s2, 3')
        I(f's_mul_i32 s84, s83, {64 * 3584}')
        I(f's_lshl_b32 {sT0}, s82, 7')
        I(f's_add_u32 s84, s84, {sT0}')
        self.cs_off()

        def dst_gu(ct):
            I(f's_lshl_b32 {sT0}, s82, 2')
            I(f's_add_u32 {sT0}, {sT0}, {ct}')
            I(f's_mul_i32 {sT1}, {sT0}, 147')
            I(f's_lshr_b32 {sT1}, {sT1}, 10')
            I(f's_mul_i32 {sT1}, {sT1}, 3')
            I(f's_add_u32 {sT0}, {sT0}, {sT1}')
            I(f's_add_u32 {sT0}, {sT0}, 3')
            I(f's_mul_i32 {sT0}, {sT0}, {BLK}')
            I(f's_add_u32 {sT0}, {sT0}, {hx(W13)}')
            I(f's_lshl_b32 {sT2}, s83, 12')
            I(f's_add_u32 {sT2}, {sT2}, {sT0}')
            I(f's_add_u32 {sT1}, {sT0}, s86')
        self.wtask(24576, [50, 52], D * F * 2, 3584, 's84', 4, dst_gu, True, 's83')
        p.label(l_done)
        p.end_div()
        p.nop(4)
        p.wait_vm_all()
        p.wait_lg_all()
        I(f's_add_u32 s{TAG}, s{TAG}, 0x7f4a7c10')
        I(f's_addc_u32 s{TAG+1}, s{TAG+1}, 0x9e3779b9')
        I(f's_and_b32 s{TAG}, s{TAG}, -16')
        I('s_barrier')
        skip = p.newlabel('p0post')
        I(f's_cmp_lg_u32 {sW}, 0')
        I(f's_cbranch_scc1 {skip}')
        p.begin_div()
        I(f's_or_b32 {sT0}, s{TAG}, {sXCC}')
        I(f'v_mov_b32 v{TMP}, {sT0}')
        I(f'v_mov_b32 v{TMP+1}, s{TAG+1}')
        I(f's_lshl_b32 {sT0}, s2, 7')
        I(f'v_mov_b32 {vFL}, {sT0}')
        I(f's_mov_b32 {sT1}, {hx(FL0)}')
        I('s_mov_b64 exec, 1')
        I(f'buffer_store_dwordx2 {vr(TMP, 2)}, {vFL}, {WS}, {sT1} offen sc1')
        I('s_mov_b64 exec, -1')
        p.end_div()
        p.label(skip)
        self.setup()
        skip = p.newlabel('p0poll')
        I(f's_cmp_lg_u32 {sW}, 0')
        I(f's_cbranch_scc1 {skip}')
        p.begin_div()
        I(f'v_lshlrev_b32 {vFL}, 3, {vL16}')
        I(f's_mov_b32 {sT0}, {hx(FL0)}')
        I(f's_mov_b32 {sT1}, {hx(FL0 + 8192)}')
        I(f's_mov_b32 {sT2}, {hx(FL0 + 16384)}')
        I(f's_mov_b32 {sT3}, {hx(FL0 + 24576)}')
        self.poll([(vFL, sT0, 0), (vFL, sT1, 0), (vFL, sT2, 0), (vFL, sT3, 0)], mask_low=True, code=1, sleep=8)
        p.end_div()
        p.label(skip)
        I('s_barrier')

    def cs_off(self):
        I = self.I
        I('s_lshr_b32 s86, s83, 2')
        I('s_lshl_b32 s86, s86, 9')
        I(f's_and_b32 {sT0}, s83, 3')
        I(f's_lshl_b32 {sT0}, {sT0}, 2')
        I(f's_add_u32 s86, s86, {sT0}')
        I(f's_add_u32 s86, s86, {32 * 1024}')

    def setup(self):
        p, I = self.p, self.I
        I('v_and_b32 v52, 31, v63')
        I('v_lshrrev_b32 v53, 5, v63')
        I('v_and_b32 v54, 15, v63')
        I('v_bfe_u32 v55, v63, 4, 1')
        self.srd(24, 44, 45, H * DH * DH * 2)
        I('v_lshlrev_b32 v56, 7, v53')
        I('v_lshl_add_u32 v56, v54, 1, v56')
        I(f's_lshl_b32 {sT0}, {sJ}, 10')
        for h in range(2):
            for j in range(8):
                d0 = pi(0, j)
                I(f'buffer_load_ushort v{X + 8 * h + j}, v56, {INS}, {sT0} offen offset:{h * 512 + d0 * 32}')
        I(f's_lshl_b32 {sTB}, {sG}, 2')
        I(f's_lshr_b32 {sT0}, {sJ}, 3')
        I(f's_lshl_b32 {sT0}, {sT0}, 1')
        I(f's_add_u32 {sTBP}, {sTB}, {sT0}')
        I(f's_add_u32 {sTB}, {sTB}, {sW}')
        I(f's_and_b32 {sC}, {sJ}, 7')
        I(f's_lshl_b32 {sT0}, {sW}, 13')
        for b in range(4):
            I(f's_add_u32 s{sRB[b]}, {sT0}, {RING + b * BLK}')
            I(f'v_add_u32 v{vRB[b]}, {RING + b * BLK}, {vL16}')
        I(f's_mul_i32 {sW13}, {sJ}, {10 * BLK}')
        I(f's_add_u32 {sW13}, {sW13}, {hx(W13)}')
        I(f's_add_u32 {sW13}, {sW13}, {sT0}')
        I(f's_lshl_b32 {sQ4}, {sW}, 8')
        I(f's_add_u32 {sQ4}, {sQ4}, 32768')
        I(f's_sub_u32 {sQ4}, {sQ4}, {sT0}')
        I(f's_lshl_b32 {sT0}, {sW}, 5')
        I(f'v_add_u32 {vTW}, {sT0}, v52')
        I(f'v_mul_u32_u24 {vTW}, {TRP}, {vTW}')
        I(f'v_lshl_add_u32 {vTW}, v53, 3, {vTW}')
        I(f'v_add_u32 {vTW}, {SCR}, {vTW}')
        I('v_lshrrev_b32 v56, 2, v54')
        I('v_lshl_add_u32 v56, v53, 2, v56')
        I(f'v_mul_u32_u24 v56, {TRP}, v56')
        I(f'v_add_u32 v56, {SCR}, v56')
        I('v_and_b32 v57, 3, v54')
        I('v_lshlrev_b32 v57, 3, v57')
        I(f's_and_b32 {sT0}, {sW}, 1')
        I(f'v_xor_b32 v58, {sT0}, v55')
        I('v_lshl_add_u32 v58, v58, 5, v57')
        I(f's_lshr_b32 {sT1}, {sW}, 1')
        I(f's_lshl_b32 {sT0}, {sT1}, 6')
        I(f'v_add3_u32 {vTA}, v56, v58, {sT0}')
        I(f's_lshl_b32 {sT0}, {sT1}, 5')
        I(f's_add_u32 {sT0}, {sT0}, 128')
        I(f'v_add_u32 v57, {sT0}, v57')
        I('v_mov_b32 v58, 192')
        I('v_cmp_eq_u32 vcc, 0, v55')
        I('v_cndmask_b32 v57, v58, v57, vcc')
        I(f'v_add_u32 {vTB_}, v56, v57')
        I('v_lshl_add_u32 v57, v53, 4, v54')
        I('v_lshlrev_b32 v57, 4, v57')
        I('v_lshlrev_b32 v58, 4, v53')
        I('v_add_u32 v58, 512, v58')
        I(f'v_cndmask_b32 {vKV}, v58, v57, vcc')
        for u in range(1, 4):
            I(f's_xor_b32 {sT0}, {sW}, {u}')
            I(f's_mul_i32 {sT0}, {sT0}, 6144')
            I(f's_add_u32 {sT0}, {sT0}, {SCR + (u - 1) * 2048}')
            I(f'v_add_u32 v{vRW[u-1]}, {sT0}, {vL16}')
        I(f's_mul_i32 {sT0}, {sW}, 6144')
        I(f's_add_u32 {sT0}, {sT0}, {SCR}')
        I(f'v_add_u32 {vRR}, {sT0}, {vL16}')
        I(f's_and_b32 {sT0}, {sW}, 1')
        I(f's_lshl_b32 {sT0}, {sT0}, 8')
        I(f'v_xor_b32 {vL16P}, {sT0}, {vL16}')
        I(f'v_lshlrev_b32 {vOUT}, 10, v52')
        I(f'v_lshl_add_u32 {vOUT}, v53, 4, {vOUT}')
        I('v_lshlrev_b32 v57, 31, v55')
        I('v_lshrrev_b32 v58, 16, v57')
        I('v_or_b32 v57, v57, v58')
        for h in range(2):
            for r in range(4):
                I(f'v_lshl_or_b32 v{PHI + 4 * h + r}, v{X + 8 * h + 2 * r + 1}, 16, v{X + 8 * h + 2 * r}')
                I(f'v_xor_b32 v{PHI + 4 * h + r}, v57, v{PHI + 4 * h + r}')
        I(f's_mov_b32 {sL}, 0')
        I(f'v_mov_b32 v{vP}, 0')

    def first_loads(self):
        p, I = self.p, self.I
        if self.fast:
            I(f'v_lshlrev_b32 {vFL}, 6, {vL16}')
            I(f'v_and_b32 {vFL}, 0x3c00, {vFL}')
            I(f's_and_b32 {sT0}, {sG}, 1')
            I(f's_lshl_b32 {sT0}, {sT0}, 7')
            I(f's_lshr_b32 {sT1}, {sG}, 1')
            I(f's_add_u32 {sT0}, {sT0}, {sT1}')
            I(f's_lshl_b32 {sT0}, {sT0}, 7')
            I(f's_add_u32 {sT0}, {sT0}, {hx(FL0)}')
            I(f'buffer_load_dword v{TMP}, {vFL}, {WS}, {sT0} offen sc1')
            I(f's_or_b32 {sT0}, s{TAG}, {sXCC}')
            I(f'v_cmp_ne_u32 vcc, {sT0}, v{TMP}')
            p.nop(2)
            I('s_cmp_eq_u64 vcc, 0')
            I(f's_cselect_b32 s10, {hx(WS_BYTES)}, 0')
            I(f's_cselect_b32 s14, 0, {hx(WS_BYTES)}')
        if self.touch:
            I(f'v_lshlrev_b32 {vFL}, 3, {vL16}')
            I(f's_mul_i32 {sT0}, {sTB}, {112 * 1024}')
            I(f's_mul_i32 {sT1}, {sJ}, {7 * 1024}')
            I(f's_add_u32 {sT0}, {sT0}, {sT1}')
            I(f's_add_u32 {sT0}, {sT0}, {hx(HF)}')
            I(f'buffer_load_dword v{TMP+1}, {vFL}, {WS}, {sT0} offen sc1')
            I(f'v_and_b32 {vFL}, 0x780, {vFL}')
            I(f's_lshl_b32 {sT0}, {sTB}, 15')
            I(f's_lshl_b32 {sT1}, {sJ}, 11')
            I(f's_add_u32 {sT0}, {sT0}, {sT1}')
            I(f's_add_u32 {sT0}, {sT0}, {hx(OF)}')
            I(f'buffer_load_dword v{TMP+2}, {vFL}, {WS}, {sT0} offen sc1')
            I(f'v_lshlrev_b32 {vFL}, 4, {vFL}')
            I(f's_lshl_b32 {sT0}, {sG}, 7')
            I(f's_add_u32 {sT0}, {sT0}, {hx(FLI)}')
            I(f'buffer_load_dword v{TMP+3}, {vFL}, {WS}, {sT0} offen sc1')
        for i, nm in enumerate(('k', 'v', 'q', 't0')):
            self.run(self.dma_block(nm, i, i))
        p.wait_vm_all()
        for cbl in range(2):
            I(f's_lshr_b32 {sT0}, {sW}, 1')
            I(f's_xor_b32 {sT0}, {sT0}, {cbl}')
            I(f's_lshl_b32 {sT1}, {sC}, 1')
            I(f's_add_u32 {sT0}, {sT0}, {sT1}')
            I(f's_mul_i32 {sT0}, {sT0}, 112')
            I(f's_mul_i32 {sT1}, {sW}, 28')
            I(f's_add_u32 {sT0}, {sT0}, {sT1}')
            I(f's_lshl_b32 {sT0}, {sT0}, 10')
            I(f's_add_u32 {sT0}, {sT0}, {hx(W4)}')
            for i in range(28):
                if i and i % 4 == 0:
                    I(f's_add_u32 {sT0}, {sT0}, 4096')
                o = f' offset:{(i % 4) * 1024}' if i % 4 else ''
                I(f'buffer_load_dwordx4 {vr(4 * (cbl * 28 + i), 4, "a")}, {vL16P}, {WS}, {sT0} offen{o}{self.nt}')
        p.wait_vm_all()
        I('s_barrier')

    def layer_consts(self):
        I = self.I
        I(f's_mul_i32 {sLX}, {sL}, {2 * XF_SZ}')
        I(f's_mul_i32 {sLS}, {sL}, {2 * ST_SZ}')
        I(f's_mul_i32 {sLO}, {sL}, {OF_SZ}')
        I(f's_mul_i32 {sLH}, {sL}, {HF_SZ}')
        I(f's_lshl_b32 {sFI}, {sL}, 14')
        I(f's_lshl_b32 {sT0}, {sG}, 7')
        I(f's_add_u32 {sFI}, {sFI}, {sT0}')
        I(f's_add_u32 {sFI}, {sFI}, {hx(FLI)}')
        I(f's_lshl_b32 {sFG}, {sL}, 4')
        I(f's_add_u32 {sFG}, {sFG}, {sJ}')
        I(f's_lshl_b32 {sFG}, {sFG}, 2')
        I(f's_add_u32 {sFG}, {sFG}, {sW}')
        I(f's_lshl_b32 {sFG}, {sFG}, 11')
        I(f's_add_u32 {sFG}, {sFG}, {hx(FLG)}')
        I(f's_cmp_eq_u32 {sL}, 0')
        I(f's_cselect_b32 s18, {hx(WS_BYTES)}, 0')

    def load_x(self, which, streg, stat_pos):
        I = self.I
        I(f's_lshl_b32 s87, {sTB}, 13')
        I(f's_add_u32 s87, s87, {sLS}')
        I(f's_add_u32 s87, s87, {hx(ST + which * ST_SZ)}')
        I(f's_lshl_b32 s86, {sTB}, 15')
        I(f's_add_u32 s86, s86, {sLX}')
        I(f's_add_u32 s86, s86, {hx(XF + which * XF_SZ)}')

        def xl(ks):
            def f():
                if ks and ks % 4 == 0:
                    I(f's_add_u32 s86, s86, 4096')
                o = f' offset:{(ks % 4) * 1024}' if ks % 4 else ''
                I(f'buffer_load_dwordx4 {vr(X + 4 * ks, 4)}, {vL16}, {WS}, s86 offen{o} sc1')
            return f

        def sl(c):
            def f():
                if c == 4:
                    I(f's_add_u32 s87, s87, 4096')
                o = f' offset:{(c % 4) * 1024}' if c % 4 else ''
                I(f'buffer_load_dwordx4 {vr(streg[c], 4)}, {vL16}, {WS}, s87 offen{o} sc1')
            return f
        return [xl(k) for k in range(stat_pos)] + [sl(c) for c in range(8)] + [xl(k) for k in range(stat_pos, 32)]

    def stats_code(self, streg):
        regs = [streg[c] + i for c in range(8) for i in range(4)]
        out = []
        while len(regs) > 1:
            nxt = []
            for a, b in zip(regs[0::2], regs[1::2]):
                out.append(f'v_add_f32 v{a}, v{a}, v{b}')
                nxt.append(a)
            regs = nxt
        s = regs[0]
        t = s + 1
        out += [f'v_mul_f32 v{s}, {hx(f2u(1.0 / 512))}, v{s}',
                f'v_mov_b32 v{t}, v{s}',
                f'v_permlane32_swap_b32 v{s}, v{t}',
                f'v_fma_f32 v{t}, -v{s}, v{s}, v{t}',
                f'v_max_f32 v{t}, 0, v{t}',
                f'v_add_f32 {vS2}, {hx(f2u(1e-5))}, v{t}',
                f'v_rsq_f32 {vRS}, {vS2}',
                f'v_cvt_pk_bf16_f32 v{MF}, -v{s}, -v{s}',
                f'v_mov_b32 v{MF+1}, v{MF}',
                f'v_mov_b32 v{MF+2}, v{MF}',
                f'v_mov_b32 v{MF+3}, v{MF}']
        return out

    def feature_map(self, src, sink, between=()):
        p, I = self.p, self.I
        KF = TMP
        for r in range(8):
            I(f'v_cvt_pk_bf16_f32 v{KF + r}, v{src + 2 * r}, v{src + 2 * r + 1}')
        for h in range(2):
            I(f'v_mfma_f32_32x32x16_bf16 {vr(A(2 + h), 16)}, {vr(PHI + 4 * h, 4)}, {vr(KF + 4 * h, 4)}, 0')
        I(f'v_mul_f32 {vC1}, {hx(f2u(math.log2(math.e)))}, {vRS}')
        self.run(between)
        M = TMP + 8
        m = lambda h, s: M + 2 * h + s
        for h in range(2):
            for s in range(2):
                b = A(2 + h) + 8 * s
                I(f'v_max3_f32 v{m(h, s)}, v{b}, v{b+1}, v{b+2}')
                I(f'v_max3_f32 v{TMP + 2 * h + s}, v{b+3}, v{b+4}, v{b+5}')
                I(f'v_max3_f32 v{m(h, s)}, v{b+6}, v{b+7}, v{m(h, s)}')
                I(f'v_max_f32 v{m(h, s)}, v{m(h, s)}, v{TMP + 2 * h + s}')

        def cross(op):
            for h in range(2):
                I(f'v_permlane32_swap_b32 v{m(h, 0)}, v{m(h, 1)}')
            for h in range(2):
                I(f'{op} v{m(h, 0)}, v{m(h, 0)}, v{m(h, 1)}')
        cross('v_max_f32')
        for h in range(2):
            I(f'v_mul_f32 v{m(h, 0)}, v{m(h, 0)}, {vC1}')
        for h in range(2):
            I(f'v_mov_b32 v{m(h, 1)}, v{m(h, 0)}')
        for h in range(2):
            I(f'v_permlane32_swap_b32 v{m(h, 0)}, v{m(h, 1)}')
        c2 = 'v[44:45]'
        for h in range(2):
            for s in range(2):
                b = A(2 + h) + 8 * s
                mm = vr(M + 2 * h, 2)
                for r in range(0, 8, 2):
                    I(f'v_pk_fma_f32 {vr(b + r, 2)}, {vr(b + r, 2)}, {c2}, {mm} op_sel:[0,0,{s}] op_sel_hi:[1,0,{s}] neg_lo:[0,0,1] neg_hi:[0,0,1]')
        for h in range(2):
            for r in range(16):
                I(f'v_exp_f32 v{A(2 + h) + r}, v{A(2 + h) + r}')
        for h in range(2):
            for s in range(2):
                b = A(2 + h) + 8 * s
                t = TMP + 4 * h + 2 * s
                I(f'v_pk_add_f32 {vr(t, 2)}, {vr(b, 2)}, {vr(b + 2, 2)}')
                I(f'v_pk_add_f32 {vr(t, 2)}, {vr(t, 2)}, {vr(b + 4, 2)}')
                I(f'v_pk_add_f32 {vr(t, 2)}, {vr(t, 2)}, {vr(b + 6, 2)}')
                I(f'v_add_f32 v{m(h, s)}, v{t}, v{t+1}')
        cross('v_add_f32')
        for h in range(2):
            I(f'v_rcp_f32 v{m(h, 0)}, v{m(h, 0)}')
        for h in range(2):
            I(f'v_mov_b32 v{m(h, 1)}, v{m(h, 0)}')
        for h in range(2):
            I(f'v_permlane32_swap_b32 v{m(h, 0)}, v{m(h, 1)}')
        for h in range(2):
            for s in range(2):
                b = A(2 + h) + 8 * s
                mm = vr(M + 2 * h, 2)
                for r in range(0, 8, 2):
                    I(f'v_pk_mul_f32 {vr(b + r, 2)}, {vr(b + r, 2)}, {mm} op_sel:[0,{s}] op_sel_hi:[1,{s}]')
            for g in range(4):
                sink(h, g, A(2 + h) + 4 * g)

    def p1(self):
        p, I = self.p, self.I
        streg = [A(2) + 4 * c for c in range(8)]
        SP = 22
        ld = self.load_x(0, streg, SP)
        LA = self.LA
        self.run(ld[:LA])
        ev = {}
        rest = ld[LA:]
        for ks in range(32):
            pos = ks if ks < SP else ks + 8
            want = min(len(ld), pos + 1 + LA)
            k = 0
            while len(ld) - len(rest) < want and k < 2:
                ev.setdefault(2 * ks + k, []).append(rest.pop(0))
                k += 1
        assert not rest
        steps = []
        for ks in range(32):
            steps.append((A(0), 0, ks, vr(X + 4 * ks, 4), ks == 0))
            steps.append((A(1), 1, ks, vr(X + 4 * ks, 4), ks == 0))
        steps.append((A(0), 0, 32, vr(MF, 4), False))
        steps.append((A(1), 1, 32, vr(MF, 4), False))
        left = self.mstream(steps, events=ev, fill=[(2 * SP + 1, t, 64) for t in self.stats_code(streg)])
        assert not left
        self.stamp('p1 kv gemm')
        vep = []
        for r in range(16):
            vep.append(f'v_mul_f32 v{A(1) + r}, v{A(1) + r}, {vRS}')
        for g in range(4):
            b = A(1) + 4 * g
            vep.append(f'v_cvt_pk_bf16_f32 v{b}, v{b}, v{b+1}')
            vep.append(f'v_cvt_pk_bf16_f32 v{b+1}, v{b+2}, v{b+3}')
            vep.append(f'ds_write_b64 {vTW}, {vr(b, 2)} offset:{128 + 16 * g}')
        vep.append(f'v_mov_b32 v{A(1) + 2}, {sONE}')
        vep.append(f'v_mov_b32 v{A(1) + 3}, {sONE}')
        vep.append(f'v_and_b32 v{A(1) + 6}, -16, {vTW}')

        def ones():
            I(f'v_lshrrev_b32 v{A(1) + 6}, 9, {vL16}')
            I(f'v_lshlrev_b32 v{A(1) + 6}, 3, v{A(1) + 6}')
            I(f'v_sub_u32 v{A(1) + 6}, {vTW}, v{A(1) + 6}')
            I(f'ds_write_b64 v{A(1) + 6}, {vr(A(1) + 2, 2)} offset:192')
        vep[-1] = ones

        def sink_k(h, g, b):
            I(f'v_cvt_pk_bf16_f32 v{b}, v{b}, v{b+1}')
            I(f'v_cvt_pk_bf16_f32 v{b+1}, v{b+2}, v{b+3}')
            I(f'ds_write_b64 {vTW}, {vr(b, 2)} offset:{64 * h + 16 * g}')
        self.feature_map(A(0), sink_k, between=vep)
        p.wait_lg_all()
        I('s_barrier')
        self.stamp('p1 k softmax')
        fr = [A(1) + 4 * i for i in range(12)] + [PQ + 4 * i for i in range(4)]
        for s in range(8):
            for o, (base, reg) in enumerate(((vTA, fr[2 * s]), (vTB_, fr[2 * s + 1]))):
                for rd in range(2):
                    I(f'ds_read_b64_tr_b16 {vr(reg + 2 * rd, 2)}, {base} offset:{(16 * s + 8 * rd) * TRP}')
            if s >= 2:
                k = s - 2
                I(f'v_mfma_f32_32x32x16_bf16 {vr(A(0), 16)}, {vr(fr[2 * k], 4)}, {vr(fr[2 * k + 1], 4)}, {"0" if k == 0 else vr(A(0), 16)}')
        for k in (6, 7):
            I(f'v_mfma_f32_32x32x16_bf16 {vr(A(0), 16)}, {vr(fr[2 * k], 4)}, {vr(fr[2 * k + 1], 4)}, {vr(A(0), 16)}')
        I(f's_lshl_b32 {sT0}, {sJ}, 2')
        I(f's_add_u32 {sT0}, {sT0}, {sW}')
        I(f's_mul_i32 s82, {sT0}, {16 * 2 * KVQ}')
        I(f's_mul_i32 {sT1}, {sL}, {KVP_SZ}')
        I(f's_add_u32 s82, s82, {sT1}')
        I(f's_add_u32 s82, s82, {hx(KVP)}')
        I(f's_mul_i32 {sT0}, {sG}, {2 * KVQ}')
        I(f's_add_u32 {sT0}, {sT0}, s82')
        kvt = [I(f'buffer_store_dwordx4 {vr(A(0), 4)}, {vKV}, {WS}, {sT0} offen sc1'),
               I(f'buffer_store_dwordx4 {vr(A(0) + 4, 4)}, {vKV}, {WS}, {sT0} offen offset:{KVQ} sc1')]
        self.stamp('p1 kv partial')

        def post():
            I(f'v_mov_b32 v{TMP}, s{TAG}')
            I(f'v_mov_b32 v{TMP+1}, s{TAG+1}')
            I(f's_lshl_b32 {sT0}, {sG}, 7')
            I(f'v_mov_b32 {vFL}, {sT0}')
            p.wait(*kvt)
            I('s_mov_b64 exec, 1')
            I(f'buffer_store_dwordx2 {vr(TMP, 2)}, {vFL}, {WS}, {sFG} offen sc1')
            I('s_mov_b64 exec, -1')
        steps = [(A(1), 2, ks, vr(X + 4 * ks, 4), ks == 0) for ks in range(32)] + [(A(1), 2, 32, vr(MF, 4), False)]
        bg = self.dma_block('t1', 0, 4) + self.dma_block('t2', 1, 5)
        self.mstream(steps, events={24: [post]}, bg=bg, bg_gap=2)
        self.run(bg)
        I('s_barrier')
        self.run(self.dma_block('t3', 2, 6))
        for cbl in range(2):
            I(f's_lshr_b32 {sT0}, {sW}, 1')
            I(f's_xor_b32 {sT0}, {sT0}, {cbl}')
            I(f's_lshl_b32 {sT1}, {sC}, 1')
            I(f's_add_u32 {sT0}, {sT0}, {sT1}')
            I(f's_lshl_b32 {sT0}, {sT0}, 2')
            I(f's_add_u32 {sT0}, {sT0}, {sW}')
            I(f's_lshl_b32 {sT0}, {sT0}, 13')
            I(f's_add_u32 {sT0}, {sT0}, {hx(W2)}')
            for i in range(8):
                if i == 4:
                    I(f's_add_u32 {sT0}, {sT0}, 4096')
                o = f' offset:{(i % 4) * 1024}' if i % 4 else ''
                I(f'buffer_load_dwordx4 {vr(X + 4 * (cbl * 8 + i), 4)}, {vL16P}, {WS}, {sT0} offen{o}{self.nt}')

        def sink_q(h, g, b):
            d = PQ + 8 * h + 2 * g
            I(f'v_cvt_pk_bf16_f32 v{d}, v{b}, v{b+1}')
            I(f'v_cvt_pk_bf16_f32 v{d+1}, v{b+2}, v{b+3}')
        self.feature_map(A(1), sink_q)
        self.stamp('p1 q done')

    def p2a(self):
        p, I = self.p, self.I
        I(f'v_lshlrev_b32 {vFL}, 3, {vL16}')
        I(f'v_and_b32 {vFL}, 0x780, {vFL}')
        self.poll([(vFL, sFG, 0)], code=2, sleep=2)
        self.stamp('G polled')
        regs = [ACC + 4 * i for i in range(16)] + [X + 64 + 4 * i for i in range(16)]
        I(f's_mov_b32 {sT0}, s82')
        for g in range(16):
            if g and g % 3 == 0:
                I(f's_add_u32 {sT0}, {sT0}, {6 * KVQ}')
            for q in range(2):
                off = ((g % 3) * 2 + q) * KVQ
                o = f' offset:{off}' if off else ''
                I(f'buffer_load_dwordx4 {vr(regs[2 * g + q], 4)}, {vKV}, {WS}, {sT0} offen{o} sc1')
        for g in range(1, 16):
            for q in range(2):
                for h in range(0, 4, 2):
                    I(f'v_pk_add_f32 {vr(regs[q] + h, 2)}, {vr(regs[q] + h, 2)}, {vr(regs[2 * g + q] + h, 2)}')
        for r in range(4):
            I(f'v_cvt_pk_bf16_f32 v{TMP + r}, v{ACC + 2 * r}, v{ACC + 2 * r + 1}')
        I(f's_lshl_b32 {sT0}, {sW}, 10')
        I(f's_add_u32 {sT0}, {sT0}, {SCR}')
        I(f'v_add_u32 {vFL}, {sT0}, {vL16}')
        I(f'ds_write_b128 {vFL}, {vr(TMP, 4)}')
        I(f'v_add_u32 {vFL}, {SCR}, {vL16}')
        p.wait_lg_all()
        I('s_barrier')
        self.stamp('gathered')
        for i in range(4):
            I(f'ds_read_b128 {vr(A(2) + 4 * i, 4)}, {vFL} offset:{i * 1024}')
        for s in range(2):
            for h in range(2):
                I(f'v_mfma_f32_32x32x16_bf16 {vr(A(h), 16)}, {vr(A(2) + 4 * (2 * h + s), 4)}, {vr(PQ + 8 * h + 4 * s, 4)}, {"0" if s == 0 else vr(A(h), 16)}')
        I(f's_lshl_b32 {sT0}, {sTB}, 15')
        I(f's_lshl_b32 {sT1}, {sJ}, 11')
        I(f's_add_u32 {sT0}, {sT0}, {sT1}')
        I(f's_add_u32 {sT0}, {sT0}, {sLO}')
        I(f's_add_u32 {sT0}, {sT0}, {hx(OF)}')
        toks = []
        for h in range(2):
            b = A(h)
            I(f'v_add_f32 v{b + 8}, {hx(f2u(1e-6))}, v{b + 8}')
            I(f'v_rcp_f32 v{b + 8}, v{b + 8}')
            for r in range(0, 8, 2):
                I(f'v_pk_mul_f32 {vr(b + r, 2)}, {vr(b + r, 2)}, {vr(b + 8, 2)} op_sel_hi:[1,0]')
            for r in range(4):
                I(f'v_cvt_pk_bf16_f32 v{b + 12 + r}, v{b + 2 * r}, v{b + 2 * r + 1}')
            toks += self.st_group(b + 12, 4, vL16, sT0, h * 1024)
        self.res_load(0)
        self.stamp('o stored')
        self.hop(0, toks, inside=self.res_init)
        self.stamp('o hop')

    def res_load(self, which):
        I = self.I
        I(f's_lshl_b32 {sT1}, {sTBP}, 15')
        I(f's_lshl_b32 {sT2}, {sC}, 12')
        I(f's_add_u32 {sT1}, {sT1}, {sT2}')
        I(f's_lshl_b32 {sT2}, {sW}, 10')
        I(f's_add_u32 s83, {sT1}, {sT2}')
        I(f's_add_u32 {sT1}, s83, {sLX}')
        I(f's_add_u32 {sT1}, {sT1}, {hx(XF + which * XF_SZ)}')
        I(f'buffer_load_dwordx4 {vr(PQ, 4)}, {vL16}, {WS}, {sT1} offen sc1')
        I(f's_add_u32 {sT1}, {sT1}, 32768')
        I(f'buffer_load_dwordx4 {vr(PQ + 4, 4)}, {vL16}, {WS}, {sT1} offen sc1')

    def res_init(self):
        I = self.I
        for tbi in range(2):
            b = A(2 * tbi)
            for r in range(4):
                I(f'v_lshlrev_b32 v{b + 2 * r}, 16, v{PQ + 4 * tbi + r}')
                I(f'v_and_b32 v{b + 2 * r + 1}, 0xffff0000, v{PQ + 4 * tbi + r}')
            for r in range(8, 16):
                I(f'v_mov_b32 v{b + r}, 0')

    def reduce_write(self, tbi):
        I = self.I
        src = [A(2 * tbi) + 8, A(2 * tbi + 1), A(2 * tbi + 1) + 8]
        for u in range(3):
            I(f'ds_write_b128 v{vRW[u]}, {vr(src[u], 4)}')
            I(f'ds_write_b128 v{vRW[u]}, {vr(src[u] + 4, 4)} offset:1024')

    def finalize(self, tbi, which, maybe_final):
        p, I = self.p, self.I
        b = A(2 * tbi)
        dst = [b + 8, b + 12, b + 16, b + 20, b + 24, b + 28]
        for u in range(3):
            for q in range(2):
                I(f'ds_read_b128 {vr(dst[2 * u + q], 4)}, {vRR} offset:{u * 2048 + q * 1024}')
        for u in range(3):
            for q in range(2):
                for h in range(0, 4, 2):
                    I(f'v_pk_add_f32 {vr(b + 4 * q + h, 2)}, {vr(b + 4 * q + h, 2)}, {vr(dst[2 * u + q] + h, 2)}')
        o = b + 8
        for r in range(4):
            I(f'v_cvt_pk_bf16_f32 v{o + r}, v{b + 2 * r}, v{b + 2 * r + 1}')
        toks = []
        if maybe_final:
            lf, le = p.newlabel('fin'), p.newlabel('fine')
            I(f's_cmp_eq_u32 {sL}, 0')
            I(f's_cbranch_scc1 {lf}')
            p.begin_div()
            I(f'v_permlane32_swap_b32 v{o}, v{o+2}')
            I(f'v_permlane32_swap_b32 v{o+1}, v{o+3}')
            I(f's_add_u32 {sT0}, {sTBP}, {tbi}')
            I(f's_lshl_b32 {sT0}, {sT0}, 15')
            I(f's_lshl_b32 {sT1}, {sC}, 7')
            I(f's_add_u32 {sT0}, {sT0}, {sT1}')
            I(f's_lshl_b32 {sT1}, {sW}, 5')
            I(f's_add_u32 {sT0}, {sT0}, {sT1}')
            I(f'buffer_store_dwordx4 {vr(o, 4)}, {vOUT}, {OUT}, {sT0} offen')
            I(f's_branch {le}')
            p.end_div()
            p.label(lf)
            p.begin_div()
        I(f's_add_u32 {sT0}, s83, {sLX}')
        I(f's_add_u32 {sT0}, {sT0}, {hx(XF + which * XF_SZ + tbi * 32768)}')
        toks += self.st_group(o, 4, vL16, sT0)
        I(f'v_mov_b32 v{b}, 0')
        I(f'v_mov_b32 v{b+1}, 0')
        for r in range(4):
            I(f'v_dot2c_f32_bf16 v{b}, {sONE}, v{o + r}')
            I(f'v_dot2c_f32_bf16 v{b+1}, v{o + r}, v{o + r}')
        I(f's_add_u32 {sT0}, {sTBP}, {tbi}')
        I(f's_lshl_b32 {sT0}, {sT0}, 13')
        I(f's_lshl_b32 {sT1}, {sC}, 10')
        I(f's_add_u32 {sT0}, {sT0}, {sT1}')
        I(f's_lshl_b32 {sT1}, {sW}, 2')
        I(f's_add_u32 {sT0}, {sT0}, {sT1}')
        I(f's_add_u32 {sT0}, {sT0}, {sLS}')
        I(f's_add_u32 {sT0}, {sT0}, {hx(ST + which * ST_SZ)}')
        I(f'v_permlane32_swap_b32 v{b}, v{b+1}')
        I(f'v_add_f32 v{b}, v{b}, v{b+1}')
        toks += self.st_group(b, 1, vL16, sT0)
        if maybe_final:
            p.end_div()
            p.label(le)
        return toks

    def p2(self):
        p, I = self.p, self.I
        I(f's_lshl_b32 {sT0}, {sTBP}, 15')
        I(f's_lshl_b32 {sT1}, {sW}, 13')
        I(f's_add_u32 {sT0}, {sT0}, {sT1}')
        I(f's_add_u32 {sT0}, {sT0}, {sLO}')
        I(f's_add_u32 {sT0}, {sT0}, {hx(OF)}')
        I(f's_mov_b32 s85, {sT0}')
        nl = 0

        def load():
            nonlocal nl
            if nl >= 16:
                return
            tbi, i = divmod(nl, 8)
            if i % 4 == 0:
                I(f's_add_u32 s86, s85, {tbi * 32768 + i * 1024}')
            o = f' offset:{(i % 4) * 1024}' if i % 4 else ''
            I(f'buffer_load_dwordx4 {vr(X + 64 + 4 * nl, 4)}, {vL16}, {WS}, s86 offen{o} sc1')
            nl += 1
        for _ in range(self.LA):
            load()

        def mm(tbi):
            for i in range(8):
                for cbl in range(2):
                    acc = A(2 * tbi + cbl)
                    c = '0' if (i == 0 and cbl == 1) else vr(acc, 16)
                    I(f'v_mfma_f32_32x32x16_bf16 {vr(acc, 16)}, {vr(X + 4 * (cbl * 8 + i), 4)}, {vr(X + 64 + 4 * (tbi * 8 + i), 4)}, {c}')
                    if cbl == 0:
                        load()
        toks = self.tail(mm, 1, False)
        self.stamp('p2 done')
        self.hop(1, toks, extra_wait=self.dma['t0'] + self.dma['t1'] + self.dma['t2'] + self.dma['t3'])
        self.stamp('x1 hop')

    def tail(self, mm, which, maybe_final):
        p, I = self.p, self.I
        mm(0)
        self.reduce_write(0)
        p.wait_lg_all()
        I('s_barrier')
        toks = self.finalize(0, which, maybe_final)
        mm(1)
        I('s_barrier')
        self.reduce_write(1)
        p.wait_lg_all()
        I('s_barrier')
        toks += self.finalize(1, which, maybe_final)
        return toks

    def geglu(self, acc, tile, toks):
        out = []
        T = [TMP + i for i in range(8)]
        for r in range(8):
            out.append(f'v_mul_f32 v{T[r]}, v{acc + r}, v{acc + r}')
        for r in range(8):
            out.append(f'v_fma_f32 v{T[r]}, v{T[r]}, {vC3}, {vC1}')
        for r in range(8):
            out.append(f'v_mul_f32 v{T[r]}, v{T[r]}, v{acc + r}')
        for r in range(8):
            out.append(f'v_exp_f32 v{T[r]}, v{T[r]}')
            out.append(f'v_mul_f32 v{acc + 8 + r}, v{acc + r}, v{acc + 8 + r}')
        for r in range(8):
            out.append(f'v_fma_f32 v{T[r]}, v{T[r]}, {vS2}, {vS2}')
        for r in range(8):
            out.append(f'v_rcp_f32 v{T[r]}, v{T[r]}')
            if r:
                out.append(f'v_mul_f32 v{acc + 7 + r}, v{acc + 7 + r}, v{T[r-1]}')
        out.append(f'v_cvt_pk_bf16_f32 v{TMP + 8}, v{acc + 8}, v{acc + 9}')
        out.append(f'v_mul_f32 v{acc + 15}, v{acc + 15}, v{T[7]}')
        for r in range(1, 4):
            out.append(f'v_cvt_pk_bf16_f32 v{TMP + 8 + r}, v{acc + 8 + 2 * r}, v{acc + 9 + 2 * r}')

        def store():
            if tile == 4:
                self.I(f's_add_u32 s84, s84, 4096')
            toks.extend(self.st_group(TMP + 8, 4, vL16, 's84', (tile % 4) * 1024))
        out.append(store)
        return out

    def p3(self):
        p, I = self.p, self.I
        streg = [A(3) + 4 * c for c in range(4)] + [PQ + 4 * c for c in range(4)]
        SP = 24
        ld = self.load_x(1, streg, SP)
        LA = self.LA
        self.run(ld[:LA])
        rest = ld[LA:]
        ev = {}
        I(f's_mul_i32 s84, {sTB}, {112 * 1024}')
        I(f's_mul_i32 {sT0}, {sJ}, {7 * 1024}')
        I(f's_add_u32 s84, s84, {sT0}')
        I(f's_add_u32 s84, s84, {sLH}')
        I(f's_add_u32 s84, s84, {hx(HF)}')
        slot = lambda t: (3 + t) % 4
        acc = lambda t: A(t % 4)
        xr = lambda ks: vr(X + 4 * ks, 4) if ks < 32 else vr(MF, 4)
        steps = []
        n2 = 0
        for ks in range(33):
            pos = ks if ks < SP else ks + 8
            want = min(len(ld), pos + 1 + LA)
            k = 0
            while len(ld) - len(rest) < want and k < 2:
                ev.setdefault(len(steps) + k, []).append(rest.pop(0))
                k += 1
            if ks == SP:
                gst = len(steps) + 1
            steps.append((acc(0), slot(0), ks, xr(ks), ks == 0))
            steps.append((acc(1), slot(1), ks, xr(ks), ks == 0))
            if ks % 3 == 2 and ks < 32:
                steps.append((acc(2), slot(2), n2, xr(n2), n2 == 0))
                n2 += 1
        end = {0: len(steps) - 2, 1: len(steps) - 1}
        start = {}
        for t in range(2, 7):
            start[t] = len(steps)
            for ks in range(n2 if t == 2 else 0, 33):
                steps.append((acc(t), slot(t), ks, xr(ks), ks == 0))
            end[t] = len(steps) - 1
        c1 = -2.0 * math.sqrt(2.0 / math.pi) * math.log2(math.e)
        st = self.stats_code(streg) + [
            f'v_mul_f32 {vC1}, {hx(f2u(c1))}, {vRS}',
            f'v_mul_f32 {vC3}, {vRS}, {vRS}',
            f'v_mul_f32 {vC3}, {hx(f2u(0.044715))}, {vC3}',
            f'v_mul_f32 {vC3}, {vC3}, {vC1}']
        assert not rest
        fill = [(gst, t, end[0]) for t in st]
        toks = []
        for t in range(6):
            fill += [(end[t] + 3, it, start.get(t + 4, 10**6)) for it in self.geglu(acc(t), t, toks)]
        cuts = {}
        pendq = []

        def cut(frees, needs):
            def f():
                for nm in needs:
                    while len(self.dma[nm]) < 9:
                        pendq.pop(0)()
                    p.wait(*self.dma[nm])
                I('s_barrier')
                for (nm, sl, tile, srd) in frees:
                    pendq.extend(self.dma_block(nm, sl, tile, srd))
            return f
        cuts[start[2]] = cut([('t4', slot(4), 7, WS), ('t5', slot(5), 8, WS)], [])
        cuts[start[3]] = cut([('t6', slot(6), 9, WS)], [])
        cuts[start[4]] = cut([('k', slot(7), 0, WSN)], ['t4'])
        cuts[start[5]] = cut([('v', slot(8), 1, WSN)], ['t5'])
        cuts[start[6]] = cut([('q', slot(9), 2, WSN)], ['t6'])
        left = self.mstream(steps, events=ev, fill=fill, cuts=cuts, bg=pendq, bg_gap=2)
        self.run(pendq)
        self.res_load(1)
        self.run(left)
        self.run(self.geglu(acc(6), 6, toks))
        self.stamp('p3 done')
        self.hop(2, toks, inside=self.res_init)
        self.run(self.dma_block('t0', slot(10), 3, WSN))
        self.stamp('h hop')

    def p4(self):
        p, I = self.p, self.I
        I(f's_mul_i32 {sT0}, {sTBP}, {112 * 1024}')
        I(f's_mul_i32 {sT1}, {sW}, {28 * 1024}')
        I(f's_add_u32 {sT0}, {sT0}, {sT1}')
        I(f's_add_u32 {sT0}, {sT0}, {sLH}')
        I(f's_add_u32 s85, {sT0}, {hx(HF)}')
        order = [(tbi, i) for tbi in range(2) for i in range(28)]
        nl = 0

        def load():
            nonlocal nl
            if nl >= len(order):
                return
            tbi, i = order[nl]
            if i % 4 == 0:
                I(f's_add_u32 s86, s85, {tbi * 112 * 1024 + i * 1024}')
            o = f' offset:{(i % 4) * 1024}' if i % 4 else ''
            I(f'buffer_load_dwordx4 {vr(X + 4 * (nl % 32), 4)}, {vL16}, {WS}, s86 offen{o} sc1')
            nl += 1
        for _ in range(self.LA):
            load()

        def mm(tbi):
            for i in range(28):
                n = tbi * 28 + i
                for cbl in range(2):
                    acc = A(2 * tbi + cbl)
                    c = '0' if (i == 0 and cbl == 1) else vr(acc, 16)
                    I(f'v_mfma_f32_32x32x16_bf16 {vr(acc, 16)}, {vr(4 * (cbl * 28 + i), 4, "a")}, {vr(X + 4 * (n % 32), 4)}, {c}')
                    if cbl == 0:
                        load()
            if tbi == 0:
                for _ in range(8):
                    load()
        toks = self.tail(mm, 2, True)
        self.stamp('p4 done')
        I(f's_cmp_lg_u32 {sL}, 0')
        I('s_cbranch_scc1 L_finish')
        p.wait_vm_all()
        self.hop(3, [], extra_wait=self.dma['k'] + self.dma['v'] + self.dma['q'])
        self.stamp('x2 hop')

    def body(self):
        p, I = self.p, self.I
        self.nstamp = 1
        self.stamps = ['start']
        self.stg = 0
        self.layer_consts()
        self.stamp('layer start')
        for name, f in (('p1', self.p1), ('p2a', self.p2a), ('p2', self.p2), ('p3', self.p3), ('p4', self.p4)):
            f()
            if self.stop == name:
                I('s_branch L_finish')
        for a, b in ((0, 2), (1, 3)):
            I(f's_mov_b32 {sT0}, s{sRB[a]}')
            I(f's_mov_b32 s{sRB[a]}, s{sRB[b]}')
            I(f's_mov_b32 s{sRB[b]}, {sT0}')
            I(f'v_swap_b32 v{vRB[a]}, v{vRB[b]}')
        if self.prof:
            I(f'v_mov_b32 v{TMP}, v{vP}')
            self.dump_prof(0)
        I(f's_mov_b32 {sL}, 1')
        p.nop(4)
        I('s_branch L_layer')

    def dump_prof(self, half):
        I = self.I
        I(f's_lshl_b32 {sT0}, s2, 2')
        I(f's_add_u32 {sT0}, {sT0}, {sW}')
        I(f's_lshl_b32 {sT0}, {sT0}, 9')
        I(f's_add_u32 {sT0}, {sT0}, {hx(PROF + half * 256)}')
        I(f'buffer_store_dword v{TMP}, {vL4}, {WS}, {sT0} offen')

    def build(self):
        p, I = self.p, self.I
        self.stamps = []
        if self.prof:
            I('s_memtime s[88:89]')
            I('s_memrealtime s[90:91]')
        self.prologue()
        if self.prof:
            I(f'v_writelane_b32 v{vP}, s88, 0')
            I(f'v_writelane_b32 v{vP}, s90, 60')
            self.nstamp = 40
            self.stamp('p0 synced')
        if self.stop == 'p0':
            I('s_branch L_finish')
        self.first_loads()
        p.nop(8)
        p.label('L_layer')
        head = p.lines
        prev = None
        uid0 = p.uid
        for it in range(4):
            p.lines = []
            p.uid = uid0
            p.hist = []
            p.alts = []
            self.body()
            if prev is not None and it >= 2 and prev == p.lines:
                break
            prev = p.lines
        else:
            raise RuntimeError('loop body did not converge')
        p.lines = head + p.lines
        p.hist = []
        p.alts = []
        p.label('L_finish')
        p.nop(16)
        if self.prof:
            I('s_memrealtime s[90:91]')
            I('s_memtime s[88:89]')
            p.wait_lg_all()
            I(f'v_writelane_b32 v{vP}, s90, 61')
            I(f'v_writelane_b32 v{vP}, s88, 62')
            I(f'v_mov_b32 v{TMP}, v{vP}')
            self.dump_prof(1)
        I('s_cmp_lg_u32 s2, 0')
        I('s_cbranch_scc1 L_end')
        I(f's_cmp_lg_u32 {sW}, 0')
        I('s_cbranch_scc1 L_end')
        I(f'v_mov_b32 v{TMP+2}, s{TAG}')
        I(f'v_mov_b32 v{TMP+3}, s{TAG+1}')
        I(f'v_mov_b32 {vFL}, 0')
        I('s_mov_b64 exec, 1')
        I(f'buffer_store_dwordx2 {vr(TMP + 2, 2)}, {vFL}, {WS}, 0 offen')
        p.label('L_end')
        I('s_endpgm')
        p.label('L_timeout')
        I(f'v_mov_b32 v{TMP}, {sCNT}')
        I(f'v_mov_b32 v{TMP+1}, 0')
        I('s_mov_b64 exec, 1')
        I(f'global_store_dword v{TMP+1}, v{TMP}, {sDBG}')
        I('s_endpgm')
        p.label('L_codeend')
        return self.wrap(p.text())

    def wrap(self, body):
        ref = open(os.path.join(os.path.dirname(os.path.abspath(__file__)), '..', 'cdna_kernels', NAME + '.s.ref')).read()
        hdr = []
        for line in ref.splitlines():
            if line.startswith('; @launch'):
                break
            hdr.append(line)
        out = '\n'.join(hdr) + '\n'
        out += f'; @launch grid=(256,1,1) block=(256,1,1) lds={LDS_BYTES}\n'
        out += '.amdgcn_target "amdgcn-amd-amdhsa--gfx950"\n.text\n'
        out += f'.globl {NAME}_kernel\n.p2align 8\n.type {NAME}_kernel,@function\n{NAME}_kernel:\n'
        out += body
        out += f'''.section .rodata,"a"
.p2align 6
.amdhsa_kernel {NAME}_kernel
  .amdhsa_next_free_vgpr 512
  .amdhsa_next_free_sgpr 96
  .amdhsa_accum_offset 256
  .amdhsa_group_segment_fixed_size 0
  .amdhsa_kernarg_size 88
  .amdhsa_user_sgpr_count 2
  .amdhsa_user_sgpr_kernarg_segment_ptr 1
  .amdhsa_system_sgpr_workgroup_id_x 1
.end_amdhsa_kernel
'''
        return out


if __name__ == '__main__':
    import argparse
    ap = argparse.ArgumentParser()
    ap.add_argument('-o', default=None)
    ap.add_argument('--stop', default=None)
    ap.add_argument('--prof', action='store_true')
    ap.add_argument('--fast', action='store_true')
    ap.add_argument('--map', type=int, default=1)
    ap.add_argument('--inplace', action='store_true')
    ap.add_argument('--nt', action='store_true')
    ap.add_argument('--touch', action='store_true')
    a = ap.parse_args()
    g = Gen(stop=a.stop, prof=a.prof, fast=a.fast, mapping=a.map, inplace=a.inplace, nt=a.nt, touch=a.touch)
    txt = g.build()
    path = a.o or os.path.join(os.path.dirname(os.path.abspath(__file__)), '..', 'cdna_kernels', NAME + '.s')
    open(path, 'w').write(txt)
    if a.prof:
        open(path + '.stamps', 'w').write('\n'.join(g.stamps))
    print('wrote', path, 'lines', txt.count('\n'), 'late fill', g.late)
```

```python
import re

REG_RE = re.compile(r'^(-|\|)?(abs\()?([vas])(\d+|\[(\d+):(\d+)\])\)?\|?$')
TRANS = ('v_exp_f32', 'v_log_f32', 'v_rcp_f32', 'v_rsq_f32', 'v_sqrt_f32', 'v_sin_f32', 'v_cos_f32')


def parse_reg(tok):
    tok = tok.strip()
    if tok in ('vcc', 'exec', 'm0', 'scc'):
        return [tok]
    if tok in ('vcc_lo', 'vcc_hi'):
        return ['vcc']
    if tok in ('exec_lo', 'exec_hi'):
        return ['exec']
    m = REG_RE.match(tok)
    if not m:
        return []
    kind = m.group(3)
    if m.group(5) is not None:
        lo, hi = int(m.group(5)), int(m.group(6))
    else:
        lo = hi = int(m.group(4))
    return [f'{kind}{i}' for i in range(lo, hi + 1)]


class Ins:
    __slots__ = ('text', 'op', 'kind', 'rd', 'wr', 'srcc', 'srcab', 'data', 'cost', 'tok')

    def __init__(self, text):
        self.text = text
        body = text.split(';')[0].strip()
        parts = body.split(None, 1)
        op = parts[0]
        self.op = op
        rest = parts[1] if len(parts) > 1 else ''
        ops, depth, cur = [], 0, ''
        for ch in rest:
            if ch in '[(':
                depth += 1
            if ch in '])':
                depth -= 1
            if ch == ',' and depth == 0:
                ops.append(cur.strip())
                cur = ''
            else:
                cur += ch
        if cur.strip():
            ops.append(cur.strip())
        mods = []
        if ops:
            last = ops[-1].split()
            ops[-1] = last[0]
            mods = last[1:]
        regs = [parse_reg(o) for o in ops]
        rd, wr = [], []
        self.srcc, self.srcab, self.data = [], [], []
        self.tok = None
        flat = lambda ls: [r for l in ls for r in l]
        if op.startswith('v_mfma'):
            self.kind = 'mfma'
            wr = regs[0]
            self.srcab = regs[1] + regs[2]
            self.srcc = regs[3]
            rd = self.srcab + self.srcc
        elif op.startswith('buffer_load') or op.startswith('global_load'):
            if 'lds' in mods or op.startswith('global_load_lds'):
                self.kind = 'dma'
                rd = flat(regs) + ['m0']
            else:
                self.kind = 'vload'
                wr = regs[0]
                rd = flat(regs[1:])
        elif op.startswith('buffer_store'):
            self.kind = 'vstore'
            rd = flat(regs)
            self.data = regs[0]
        elif op.startswith('global_store'):
            self.kind = 'vstore'
            rd = flat(regs)
            self.data = regs[1]
        elif op.startswith('buffer_atomic') or op.startswith('global_atomic'):
            self.kind = 'vload' if 'sc0' in mods else 'vstore'
            rd = flat(regs)
            if 'sc0' in mods:
                wr = regs[0]
        elif op.startswith('buffer_') :
            self.kind = 'vstore'
        elif op.startswith('ds_read') or op.startswith('ds_bpermute') or op.startswith('ds_swizzle'):
            self.kind = 'dsload'
            wr = regs[0]
            rd = flat(regs[1:])
        elif op.startswith('ds_'):
            self.kind = 'dsstore'
            rd = flat(regs)
        elif op.startswith('s_load') or op.startswith('s_memtime') or op.startswith('s_memrealtime') or op.startswith('s_buffer_load'):
            self.kind = 'smem'
            wr = regs[0]
            rd = flat(regs[1:])
        elif op.startswith('s_'):
            self.kind = 'salu'
            if op.startswith('s_cmp') or op.startswith('s_bitcmp'):
                rd = flat(regs)
            elif op in ('s_waitcnt', 's_nop', 's_barrier', 's_endpgm', 's_sleep', 's_setprio') or op.startswith('s_cbranch') or op == 's_branch':
                pass
            else:
                wr = regs[0] if regs else []
                rd = flat(regs[1:])
                if 'saveexec' in op:
                    wr = wr + ['exec']
        elif op.startswith('v_'):
            self.kind = 'valu'
            if (op.startswith('v_permlane') and 'swap' in op) or op.startswith('v_swap'):
                wr = regs[0] + regs[1]
                rd = regs[0] + regs[1]
            elif op.startswith('v_cmpx'):
                wr = regs[0] + ['exec']
                rd = flat(regs[1:])
            elif op.startswith(('v_add_co', 'v_sub_co', 'v_addc_co', 'v_subb_co', 'v_mad_u64')):
                wr = regs[0] + regs[1]
                rd = flat(regs[2:])
            else:
                wr = regs[0]
                rd = flat(regs[1:])
                if op.startswith(('v_fmac', 'v_dot2c', 'v_writelane')):
                    rd = rd + regs[0]
                if 'dpp' in op or any(m.startswith(('row_', 'quad_perm', 'wave_')) for m in mods):
                    rd = rd + regs[0]
        else:
            raise ValueError('unknown instruction: ' + text)
        self.rd, self.wr = rd, wr
        base = op.replace('_e32', '').replace('_e64', '')
        if self.kind == 'mfma':
            self.cost = 8
        elif base in TRANS or op.startswith('v_permlane'):
            self.cost = 8
        else:
            self.cost = 4

    @property
    def is_trans(self):
        return self.op.replace('_e32', '').replace('_e64', '') in TRANS

    @property
    def is_dpp(self):
        return 'dpp' in self.op or ' row_' in self.text or 'quad_perm' in self.text

    @property
    def passes(self):
        return 8 if '32x32' in self.op else 4


class Tok:
    def __init__(self, cnt, seq, certain):
        self.cnt, self.seq, self.certain = cnt, seq, certain
        self.done = False


class Prog:
    def __init__(self):
        self.lines = []
        self.hist = []
        self.vm = []
        self.lg = []
        self.sm = []
        self.pend = {}
        self.div = 0
        self.nins = 0
        self.uid = 0
        self.nops = 0
        self.alts = []
        self.cyc = 0

    def raw(self, text):
        self.lines.append(text)

    def comment(self, text):
        self.lines.append('    ; ' + text)

    def label(self, name):
        self.lines.append(name + ':')

    def newlabel(self, base='L'):
        self.uid += 1
        return f'{base}_{self.uid}'

    def _need(self, ins):
        n = self._need1(ins, self.hist)
        for a in self.alts:
            n = max(n, self._need1(ins, a[0]))
        return n

    def _need1(self, ins, hist):
        need = 0
        dist = 0
        rd, wr = set(ins.rd), set(ins.wr)
        isv = ins.kind == 'valu'
        for prev, st in reversed(hist):
            if dist >= 20:
                break
            req = 0
            pw = set(prev.wr)
            if prev.kind == 'mfma':
                n = 12 if prev.passes == 8 else 8
                if ins.kind == 'mfma':
                    if pw & set(ins.srcab):
                        req = max(req, n)
                    if pw & set(ins.srcc):
                        if not (prev.wr == ins.srcc and prev.passes == ins.passes):
                            req = max(req, n - 2)
                    elif pw & wr:
                        req = max(req, n)
                else:
                    if pw & (rd | wr):
                        req = max(req, n)
                    if (isv or ins.kind in ('vload', 'dsload')) and set(prev.srcc) & wr:
                        req = max(req, 7 if prev.passes == 8 else 3)
            elif prev.kind == 'valu':
                pv = {r for r in pw if r[0] in 'va' and r not in ('vcc',)}
                ps = {r for r in pw if r[0] == 's' or r == 'vcc'}
                if ins.kind == 'mfma':
                    if pv & rd:
                        req = max(req, 2)
                    if 'exec' in pw:
                        req = max(req, 4)
                if isv:
                    if ins.op.startswith('v_permlane') and pv & rd:
                        req = max(req, 2)
                    if ins.is_dpp and pv & rd:
                        req = max(req, 2)
                    if ins.op.startswith(('v_readfirstlane', 'v_readlane')) and pv & rd:
                        req = max(req, 1)
                    if prev.is_trans and pv & rd and not ins.is_trans:
                        req = max(req, 1)
                    if prev.is_trans and pv & rd and ins.is_trans:
                        req = max(req, 1)
                    if ps & rd:
                        req = max(req, 4 if ins.op.startswith(('v_readlane', 'v_writelane')) else 2)
                    if ins.op.startswith('v_cndmask') and 'vcc' in ps and 'vcc' in ins.text:
                        req = max(req, 2)
                    if 'exec' in pw and (ins.is_dpp):
                        req = max(req, 5)
                    if 'exec' in pw and ins.op.startswith(('v_readlane', 'v_readfirstlane', 'v_writelane', 'v_permlane')):
                        req = max(req, 4)
                    if ('sdwa' in prev.op or 'op_sel' in prev.text) and not prev.op.startswith('v_pk_') and pv & (rd | wr):
                        req = max(req, 1)
                if prev.op.startswith('v_dot2'):
                    same = ins.op == prev.op
                    if pv & (rd | wr):
                        if same and ins.wr == prev.wr and not (pv & set(parse_srcab(ins))):
                            pass
                        else:
                            req = max(req, 3)
                if ins.kind in ('vload', 'vstore', 'dma') and ps & rd:
                    req = max(req, 5)
                if prev.is_trans and ins.kind in ('vstore', 'dsstore', 'vload', 'dsload', 'dma', 'mfma') and pv & rd:
                    req = max(req, 2)
            elif prev.kind == 'vstore':
                if len(prev.data) >= 3 and set(prev.data) & wr:
                    req = max(req, 2)
            elif prev.kind == 'dsstore':
                pass
            elif prev.kind == 'salu':
                if 'm0' in pw and ins.kind == 'dma':
                    req = max(req, 1)
                if 'exec' in pw and ins.kind == 'mfma':
                    req = max(req, 0)
            need = max(need, req - dist)
            dist += st
        return need

    def _push(self, ins, states=1):
        self.lines.append('    ' + ins.text)
        self.hist.append((ins, states))
        if len(self.hist) > 40:
            self.hist = self.hist[-30:]
        for a in self.alts:
            a[0].append((ins, states))
            a[1] += states
        self.alts = [a for a in self.alts if a[1] < 24]
        self.nins += 1
        self.cyc += ins.cost if states == 1 else 4 * states

    def nop(self, n):
        while n > 0:
            k = min(n, 16)
            self._push(Ins(f's_nop {k-1}'), k)
            self.nops += 1
            n -= k

    def _count_after(self, lst, tok):
        i = lst.index(tok)
        return sum(1 for t in lst[i + 1:] if t.certain or t.certain is None and False)

    def _retire(self, lst, tok):
        i = lst.index(tok)
        for t in lst[:i + 1]:
            t.done = True
        del lst[:i + 1]

    def wait(self, *toks):
        vmn, lgn = None, None
        for tok in toks:
            if tok is None or tok.done:
                continue
            if tok.cnt == 'vm':
                n = self._younger(self.vm, tok)
                vmn = n if vmn is None else min(vmn, n)
            elif tok.cnt == 'lg':
                n = 0 if self.sm else self._younger(self.lg, tok)
                lgn = n if lgn is None else min(lgn, n)
            else:
                lgn = 0
        if vmn is None and lgn is None:
            return
        s = 's_waitcnt'
        if vmn is not None:
            s += f' vmcnt({min(vmn, 63)})'
        if lgn is not None:
            s += f' lgkmcnt({min(lgn, 15)})'
        self._push(Ins(s))
        for tok in toks:
            if tok is None or tok.done:
                continue
            if tok.cnt == 'vm':
                self._retire_div(self.vm, tok)
            elif tok.cnt == 'lg':
                self._retire_div(self.lg, tok)
        if lgn == 0:
            self._retire_all_lg()
        self._clean()

    def _younger(self, lst, tok):
        i = lst.index(tok)
        return sum(1 for t in lst[i + 1:] if t.certain == 0 or (self.div and t.certain == self.div))

    def _retire_div(self, lst, tok):
        i = lst.index(tok)
        keep = []
        for t in lst[:i + 1]:
            if self.div and t.certain != self.div:
                self.divdone.append(t)
                t.done = True
                keep.append(t)
            else:
                t.done = True
        lst[:i + 1] = keep

    def _retire_all_lg(self):
        if self.lg:
            self._retire_div(self.lg, self.lg[-1])
        if self.sm:
            self._retire_div(self.sm, self.sm[-1])

    def _clean(self):
        if not self.div:
            self.pend = {r: t for r, t in self.pend.items() if not t.done}

    def wait_vm_all(self):
        live = [t for t in self.vm if not t.done]
        self._push(Ins('s_waitcnt vmcnt(0)'))
        if self.vm:
            self._retire_div(self.vm, self.vm[-1])
        self._clean()

    def wait_lg_all(self):
        self._push(Ins('s_waitcnt lgkmcnt(0)'))
        self._retire_all_lg()
        self._clean()

    def begin_div(self):
        assert not self.div
        self.uid += 1
        self.div = self.uid
        self.divdone = []
        self.divhist = list(self.hist)

    def end_div(self):
        for t in self.divdone:
            t.done = False
        self.div = 0
        self.divdone = []
        self.alts.append([self.divhist, 0])
        self._clean()

    def pending(self, text):
        ins = Ins(text)
        return [t for t in (self.pend.get(r) for r in ins.rd + ins.wr) if t is not None and not t.done]

    def I(self, text, also=()):
        ins = text if isinstance(text, Ins) else Ins(text)
        toks = [t for t in also if t is not None and not t.done]
        for r in ins.rd + ins.wr:
            t = self.pend.get(r)
            if t is not None and not t.done:
                toks.append(t)
        if ins.kind in ('vload', 'vstore', 'dma'):
            live = [t for t in self.vm if not t.done]
            if len(live) >= 60:
                toks.append(live[len(live) - 56])
        if toks:
            self.wait(*toks)
        n = self._need(ins)
        if n > 0:
            self.nop(n)
        self._push(ins)
        tok = None
        if ins.kind in ('vload', 'vstore', 'dma'):
            tok = Tok('vm', 0, self.div)
            self.vm.append(tok)
            live = sum(1 for t in self.vm if not t.done)
            assert live <= 63, 'too many outstanding VMEM ops: %d' % live
        elif ins.kind in ('dsload', 'dsstore'):
            tok = Tok('lg', 0, self.div)
            self.lg.append(tok)
        elif ins.kind == 'smem':
            tok = Tok('sm', 0, self.div)
            self.sm.append(tok)
        if ins.kind in ('vload', 'dsload', 'smem'):
            for r in ins.wr:
                if r != 'v21':
                    self.pend[r] = tok
        ins.tok = tok
        return tok

    def text(self):
        return '\n'.join(self.lines) + '\n'


def parse_srcab(ins):
    return [r for r in ins.rd if r not in ins.wr]
```

```python
S, D, H, DH, F = 2048, 512, 32, 16, 1792
NTB = 64

WS_BYTES = 0x1900000
EPOCH = 0x0
FLA = 0x001000
FLB = 0x009000
FLI = 0x011000
FLH = 0x015000
PROF = 0x060000
W13 = 0x100000
BLK = 33 * 1024
W2 = 0x680000
W4 = 0x700000
XF = 0x900000
ST = 0xB00000
OF = 0xC00000
HF = 0xE00000
KVP = 0x1600000
KVW = 10240
KVP_SZ = 64 * KVW

RING = 0
SCR = 4 * BLK
LDS_BYTES = 163840
TRP = 200
CST = SCR + 128 * TRP


def pi(hf, j):
    return 8 * (j >> 2) + 4 * hf + (j & 3)
```

```python
import sys, os, math, struct
sys.path.insert(0, os.path.dirname(os.path.abspath(__file__)))
from asmlib import Prog, Ins
from layout import *

NAME = 'interleave_layers__linear_kernel_hedgehog__geglu_ffn__prompt'


def f2u(x):
    return struct.unpack('<I', struct.pack('<f', x))[0]


def hx(x):
    return '0x%x' % x


def vr(a, n=1, k='v'):
    return f'{k}{a}' if n == 1 else f'{k}[{a}:{a+n-1}]'


def off(x):
    return f' offset:{x}' if x else ''


WS, WSP, WSS, AUX, OUT, INS = 's[4:7]', 's[8:11]', 's[12:15]', 's[16:19]', 's[20:23]', 's[24:27]'
TAG = 28
TAGS = 's[28:29]'
sG, sJ, sW = 's30', 's31', 's32'
sW8K, sW13, sQ4, sW13c, sDM, sW4t = 's33', 's34', 's35', 's36', 's37', 's38'
sT0, sT1, sT2, sT3 = 's39', 's62', 's63', 's64'
sH = 40
sDBG = 's[58:59]'
sXin, sSin, sOout = 's65', 's66', 's67'
sOin = ['s68', 's96']
sXu = ['s69', 's70']
sSu = 's71'
sHout, sCNT, sXCC, sKV, sFI = 's73', 's74', 's75', 's76', 's77'
sM = 's[78:79]'
sONE = 's80'
sW2 = ['s81', 's82']
sW4 = ['s83', 's84']
sOu = ['s85', 's86']
sFHo, sFHi, sLD, sLD2, sC = 's87', 's92', 's93', 's94', 's95'
sTB, sTBP = 's97', 's98'
sMODE = 's8'
sW4K = 's11'
sFSo, sFSi = 's9', 's10'
sRW = ['s99', 's100', 's101', 's3']
vL16, vL4 = 'v0', 'v1'
vRB = [2, 3, 4, 5]
vTW, vTA, vTB_, vKV, vKZ, vGZ, vGW, vL16P, vOUT, vHF = ('v%d' % i for i in range(6, 16))
vTAG = 16
vFB = 'v18'
vFI = 'v19'
vSC = 'v20'
PQ = 24
RES = 32
MF = 40
vC1, vC3, vS2, vRS = 'v44', 'v45', 'v46', 'v47'
TMP = 48
vCK = 60
vFL = 'v62'
vFS = 'v62'
vCS = 'v63'
vP2 = 23
ACC = 64
X = 128
STG = 224


def A(i):
    return ACC + 16 * i


class Gen:
    def __init__(self, stop=None, prof=False, fast=True, mapping=1, opts=None):
        self.p = Prog()
        self.stop = stop
        self.prof = prof
        self.fast = fast
        self.mapping = mapping
        self.o = dict(LA=11, nt0=2, gapF=2, p0mode=0)
        self.o.update(opts or {})
        self.nt0 = ' nt' if self.o.get('nt0', 0) >= 1 else ''
        self.nt0x = ' nt' if self.o.get('nt0', 0) >= 2 else ''
        self.nstamp = 0
        self.stamps = []
        self.dma = {}
        self.stg = 0
        self.late = 0
        self.stubs = []
        self.part = {}
        self.bgq = None
        self.inbg = False

    def I(self, t, also=()):
        r = self.p.I(t, also)
        if self.bgq and not self.inbg and self.p.cyc - self.bglast >= self.bgper:
            self.inbg = True
            self.bgq.pop(0)()
            self.bglast = self.p.cyc
            self.inbg = False
        return r

    def bg_on(self, q, period):
        self.bgq, self.bgper, self.bglast = q, period, self.p.cyc - period

    def bg_off(self, flush=True):
        q, self.bgq = self.bgq, None
        if flush and q:
            self.run(list(q))
            del q[:]

    def stamp(self, name, again=False):
        if not self.prof:
            return
        if self.o.get('fine') and name in ('kernarg', 'crit loads issued', 'all loads issued', 'barrier 1', 'p0 crit issued', 'p0 crit drained', 'rest issued', 'rest loaded', 'p1 kv partial', 'k,v in LDS'):
            return
        p = self.p
        if again:
            idx = len(self.stamps) - 1 - self.stamps[::-1].index(name)
        else:
            idx = self.nstamp
            self.stamps.append(name)
            self.nstamp += 1
        p.I(f's_memtime {sM}')
        p.wait_lg_all()
        p.I(f'v_writelane_b32 v{vP2}, s78, {idx}')
        assert self.nstamp <= 60

    def srd(self, base, lo, hi, nrec):
        I = self.I
        I(f's_mov_b32 s{base}, s{lo}')
        I(f's_and_b32 s{base+1}, s{hi}, 0xffff')
        if nrec is not None:
            I(f's_mov_b32 s{base+2}, {hx(nrec)}')
        I(f's_mov_b32 s{base+3}, 0x20000')

    def run(self, items):
        for it in items:
            if isinstance(it, tuple):
                it = it[1]
            if isinstance(it, str):
                self.I(it)
            else:
                it()

    def st_group(self, data, n, voff, soff, imm=0):
        op = {1: 'buffer_store_dword', 2: 'buffer_store_dwordx2', 4: 'buffer_store_dwordx4'}[n]
        en = ' offen' if voff != 'off' else ''
        p = self.p
        txt = f'{op} {vr(data, n)}, {voff}, {WS}, {soff}{en}{off(imm)}'
        if not self.fast:
            return [p.I(txt + ' sc1')]
        stub, back = p.newlabel('ss'), p.newlabel('sb')
        p.wait(*p.pending(txt))
        p.I(f's_cmp_lg_u32 {sMODE}, 0')
        p.I(f's_cbranch_scc1 {stub}')
        tok = p.I(txt)
        p.label(back)

        def emit():
            p.label(stub)
            p.nop(12)
            p.I(txt + ' sc1')
            p.I(f's_branch {back}')
        self.stubs.append(emit)
        return [tok]

    def spin_tail(self, lp, code, sleep):
        I = self.p.I
        if sleep:
            I(f's_sleep {sleep}')
        I(f's_add_u32 {sCNT}, {sCNT}, 1')
        I(f's_cmp_lt_u32 {sCNT}, 0x20000')
        I(f's_cbranch_scc1 {lp}')
        I(f's_mov_b32 {sCNT}, {code}')
        I('s_branch L_timeout')

    def poll(self, vo, so, imm=0, mask_low=False, code=1, sleep=1, pre=None):
        p, I = self.p, self.p.I
        lp, done, chk = p.newlabel('poll'), p.newlabel('polled'), p.newlabel('pchk')
        I(f's_mov_b32 {sCNT}, 0')
        if pre is not None:
            p.wait(pre)
            I(f's_branch {chk}')
            p.label(lp)
            p.raw(f'    buffer_load_dwordx2 {vr(vCK, 2)}, {vo}, {WS}, {so} offen{off(imm)} sc1')
            p.raw('    s_waitcnt vmcnt(0)')
            p.label(chk)
        else:
            p.label(lp)
            I(f'buffer_load_dwordx2 {vr(vCK, 2)}, {vo}, {WS}, {so} offen{off(imm)} sc1')
            p.wait_vm_all()
        if mask_low:
            I(f'v_and_b32 v{TMP}, -16, v{vCK}')
            I(f'v_mov_b32 v{TMP+1}, v{vCK+1}')
            I(f'v_cmp_ne_u64 vcc, {TAGS}, {vr(TMP, 2)}')
        else:
            I(f'v_cmp_ne_u64 vcc, {TAGS}, {vr(vCK, 2)}')
        I(f's_cbranch_vccz {done}')
        if mask_low:
            I('s_mov_b64 exec, vcc')
        self.spin_tail(lp, code, sleep)
        p.label(done)
        if mask_low:
            I('s_mov_b64 exec, -1')

    def flag_issue(self, vo, so, imm=0):
        return self.I(f'buffer_load_dwordx2 {vr(vCK, 2)}, {vo}, {WS}, {so} offen{off(imm)} sc1')

    def flag_check(self, vo, so, imm, code):
        p = self.p
        stub, back = p.newlabel('fstub'), p.newlabel('fback')
        p.I(f'v_cmp_ne_u64 vcc, {TAGS}, {vr(vCK, 2)}')
        if self.o.get('fine'):
            self.stamp(f'flag {code} loaded')
            p.I(f'v_cmp_ne_u64 vcc, {TAGS}, {vr(vCK, 2)}')
        p.I(f's_cbranch_vccnz {stub}')
        p.label(back)
        if self.o.get('fine'):
            self.stamp(f'flag {code} ok')

        def emit():
            lp = p.newlabel('fl')
            p.label(stub)
            p.I(f's_mov_b32 {sCNT}, 0')
            p.label(lp)
            p.I(f'buffer_load_dwordx2 {vr(vCK, 2)}, {vo}, {WS}, {so} offen{off(imm)} sc1')
            p.wait_vm_all()
            p.I(f'v_cmp_ne_u64 vcc, {TAGS}, {vr(vCK, 2)}')
            p.I(f's_cbranch_vccz {back}')
            self.spin_tail(lp, code, 1)
        self.stubs.append(emit)

    def hop(self, slot, toks, before=(), stats=None, extra_wait=()):
        p, I = self.p, self.I
        self.run(before)
        p.wait(*toks)
        I('s_barrier')
        skip = p.newlabel('hop')
        I(f's_cmp_lg_u32 {sW}, 0')
        I(f's_cbranch_scc1 {skip}')
        p.begin_div()
        I('s_mov_b64 exec, 1')
        self.st_group(vTAG, 2, 'off', sFI, slot * 128)
        I('s_mov_b64 exec, -1')
        self.poll(vFI, '0', slot * 128, code=16 + slot, sleep=0)
        p.end_div()
        p.label(skip)
        if stats is not None:
            self.stats_out(stats)
        p.wait(*extra_wait)
        I('s_barrier')

    def slot(self, L, tile):
        return (10 * L + tile) % 4

    def perm(self, L, t):
        return 6 - t if (L == 1 and self.o.get('rev', 1)) else t

    def dma_block(self, L, tile):
        toks = []
        self.dma[(L, tile)] = toks
        I = self.I
        lb = RING + self.slot(L, tile) * BLK
        if tile >= 3:
            tile = 3 + self.perm(L, tile - 3)
        steps = []

        def grp(k):
            def f():
                I(f's_add_u32 m0, {sW4K}, {lb + k * 16384}')
                I(f's_add_u32 {sDM}, {sW13}, {tile * BLK + k * 16384}')
                toks.append(I(f'buffer_load_dwordx4 {vL16}, {WS}, {sDM} offen lds'))
            return f

        def one(i):
            def f():
                toks.append(I(f'buffer_load_dwordx4 {vL16}, {WS}, {sDM} offen offset:{i * 1024} lds'))
            return f

        def cs():
            I(f's_add_u32 m0, {sQ4}, {lb}')
            I(f's_add_u32 {sDM}, {sW13c}, {tile * BLK}')
            toks.append(I(f'buffer_load_dword {vCS}, {WS}, {sDM} offen lds'))
        for k in range(2):
            steps += [grp(k), one(1), one(2), one(3)]
        steps.append(cs)
        return steps

    def need(self, L, *tiles):
        toks = []
        for t in tiles:
            if (L, t) == (1, 3) and self.o.get('rev', 1):
                continue
            assert len(self.dma[(L, t)]) == 9, (L, t)
            toks += self.dma[(L, t)]
        return toks

    def w4_loads(self):
        I = self.I
        out = []
        for cbl in range(2):
            for pl in range(4):
                for t in range(7):
                    def f(cbl=cbl, pl=pl, t=t):
                        if t == 0:
                            I(f's_add_u32 {sW4t}, {sC}, {pl}')
                            I(f's_and_b32 {sW4t}, {sW4t}, 3')
                            I(f's_mul_i32 {sW4t}, {sW4t}, 7168')
                            I(f's_add_u32 {sW4t}, {sW4t}, {sW4[cbl]}')
                        if t == 4:
                            I(f's_add_u32 {sW4t}, {sW4t}, 4096')
                        I(f'buffer_load_dwordx4 {vr(4 * (cbl * 28 + pl * 7 + t), 4, "a")}, {vL16P}, {WS}, {sW4t} offen{off((t % 4) * 1024)}')
                    out.append(f)
        return out

    def sched(self, L, win):
        out = []
        for it in self.plan[L].get(win, []):
            if isinstance(it, tuple):
                key = it[:2]
                if key not in self.part:
                    self.part[key] = self.dma_block(*key)
                n = 4 if (len(it) > 2 and it[2] == 'a') else 9
                out += self.part[key][:n]
                del self.part[key][:n]
            elif it == 'touch':
                out.append(lambda: self.I(f'buffer_load_dword v21, v22, {WS}, 0 offen'))
            elif it.startswith('w4:'):
                n = int(it[3:])
                out += self.w4q[:n]
                del self.w4q[:n]
        return out

    def stage(self):
        r = vr(STG + 4 * (self.stg % 8), 4, 'a')
        self.stg += 1
        return r

    def wread(self, slot, idx):
        r = self.stage()
        tok = self.I(f'ds_read_b128 {r}, v{vRB[slot]} offset:{idx * 1024}')
        return r, tok

    def mstream(self, steps, events=None, fill=None, depth=6, cuts=(), bg=None, bg_gap=2, pre=None, bg_start=0):
        p, I = self.p, self.I
        events = events or {}
        pre = pre or {}
        fill = list(fill or [])
        cuts = dict(cuts)
        bg = bg if bg is not None else []
        n = len(steps)
        regs = [None] * n
        toks = [None] * n
        nread = 0
        lastread_gap = -10
        last_bg = -100

        def issue_read(g):
            nonlocal nread, lastread_gap
            if nread >= n:
                return False
            if nread in cuts:
                if g - lastread_gap < 2 and nread - g > 2:
                    return False
                p.wait(toks[nread - 1])
                cuts.pop(nread)()
            _, slot, idx, _, _ = steps[nread]
            if slot is None:
                regs[nread] = idx
            else:
                regs[nread], toks[nread] = self.wread(slot, idx)
            nread += 1
            lastread_gap = g
            return True

        def mtext(g):
            acc, slot, idx, breg, first = steps[g]
            c = '0' if first else vr(acc, 16)
            return f'v_mfma_f32_32x32x16_bf16 {vr(acc, 16)}, {regs[g]}, {breg}, {c}'
        while nread < min(depth, n) and issue_read(-1 if nread not in cuts else 10**6):
            pass
        for g in range(n):
            while nread <= g:
                issue_read(10**6)
            due = [i for i, f in enumerate(fill) if len(f) > 2 and f[2] <= g]
            if due:
                self.late += due[-1] + 1
                self.run(fill[:due[-1] + 1])
                del fill[:due[-1] + 1]
            self.run(pre.get(g, []))
            also = []
            if toks[g] is not None and not toks[g].done:
                k = min(g + 2, nread - 4)
                if k > g:
                    also = [toks[k]]
            I(mtext(g), also)
            start = p.cyc
            k = 0
            while nread < min(n, g + 1 + depth) and k < 2:
                if not issue_read(g):
                    break
                k += 1
            self.run(events.get(g, []))
            if bg and g >= bg_start and g - last_bg >= bg_gap:
                bg.pop(0)()
                last_bg = g
            budget = 24
            if g + 1 < n and regs[g + 1] is not None and p.pending(mtext(g + 1)):
                budget -= 4
            while fill and fill[0][0] <= g:
                it = fill[0][1]
                cost = Ins(it).cost if isinstance(it, str) else 4
                if p.cyc - start + cost > budget:
                    break
                fill.pop(0)
                self.run([it])
        return fill

    def prologue(self):
        p, I = self.p, self.I
        I('s_cmp_ge_u32 s2, 256')
        I('s_cbranch_scc1 L_end')
        I('s_load_dwordx16 s[40:55], s[0:1], 0x0')
        I('s_load_dwordx4 s[56:59], s[0:1], 0x40')
        I('s_load_dwordx2 s[60:61], s[0:1], 0x50')
        I('v_lshrrev_b32 v2, 6, v0')
        I(f'v_readfirstlane_b32 {sW}, v2')
        I('v_and_b32 v63, 63, v0')
        I(f'v_lshlrev_b32 {vL16}, 4, v63')
        I(f'v_lshlrev_b32 {vL4}, 2, v63')
        I(f's_getreg_b32 {sXCC}, hwreg(HW_REG_XCC_ID, 0, 4)')
        I(f's_and_b32 {sT0}, s2, 7')
        I(f's_lshr_b32 {sT1}, s2, 3')
        if self.mapping == 1:
            I(f's_and_b32 {sJ}, {sT1}, 15')
            I(f's_lshr_b32 {sT1}, {sT1}, 4')
            I(f's_lshl_b32 {sG}, {sT0}, 1')
            I(f's_add_u32 {sG}, {sG}, {sT1}')
        else:
            I(f's_and_b32 {sJ}, {sT0}, 1')
            I(f's_lshl_b32 {sJ}, {sJ}, 3')
            I(f's_and_b32 {sT2}, {sT1}, 7')
            I(f's_add_u32 {sJ}, {sJ}, {sT2}')
            I(f's_lshr_b32 {sG}, {sT0}, 1')
            I(f's_lshl_b32 {sG}, {sG}, 2')
            I(f's_lshr_b32 {sT1}, {sT1}, 3')
            I(f's_add_u32 {sG}, {sG}, {sT1}')
        I(f's_mov_b32 {sONE}, 0x3f803f80')
        I('v_and_b32 v24, 31, v63')
        I('v_lshrrev_b32 v25, 5, v63')
        I('v_and_b32 v26, 15, v63')
        I('v_bfe_u32 v27, v63, 4, 1')
        I('v_lshrrev_b32 v28, 4, v63')
        I('v_lshrrev_b32 v29, 3, v63')
        I('v_and_b32 v30, 7, v63')
        I('v_lshlrev_b32 v30, 4, v30')
        I(f's_lshl_b32 {sTB}, {sG}, 2')
        I(f's_lshr_b32 {sT0}, {sJ}, 3')
        I(f's_lshl_b32 {sT0}, {sT0}, 1')
        I(f's_add_u32 {sTBP}, {sTB}, {sT0}')
        I(f's_add_u32 {sTB}, {sTB}, {sW}')
        I(f's_and_b32 {sC}, {sJ}, 7')
        I('s_and_b32 s65, s2, 7')
        I('s_lshr_b32 s66, s2, 3')
        I('v_lshrrev_b32 v31, 2, v26')
        I('v_lshl_add_u32 v31, v25, 2, v31')
        I('v_lshlrev_b32 v31, 7, v31')
        I('v_and_b32 v32, 3, v26')
        I('v_lshl_add_u32 v31, v32, 3, v31')
        I('v_lshlrev_b32 v33, 2, v24')
        I('s_lshl_b32 s67, s65, 7')
        I(f's_add_u32 s67, s67, {32 * 1024}')
        I(f's_lshl_b32 {sT0}, s66, 2')
        I(f's_add_u32 {sT0}, {sT0}, {sW}')
        I(f's_mul_i32 {sT1}, {sT0}, 147')
        I(f's_lshr_b32 {sT1}, {sT1}, 10')
        I(f's_mul_i32 {sT1}, {sT1}, 3')
        I(f's_add_u32 {sT0}, {sT0}, {sT1}')
        I(f's_add_u32 {sT0}, {sT0}, 3')
        I(f's_mul_i32 {sT0}, {sT0}, {BLK}')
        I(f's_add_u32 s68, {sT0}, {hx(W13)}')
        p.wait_lg_all()
        self.stamp('kernarg')
        I(f's_load_dwordx2 {TAGS}, s[60:61], 0x0')
        if self.o.get('tlb'):
            I('v_lshlrev_b32 v34, 21, v26')
            I(f'v_min_u32 v34, {hx(WS_BYTES - 4)}, v34')
            I('v_mov_b32 v35, s61')
            I('v_add_co_u32 v34, vcc, s60, v34')
            I('v_addc_co_u32 v35, vcc, 0, v35, vcc')
            for n, ptr in enumerate((40, 42, 44, 46, 50, 52, 54, 56)):
                I(f'v_writelane_b32 v34, s{ptr}, {16 + n}')
                I(f'v_writelane_b32 v35, s{ptr + 1}, {16 + n}')
            I('global_load_dword v21, v[34:35], off')
            if self.o['tlb'] == 2:
                p.wait_vm_all()
                self.stamp('tlb touch')
        self.srd(4, 60, 61, WS_BYTES)
        self.srd(16, 60, 61, 0)
        self.srd(20, 56, 57, S * D * 2)
        self.p0()

    def p0_common_loads(self):
        p, I = self.p, self.I
        I(f's_mov_b32 {sT0}, 3584')
        I(f'v_mul_lo_u32 v34, v29, {sT0}')
        I('v_add_u32 v34, v34, v30')
        I(f's_mul_i32 {sT1}, s65, {64 * 3584}')
        I(f's_lshl_b32 {sT0}, s66, 7')
        I(f's_add_u32 {sT1}, {sT1}, {sT0}')
        I(f's_mul_i32 {sT0}, {sW}, {16 * 3584}')
        I(f's_add_u32 {sT1}, {sT1}, {sT0}')
        I(f's_add_u32 {sT2}, {sT1}, {8 * 3584}')
        I(f's_lshl_b32 {sT3}, {sW}, 11')
        for m, ptr in enumerate((50, 52)):
            self.srd(24, ptr, ptr + 1, None)
            I('s_cmp_lt_u32 s2, 224')
            I(f's_cselect_b32 s26, {hx(D * F * 2)}, 0')
            I(f's_add_u32 m0, {sT3}, {8192 + m * 8192}')
            I(f'buffer_load_dwordx4 v34, {INS}, {sT1} offen{self.nt0} lds')
            I(f's_add_u32 m0, {sT3}, {8192 + m * 8192 + 1024}')
            I(f'buffer_load_dwordx4 v34, {INS}, {sT2} offen{self.nt0} lds')
        self.srd(24, 54, 55, F * D * 2)
        I('v_lshl_add_u32 v34, v29, 10, v30')
        I(f's_lshl_b32 {sT1}, s66, 16')
        I(f's_lshl_b32 {sT0}, s65, 7')
        I(f's_add_u32 {sT1}, {sT1}, {sT0}')
        I(f's_lshl_b32 {sT0}, {sW}, 14')
        I(f's_add_u32 {sT1}, {sT1}, {sT0}')
        I(f's_add_u32 {sT2}, {sT1}, 8192')
        I(f's_add_u32 m0, {sT3}, 24576')
        I(f'buffer_load_dwordx4 v34, {INS}, {sT1} offen{self.nt0} lds')
        I(f's_add_u32 m0, {sT3}, {24576 + 1024}')
        I(f'buffer_load_dwordx4 v34, {INS}, {sT2} offen{self.nt0} lds')

    def touch_addr(self):
        p, I = self.p, self.I
        I(f's_lshl_b32 {sT0}, {sTB}, 15')
        I(f's_lshl_b32 {sT1}, {sJ}, 11')
        I(f's_add_u32 {sT0}, {sT0}, {sT1}')
        I(f's_add_u32 {sT0}, {sT0}, {hx(OF)}')
        I(f's_lshl_b32 {sT1}, {sTB}, 10')
        I(f's_add_u32 {sT1}, {sT1}, {hx(FLH)}')
        I(f's_lshl_b32 {sT2}, {sG}, 10')
        I(f's_add_u32 {sT2}, {sT2}, {hx(FLI - 1024)}')
        I(f'v_mov_b32 v36, {sT1}')
        I(f'v_mov_b32 v37, {sT2}')
        I('v_cmp_gt_u32 vcc, 8, v26')
        I('v_cndmask_b32 v36, v37, v36, vcc')
        I(f'v_mov_b32 v37, {sT0}')
        I('v_cmp_eq_u32 vcc, 0, v27')
        I('v_cndmask_b32 v36, v36, v37, vcc')
        I('v_lshl_add_u32 v36, v26, 7, v36')
        I('v_mov_b32 v22, v36')

    def p0_early(self):
        p, I = self.p, self.I
        I('s_getpc_b64 s[70:71]')
        lab = p.newlabel('pc')
        p.label(lab)
        I(f's_sub_u32 s70, s70, {lab}-{NAME}_kernel')
        I('s_subb_u32 s71, s71, 0')
        I(f's_and_b32 {sT0}, s66, 7')
        I(f's_lshl_b32 {sT0}, {sT0}, 2')
        I(f's_add_u32 {sT0}, {sT0}, {sW}')
        I(f's_lshl_b32 {sT0}, {sT0}, 11')
        I('v_lshlrev_b32 v36, 7, v26')
        I(f'v_add_u32 v36, {sT0}, v36')
        I(f'v_min_u32 v36, L_codeend-{NAME}_kernel-4, v36')
        I('global_load_dword v39, v36, s[70:71]')
        I(f's_lshl_b32 {sT0}, {sJ}, 2')
        I(f's_add_u32 {sT0}, {sT0}, {sW}')
        I(f's_mul_i32 {sKV}, {sT0}, {KVW}')
        I(f's_add_u32 {sKV}, {sKV}, {hx(KVP)}')
        I(f'v_lshrrev_b32 {vKV}, 1, v28')
        I(f'v_lshlrev_b32 {vKV}, 8, {vKV}')
        I(f'v_lshl_add_u32 {vKV}, v26, 4, {vKV}')
        I(f'v_lshl_add_u32 {vKV}, v27, 3, {vKV}')
        I(f's_lshl_b32 {sT0}, {sG}, 9')
        I(f'v_add_u32 {vKV}, {sT0}, {vKV}')
        I(f's_lshl_b32 {sT0}, {sG}, 7')
        I(f's_add_u32 {sT0}, {sT0}, 8192')
        I(f'v_lshlrev_b32 {vKZ}, 3, v28')
        I(f'v_lshl_add_u32 {vKZ}, v32, 5, {vKZ}')
        I(f'v_add_u32 {vKZ}, {sT0}, {vKZ}')
        I('v_mov_b32 v40, -1')
        I('v_mov_b32 v41, -1')
        I(f's_add_u32 {sT0}, {sKV}, {KVP_SZ}')
        for so in (sKV, sT0):
            I(f'buffer_store_dwordx2 v[40:41], {vKV}, {WS}, {so} offen sc1')
            I(f'buffer_store_dwordx2 v[40:41], {vKZ}, {WS}, {so} offen sc1')

    def tr_tile(self, vaddr, base, imm0, kss):
        for n, ks in enumerate(kss):
            for rd in range(2):
                self.I(f'ds_read_b64_tr_b16 {vr(base + 4 * n + 2 * rd, 2)}, {vaddr} offset:{imm0 + ks * 2048 + rd * 1024}')

    def colsum(self, base, srd, so):
        I = self.I
        I('v_mov_b32 v56, 0')
        I('v_mov_b32 v57, 0')
        for r in range(0, 16, 2):
            I(f'v_dot2c_f32_bf16 v56, {sONE}, v{base + r}')
            I(f'v_dot2c_f32_bf16 v57, {sONE}, v{base + r + 1}')
        I('v_add_f32 v56, v56, v57')
        I('v_mov_b32 v57, v56')
        I('v_permlane32_swap_b32 v56, v57')
        I('v_add_f32 v56, v56, v57')
        I('v_cvt_pk_bf16_f32 v57, v56, v56')
        I('v_lshlrev_b32 v57, 16, v57')
        I('v_sub_f32 v57, v56, v57')
        I('v_cvt_pk_bf16_f32 v58, v56, v57')
        return I(f'buffer_store_dword v58, v33, {srd}, {so} offen sc1')

    def p0_q_loads(self, l_q):
        p, I = self.p, self.I
        p.label(l_q)
        p.begin_div()
        l_o, l_go = p.newlabel('p0o'), p.newlabel('p0go')
        I(f's_and_b32 s72, {sW}, 1')
        I('s_cmp_ge_u32 s2, 192')
        I(f's_cbranch_scc1 {l_o}')
        self.srd(24, 42, 43, D * 3 * D * 2)
        I(f's_mov_b32 s18, {hx(WS_BYTES)}')
        I(f's_mov_b32 {sT3}, 3072')
        I(f's_mul_i32 {sT1}, s65, {64 * 3072}')
        I(f's_lshl_b32 {sT0}, s66, 7')
        I(f's_add_u32 {sT1}, {sT1}, {sT0}')
        I('s_lshr_b32 s69, s66, 3')
        I('s_add_u32 s69, s69, 2')
        I('s_cmp_ge_u32 s69, 3')
        I(f's_cselect_b32 {sT0}, 3, 0')
        I(f's_sub_u32 s69, s69, {sT0}')
        I(f's_and_b32 {sT0}, s66, 7')
        I(f's_lshl_b32 {sT0}, {sT0}, 1')
        I(f's_add_u32 {sT0}, {sT0}, s72')
        I(f's_mul_i32 {sT0}, {sT0}, 10')
        I(f's_add_u32 s69, s69, {sT0}')
        I(f's_mul_i32 s69, s69, {BLK}')
        I(f's_add_u32 s69, s69, {hx(W13)}')
        I(f's_add_u32 {sLD2}, s69, s67')
        I(f's_lshl_b32 {sT0}, s65, 12')
        I(f's_add_u32 s69, s69, {sT0}')
        I(f's_branch {l_go}')
        p.label(l_o)
        self.srd(24, 46, 47, D * D * 2)
        I(f's_mov_b32 {sT3}, 1024')
        I(f's_sub_u32 {sT2}, s66, 24')
        I(f's_lshl_b32 {sT1}, {sT2}, 16')
        I(f's_lshl_b32 {sT0}, s65, 7')
        I(f's_add_u32 {sT1}, {sT1}, {sT0}')
        I('s_lshl_b32 s69, s65, 1')
        I('s_add_u32 s69, s69, s72')
        I('s_lshl_b32 s69, s69, 15')
        I(f's_lshl_b32 {sT0}, {sT2}, 12')
        I(f's_add_u32 s69, s69, {sT0}')
        I(f's_add_u32 s69, s69, {hx(W2)}')
        I(f's_mov_b32 {sLD2}, 0')
        p.label(l_go)
        I(f'v_mul_lo_u32 v52, v29, {sT3}')
        I('v_add_u32 v52, v52, v30')
        I(f's_lshl_b32 {sT3}, {sT3}, 3')
        I(f's_lshl_b32 {sT0}, s72, 2')
        I(f's_mul_i32 {sT0}, {sT0}, {sT3}')
        I(f's_add_u32 {sT1}, {sT1}, {sT0}')
        I(f's_lshl_b32 {sT2}, s72, 12')
        qt = []
        for pc in range(4):
            I(f's_add_u32 m0, {sT2}, {pc * 1024}')
            if pc:
                I(f's_add_u32 {sT1}, {sT1}, {sT3}')
            qt.append(I(f'buffer_load_dwordx4 v52, {INS}, {sT1} offen{self.nt0} lds'))
        p.end_div()

    def p0(self):
        p, I = self.p, self.I
        l_q, l_join, l_j1, l_q2 = p.newlabel('p0q'), p.newlabel('p0join'), p.newlabel('p0j1'), p.newlabel('p0q2')
        I(f's_cmp_ge_u32 {sW}, 2')
        I(f's_cbranch_scc1 {l_q}')
        p.begin_div()
        self.srd(24, 40, 41, S * D * 2)
        I(f's_lshr_b32 s69, {sJ}, 2')
        I(f's_lshl_b32 {sT0}, {sG}, 2')
        I(f's_add_u32 s69, s69, {sT0}')
        I(f's_and_b32 s72, {sJ}, 3')
        I('s_lshl_b32 s72, s72, 1')
        I(f's_add_u32 s72, s72, {sW}')
        I('v_lshlrev_b32 v52, 10, v24')
        I('v_lshl_add_u32 v52, v25, 4, v52')
        I(f's_lshl_b32 {sT0}, s69, 15')
        I(f's_lshl_b32 {sT1}, s72, 7')
        I(f's_add_u32 {sT1}, {sT1}, {sT0}')
        for u in range(4):
            I(f'buffer_load_dwordx4 {vr(X + 4 * u, 4)}, v52, {INS}, {sT1} offen{off(u * 32)}{self.nt0x}')
        I(f's_branch {l_j1}')
        p.end_div()
        self.p0_q_loads(l_q)
        p.label(l_j1)
        self.stamp('crit loads issued')
        self.setup1()
        self.stamp('all loads issued')
        I('s_barrier')
        self.stamp('barrier 1')
        I(f's_cmp_ge_u32 {sW}, 2')
        I(f's_cbranch_scc1 {l_q2}')
        p.begin_div()
        I(f's_lshl_b32 {sT0}, s69, 15')
        I(f's_lshl_b32 {sT1}, s72, 12')
        I(f's_add_u32 {sT1}, {sT1}, {sT0}')
        I(f's_add_u32 {sT1}, {sT1}, {hx(XF)}')
        I('v_mov_b32 v56, 0')
        I('v_mov_b32 v57, 0')
        for u in range(4):
            b = X + 4 * u
            I(f'v_permlane32_swap_b32 v{b}, v{b+2}')
            I(f'v_permlane32_swap_b32 v{b+1}, v{b+3}')
            I(f'buffer_store_dwordx4 {vr(b, 4)}, {vL16}, {WS}, {sT1} offen{off(u * 1024)} sc1')
        for r in range(16):
            I(f'v_dot2c_f32_bf16 v56, {sONE}, v{X + r}')
            I(f'v_dot2c_f32_bf16 v57, v{X + r}, v{X + r}')
        I('v_permlane32_swap_b32 v56, v57')
        I('v_add_f32 v56, v56, v57')
        I(f's_lshl_b32 {sT0}, s69, 11')
        I(f's_lshl_b32 {sT1}, s72, 8')
        I(f's_add_u32 {sT1}, {sT1}, {sT0}')
        I(f's_add_u32 {sT1}, {sT1}, {hx(ST)}')
        tx = I(f'buffer_store_dword v56, {vL4}, {WS}, {sT1} offen sc1')
        I(f's_branch {l_join}')
        p.end_div()
        p.label(l_q2)
        p.begin_div()
        I('v_lshl_add_u32 v52, v27, 5, v31')
        I(f's_lshl_b32 {sT0}, s72, 6')
        I(f'v_add_u32 v52, {sT0}, v52')
        self.tr_tile('v52', X, 0, range(4))
        for ks in range(4):
            I(f'buffer_store_dwordx4 {vr(X + 4 * ks, 4)}, {vL16}, {WS}, s69 offen{off(ks * 1024)} sc1')
        tq = self.colsum(X, AUX, sLD2)
        p.end_div()
        p.label(l_join)
        p.nop(2)
        self.stamp_early('p0 crit issued')
        if self.o.get('p0mode', 1) == 0:
            self.p0_common_loads()
        p.wait(tx, tq)
        p.wait_lg_all()
        I(f's_add_u32 s{TAG}, s{TAG}, 0x7f4a7c10')
        I(f's_addc_u32 s{TAG+1}, s{TAG+1}, 0x9e3779b9')
        I(f's_and_b32 s{TAG}, s{TAG}, -16')
        I(f'v_mov_b32 v{vTAG}, s{TAG}')
        I(f'v_mov_b32 v{vTAG+1}, s{TAG+1}')
        I('s_barrier')
        self.stamp_early('p0 crit drained')
        live = [t for t in p.vm if not t.done]
        self.post0(FLA, True)
        pre = None
        if live:
            p.wait(live[-1])
            self.stamp('rest loaded')
            skip = p.newlabel('p0pre')
            I(f's_cmp_lg_u32 {sW}, 0')
            I(f's_cbranch_scc1 {skip}')
            p.begin_div()
            pre = self.flag_issue(vFL, '0')
            p.end_div()
            p.label(skip)
            I('s_barrier')
        I('s_cmp_lt_u32 s2, 224')
        I(f's_cselect_b32 s18, {hx(WS_BYTES)}, 0')
        I('v_lshl_add_u32 v52, v27, 13, v31')
        I(f's_lshl_b32 {sT0}, {sW}, 5')
        I(f'v_add_u32 v52, {sT0}, v52')
        self.tr_tile('v52', X, 8192, range(4))
        I('v_lshl_add_u32 v53, v27, 5, v31')
        I(f's_lshr_b32 {sT0}, {sW}, 1')
        I(f's_lshl_b32 {sT0}, {sT0}, 6')
        I(f's_and_b32 {sT1}, {sW}, 1')
        I(f's_lshl_b32 {sT2}, {sT1}, 12')
        I(f's_add_u32 {sT0}, {sT0}, {sT2}')
        I(f'v_add_u32 v53, {sT0}, v53')
        self.tr_tile('v53', X + 16, 24576, range(2))
        I(f's_lshl_b32 {sT0}, s65, 12')
        I(f's_add_u32 {sT0}, {sT0}, s68')
        for ks in range(4):
            I(f'buffer_store_dwordx4 {vr(X + 4 * ks, 4)}, {vL16}, {AUX}, {sT0} offen{off(ks * 1024)} sc1')
        I(f's_lshl_b32 {sT0}, s65, 1')
        I(f's_lshr_b32 {sT2}, {sW}, 1')
        I(f's_add_u32 {sT0}, {sT0}, {sT2}')
        I(f's_mul_i32 {sT0}, {sT0}, 112')
        I(f's_lshl_b32 {sT2}, s66, 2')
        I(f's_add_u32 {sT0}, {sT0}, {sT2}')
        I(f's_lshl_b32 {sT1}, {sT1}, 1')
        I(f's_add_u32 {sT0}, {sT0}, {sT1}')
        I(f's_lshl_b32 {sT0}, {sT0}, 10')
        I(f's_add_u32 {sT0}, {sT0}, {hx(W4)}')
        for n in range(2):
            I(f'buffer_store_dwordx4 {vr(X + 16 + 4 * n, 4)}, {vL16}, {AUX}, {sT0} offen{off(n * 1024)} sc1')
        I(f's_add_u32 {sT0}, s68, s67')
        self.colsum(X, AUX, sT0)
        self.setup2()
        self.stamp('rest issued')
        skip = p.newlabel('p0poll')
        I(f's_cmp_lg_u32 {sW}, 0')
        I(f's_cbranch_scc1 {skip}')
        p.begin_div()
        self.poll(vFL, '0', 0, mask_low=True, code=1, sleep=2, pre=pre)
        if self.fast:
            I(f's_or_b32 {sT0}, s{TAG}, {sXCC}')
            I(f'v_cmp_ne_u32 vcc, {sT0}, v{vCK}')
            p.nop(1)
            I(f's_and_b32 {sT0}, vcc_lo, 0xffff')
            I(f'v_mov_b32 v{TMP}, {sT0}')
            I(f'ds_write_b32 {vSC}, v{TMP}')
        p.end_div()
        p.label(skip)
        p.wait_lg_all()
        I('s_barrier')
        if self.fast:
            I(f'ds_read_b32 v{TMP}, {vSC}')
        self.run(self.dma_block(0, 0) + self.dma_block(0, 1))
        if self.fast:
            I(f'v_readfirstlane_b32 {sMODE}, v{TMP}')
            p.nop(1)

    def stamp_early(self, name):
        self.stamp(name)

    def post0(self, base, with_xcc):
        p, I = self.p, self.I
        skip = p.newlabel('post')
        I(f's_cmp_lg_u32 {sW}, 3')
        I(f's_cbranch_scc1 {skip}')
        p.begin_div()
        if with_xcc:
            I(f'v_or_b32 v{TMP}, {sXCC}, v{vTAG}')
        else:
            I(f'v_mov_b32 v{TMP}, v{vTAG}')
        I(f'v_mov_b32 v{TMP+1}, v{vTAG+1}')
        I(f'v_lshlrev_b32 v{TMP+2}, 1, {vL4}')
        I(f's_lshl_b32 {sT0}, s2, 7')
        I(f's_add_u32 {sT0}, {sT0}, {hx(base)}')
        I('s_mov_b64 exec, 0xffff')
        I(f'buffer_store_dwordx2 {vr(TMP, 2)}, v{TMP+2}, {WS}, {sT0} offen sc1')
        I('s_mov_b64 exec, -1')
        p.end_div()
        p.label(skip)

    def setup1(self):
        p, I = self.p, self.I
        self.srd(24, 44, 45, H * DH * DH * 2)
        I('v_lshlrev_b32 v42, 7, v25')
        I('v_lshl_add_u32 v42, v26, 1, v42')
        I(f's_lshl_b32 {sT0}, {sJ}, 10')
        I(f's_and_b32 {sT1}, {sW}, 1')
        I(f's_lshl_b32 {sT1}, {sT1}, 9')
        I(f's_add_u32 {sT0}, {sT0}, {sT1}')
        for j in range(8):
            I(f'buffer_load_ushort v{ACC + j}, v42, {INS}, {sT0} offen{off(pi(0, j) * 32)}')
        if self.o.get('p0mode', 1) == 1:
            self.p0_common_loads()
        self.p0_early()
        self.touch_addr()
        for b in range(4):
            I(f'v_add_u32 v{vRB[b]}, {RING + b * BLK}, {vL16}')
        I(f'v_add_u32 {vSC}, {SCR}, {vL16}')
        I(f's_lshl_b32 {sT0}, {sW}, 5')
        I(f'v_add_u32 {vTW}, {sT0}, v24')
        I(f'v_mul_u32_u24 {vTW}, {TRP}, {vTW}')
        I(f'v_lshl_add_u32 {vTW}, v25, 3, {vTW}')
        I(f'v_add_u32 {vTW}, {SCR}, {vTW}')
        I('v_lshrrev_b32 v43, 2, v26')
        I('v_lshl_add_u32 v43, v28, 3, v43')
        I(f'v_mul_u32_u24 v43, {TRP}, v43')
        I('v_lshl_add_u32 v43, v32, 3, v43')
        I(f's_lshl_b32 {sT0}, {sW}, 5')
        I(f's_add_u32 {sT0}, {sT0}, {SCR}')
        I(f'v_add_u32 {vTA}, {sT0}, v43')
        I(f's_lshr_b32 {sT0}, {sW}, 1')
        I(f's_lshl_b32 {sT0}, {sT0}, 5')
        I(f's_add_u32 {sT0}, {sT0}, {SCR + 128}')
        I(f'v_add_u32 {vTB_}, {sT0}, v43')
        I(f'v_lshlrev_b32 {vGZ}, 4, v30')
        I(f'v_lshl_add_u32 {vGZ}, v25, 7, {vGZ}')
        I(f'v_lshl_add_u32 {vGZ}, v27, 4, {vGZ}')
        I(f'v_add_u32 {vGZ}, 8192, {vGZ}')
        I(f'v_lshlrev_b32 {vGW}, 9, v27')
        I(f'v_lshl_add_u32 {vGW}, v26, 4, {vGW}')
        I(f'v_lshl_add_u32 {vGW}, v25, 3, {vGW}')
        I(f's_lshl_b32 {sT0}, {sW}, 10')
        I(f's_add_u32 {sT0}, {sT0}, {SCR}')
        I(f'v_add_u32 {vGW}, {sT0}, {vGW}')
        I(f's_and_b32 {sT0}, {sW}, 1')
        I(f's_lshl_b32 {sT0}, {sT0}, 8')
        I(f'v_xor_b32 {vL16P}, {sT0}, {vL16}')
        I(f'v_lshlrev_b32 {vOUT}, 10, v24')
        I(f'v_lshl_add_u32 {vOUT}, v25, 4, {vOUT}')
        I(f'v_bfe_u32 {vHF}, v63, 2, 1')
        I(f'v_lshlrev_b32 {vHF}, 10, {vHF}')
        I(f'v_lshl_add_u32 {vHF}, v32, 3, {vHF}')
        I(f's_lshl_b32 {sFI}, {sG}, 10')
        I(f's_add_u32 {sFI}, {sFI}, {hx(FLI)}')
        I(f'v_lshlrev_b32 {vFI}, 3, v26')
        I(f'v_add_u32 {vFI}, {sFI}, {vFI}')
        I(f's_lshl_b32 {sT0}, {sJ}, 3')
        I(f's_add_u32 {sFI}, {sFI}, {sT0}')
        if self.mapping == 1:
            I(f's_and_b32 {sT0}, {sG}, 1')
            I(f's_lshl_b32 {sT0}, {sT0}, 7')
            I(f's_lshr_b32 {sT1}, {sG}, 1')
            I(f's_add_u32 {sT0}, {sT0}, {sT1}')
            I('v_lshlrev_b32 v44, 3, v26')
            I(f'v_add_u32 v44, {sT0}, v44')
        else:
            I(f's_and_b32 {sT0}, {sG}, 3')
            I(f's_lshl_b32 {sT0}, {sT0}, 6')
            I(f's_lshr_b32 {sT1}, {sG}, 2')
            I(f's_lshl_b32 {sT1}, {sT1}, 1')
            I(f's_add_u32 {sT0}, {sT0}, {sT1}')
            I('v_lshrrev_b32 v44, 1, v30')
            I('v_bfe_u32 v45, v63, 3, 1')
            I(f'v_add3_u32 v44, v44, v45, {sT0}')
        I('v_subrev_u32 v45, 2, v29')
        I('v_lshlrev_b32 v45, 6, v45')
        I('v_lshrrev_b32 v46, 4, v30')
        I(f's_lshr_b32 {sT0}, {sJ}, 1')
        I(f's_lshl_b32 {sT0}, {sT0}, 3')
        I(f'v_add3_u32 v45, v45, v46, {sT0}')
        I('v_subrev_u32 v47, 16, v63')
        I('v_cmp_gt_u32 vcc, 24, v47')
        I('v_cndmask_b32 v44, v44, v45, vcc')
        if self.mapping == 1:
            I('v_and_b32 v45, 1, v26')
            I('v_lshlrev_b32 v45, 7, v45')
            I('v_lshrrev_b32 v47, 1, v26')
            I(f's_lshl_b32 {sT0}, {sJ}, 3')
            I(f'v_add3_u32 v45, v45, v47, {sT0}')
        else:
            I('v_lshlrev_b32 v45, 6, v32')
            I('v_lshrrev_b32 v47, 2, v26')
            I('v_lshlrev_b32 v47, 1, v47')
            I(f's_lshl_b32 {sT0}, {sC}, 3')
            I(f's_lshr_b32 {sT1}, {sJ}, 3')
            I(f's_add_u32 {sT0}, {sT0}, {sT1}')
            I(f'v_add3_u32 v45, v45, v47, {sT0}')
        I('v_cmp_eq_u32 vcc, 3, v28')
        I('v_cndmask_b32 v44, v44, v45, vcc')
        I('v_lshlrev_b32 v44, 7, v44')
        I(f'v_add_u32 {vFL}, {hx(FLA)}, v44')
        I(f's_mul_i32 {sT0}, {sJ}, 7')
        I(f's_add_u32 {sT1}, {sT0}, 6')
        I(f's_lshr_b32 {sT0}, {sT0}, 2')
        I(f's_lshr_b32 {sT1}, {sT1}, 2')
        I(f'v_add_u32 v44, {sT0}, v29')
        I(f'v_min_u32 v44, {sT1}, v44')
        I('v_lshl_add_u32 v44, v44, 3, v46')
        I('v_subrev_u32 v45, 24, v63')
        I('v_and_b32 v45, 31, v45')
        I('v_lshlrev_b32 v45, 3, v45')
        I(f'v_add_u32 v45, {sC}, v45')
        I('v_cmp_gt_u32 vcc, 24, v63')
        I('v_cndmask_b32 v44, v45, v44, vcc')
        I('v_lshlrev_b32 v44, 7, v44')
        I(f'v_add_u32 {vFB}, {hx(FLB)}, v44')
        I('v_lshlrev_b32 v44, 3, v27')
        I('v_sub_u32 v44, v26, v44')
        I('v_and_b32 v45, 1, v44')
        I('v_lshlrev_b32 v45, 4, v45')
        I('v_mov_b32 v46, 0x3f80')
        I('v_lshlrev_b32 v45, v45, v46')
        I('v_lshrrev_b32 v44, 1, v44')
        for r in range(4):
            I(f'v_cmp_eq_u32 vcc, {r}, v44')
            I(f'v_cndmask_b32 v{ACC + 16 + r}, 0, v45, vcc')
        I(f'ds_write_b128 {vSC}, {vr(ACC + 16, 4)} offset:{CST - SCR + 2048}')
        I('v_lshlrev_b32 v44, 31, v27')
        I('v_lshrrev_b32 v45, 16, v44')
        I('v_or_b32 v44, v44, v45')
        for r in range(4):
            I(f'v_lshl_or_b32 v{ACC + 8 + r}, v{ACC + 2 * r + 1}, 16, v{ACC + 2 * r}')
            I(f'v_xor_b32 v{ACC + 8 + r}, v44, v{ACC + 8 + r}')
        I(f's_and_b32 {sT0}, {sW}, 1')
        I(f's_lshl_b32 {sT0}, {sT0}, 10')
        I(f'v_add_u32 v44, {sT0}, {vSC}')
        I(f'ds_write_b128 v44, {vr(ACC + 8, 4)} offset:{CST - SCR}')

    def setup2(self):
        I = self.I
        I(f'v_and_b32 v34, -4, v63')
        I(f'v_lshl_add_u32 v34, v32, 7, v34')
        I(f's_lshr_b32 {sT0}, {sW}, 1')
        I(f's_lshl_b32 {sT0}, {sT0}, 9')
        I(f's_and_b32 {sT1}, {sW}, 1')
        I(f's_lshl_b32 {sT1}, {sT1}, 6')
        I(f's_add_u32 {sT0}, {sT0}, {sT1}')
        I(f'v_add_u32 {vCS}, {sT0}, v34')
        I(f's_lshl_b32 {sW8K}, {sW}, 13')
        I(f's_mul_i32 {sT0}, {sJ}, {10 * BLK}')
        I(f's_add_u32 {sT0}, {sT0}, {hx(W13)}')
        I(f's_lshl_b32 {sW4K}, {sW}, 12')
        I(f's_add_u32 {sW13}, {sT0}, {sW4K}')
        I(f's_lshl_b32 {sQ4}, {sW}, 8')
        I(f's_add_u32 {sQ4}, {sQ4}, 32768')
        I(f's_add_u32 {sW13c}, {sT0}, 32768')
        I(f's_lshl_b32 {sT0}, {sTB}, 15')
        I(f's_add_u32 {sXin}, {sT0}, {hx(XF)}')
        I(f's_lshl_b32 {sT1}, {sJ}, 11')
        I(f's_add_u32 {sT0}, {sT0}, {sT1}')
        I(f's_add_u32 {sOout}, {sT0}, {hx(OF)}')
        I(f's_lshl_b32 {sT0}, {sTB}, 11')
        I(f's_add_u32 {sSin}, {sT0}, {hx(ST)}')

    def setup3(self):
        I = self.I
        I(f'v_lshrrev_b32 {vFS}, 1, {vL16}')
        I(f'v_and_b32 {vFS}, 0x38, {vFS}')
        I(f's_lshr_b32 {sT3}, {sC}, 2')
        I(f's_xor_b32 {sT3}, {sT3}, {sW}')
        I(f's_and_b32 {sT3}, {sT3}, 1')
        I(f's_add_u32 {sT3}, {sT3}, {sTBP}')
        I(f's_lshl_b32 {sT0}, {sT3}, 11')
        I(f's_lshl_b32 {sT1}, {sC}, 8')
        I(f's_add_u32 {sT0}, {sT0}, {sT1}')
        I(f's_add_u32 {sSu}, {sT0}, {hx(ST)}')
        I(f's_lshl_b32 {sT0}, {sT3}, 10')
        I(f's_lshl_b32 {sT1}, {sC}, 3')
        I(f's_add_u32 {sT0}, {sT0}, {sT1}')
        I(f's_add_u32 {sFSo}, {sT0}, {hx(FLH)}')
        I(f's_lshl_b32 {sT0}, {sTB}, 10')
        I(f's_add_u32 {sFSi}, {sT0}, {hx(FLH)}')
        I(f's_mul_i32 {sT0}, {sTB}, {112 * 1024}')
        I(f's_mul_i32 {sT1}, {sJ}, 7168')
        I(f's_add_u32 {sT0}, {sT0}, {sT1}')
        I(f's_add_u32 {sHout}, {sT0}, {hx(HF)}')
        I(f's_lshl_b32 {sT0}, {sTB}, 10')
        I(f's_lshl_b32 {sT1}, {sJ}, 3')
        I(f's_add_u32 {sT0}, {sT0}, {sT1}')
        I(f's_add_u32 {sFHo}, {sT0}, {hx(FLH)}')
        I(f's_lshl_b32 {sT0}, {sTBP}, 10')
        I(f's_lshl_b32 {sT1}, {sW}, 5')
        I(f's_add_u32 {sT0}, {sT0}, {sT1}')
        I(f's_add_u32 {sFHi}, {sT0}, {hx(FLH)}')
        for tl in range(2):
            I(f's_lshr_b32 {sT3}, {sC}, 2')
            I(f's_xor_b32 {sT3}, {sT3}, {tl}')
            I(f's_add_u32 {sT3}, {sT3}, {sTBP}')
            I(f's_lshl_b32 {sT0}, {sT3}, 15')
            I(f's_add_u32 {sT1}, {sT0}, {sW8K}')
            I(f's_add_u32 {sOin[tl]}, {sT1}, {hx(OF)}')
            I(f's_lshl_b32 {sT1}, {sC}, 2')
            I(f's_add_u32 {sT1}, {sT1}, {sW}')
            I(f's_lshl_b32 {sT2}, {sT1}, 10')
            I(f's_add_u32 {sT2}, {sT2}, {sT0}')
            I(f's_add_u32 {sXu[tl]}, {sT2}, {hx(XF)}')
            I(f's_lshl_b32 {sT2}, {sT1}, 5')
            I(f's_add_u32 {sOu[tl]}, {sT2}, {sT0}')
            I(f's_mul_i32 {sT0}, {sT3}, {112 * 1024}')
            I(f's_mul_i32 {sT1}, {sW}, {28 * 1024}')
            I(f's_add_u32 {sT0}, {sT0}, {sT1}')
            I(f's_add_u32 {sT0}, {sT0}, {hx(HF)}')
            for pl in range(4):
                I(f's_add_u32 {sT1}, {sC}, {pl}')
                I(f's_and_b32 {sT1}, {sT1}, 3')
                I(f's_mul_i32 {sT1}, {sT1}, 7168')
                I(f's_add_u32 s{sH + 8 * tl + 2 * pl}, {sT0}, {sT1}')
                I(f's_add_u32 s{sH + 8 * tl + 2 * pl + 1}, s{sH + 8 * tl + 2 * pl}, 4096')
            I(f's_lshr_b32 {sT0}, {sW}, 1')
            I(f's_xor_b32 {sT0}, {sT0}, {tl}')
            I(f's_lshl_b32 {sT1}, {sC}, 1')
            I(f's_add_u32 {sT0}, {sT0}, {sT1}')
            I(f's_lshl_b32 {sT1}, {sT0}, 15')
            I(f's_add_u32 {sT1}, {sT1}, {sW8K}')
            I(f's_add_u32 {sW2[tl]}, {sT1}, {hx(W2)}')
            I(f's_mul_i32 {sT0}, {sT0}, {112 * 1024}')
            I(f's_mul_i32 {sT1}, {sW}, {28 * 1024}')
            I(f's_add_u32 {sT0}, {sT0}, {sT1}')
            I(f's_add_u32 {sW4[tl]}, {sT0}, {hx(W4)}')
        for u in range(1, 4):
            I(f's_xor_b32 {sT0}, {sW}, {u}')
            I(f's_mul_i32 {sT0}, {sT0}, 6144')
            I(f's_add_u32 {sRW[u-1]}, {sT0}, {(u - 1) * 2048}')
        I(f's_mul_i32 {sRW[3]}, {sW}, 6144')

    def load_x(self, streg, stat_pos, fslot):
        I = self.I

        def xl(ks):
            def f():
                so = sXin
                if ks >= 4:
                    so = sLD
                    if ks % 4 == 0:
                        I(f's_add_u32 {sLD}, {sXin}, {ks * 1024}')
                I(f'buffer_load_dwordx4 {vr(X + 4 * ks, 4)}, {vL16}, {WS}, {so} offen{off((ks % 4) * 1024)} sc1')
                if fslot is not None and ks == stat_pos - self.o['LA'] - 1:
                    self.flag_issue(vFS, sFSi, fslot)
            return f

        def sl(c):
            def f():
                if c == 0 and fslot is not None:
                    self.flag_check(vFS, sFSi, fslot, 8)
                for cc in range(4 * c, 4 * c + 4):
                    I(f'buffer_load_dword v{streg + cc}, {vL4}, {WS}, {sSin} offen{off(cc * 256)} sc1')
            return f
        return [xl(k) for k in range(stat_pos)] + [sl(c) for c in range(2)] + [xl(k) for k in range(stat_pos, 32)]

    def stats_code(self, streg):
        regs = [streg + c for c in range(8)]
        out = []
        while len(regs) > 1:
            nxt = []
            for a, b in zip(regs[0::2], regs[1::2]):
                out.append(f'v_add_f32 v{a}, v{a}, v{b}')
                nxt.append(a)
            regs = nxt
        s = regs[0]
        t = s + 1
        out += [f'v_mul_f32 v{s}, {hx(f2u(1.0 / 512))}, v{s}',
                f'v_mov_b32 v{t}, v{s}',
                f'v_permlane32_swap_b32 v{s}, v{t}',
                f'v_fma_f32 v{t}, -v{s}, v{s}, v{t}',
                f'v_max_f32 v{t}, 0, v{t}',
                f'v_add_f32 {vS2}, {hx(f2u(1e-5))}, v{t}',
                f'v_rsq_f32 {vRS}, {vS2}',
                f'v_cvt_pk_bf16_f32 v{MF}, -v{s}, -v{s}',
                f'v_mov_b32 v{MF+1}, v{MF}',
                f'v_mov_b32 v{MF+2}, v{MF}',
                f'v_mov_b32 v{MF+3}, v{MF}']
        return out

    def phi_read(self):
        r = [self.stage(), self.stage()]
        for h in range(2):
            self.I(f'ds_read_b128 {r[h]}, {vSC} offset:{CST - SCR + 1024 * h}')
        return r

    def feature_map(self, src, phi, sink, between=()):
        p, I = self.p, self.I
        KF = TMP
        for h in range(2):
            for r in range(4 * h, 4 * h + 4):
                I(f'v_cvt_pk_bf16_f32 v{KF + r}, v{src + 2 * r}, v{src + 2 * r + 1}')
        for h in range(2):
            I(f'v_mfma_f32_32x32x16_bf16 {vr(A(2 + h), 16)}, {phi[h]}, {vr(KF + 4 * h, 4)}, 0')
        self.run(between)
        M = TMP + 8
        m = lambda h, s: M + 2 * h + s
        for h in range(2):
            for s in range(2):
                b = A(2 + h) + 8 * s
                I(f'v_max3_f32 v{m(h, s)}, v{b}, v{b+1}, v{b+2}')
                I(f'v_max3_f32 v{TMP + 2 * h + s}, v{b+3}, v{b+4}, v{b+5}')
                I(f'v_max3_f32 v{m(h, s)}, v{b+6}, v{b+7}, v{m(h, s)}')
                I(f'v_max_f32 v{m(h, s)}, v{m(h, s)}, v{TMP + 2 * h + s}')

        def cross(op):
            for h in range(2):
                I(f'v_permlane32_swap_b32 v{m(h, 0)}, v{m(h, 1)}')
            for h in range(2):
                I(f'{op} v{m(h, 0)}, v{m(h, 0)}, v{m(h, 1)}')
        cross('v_max_f32')
        for h in range(2):
            I(f'v_mul_f32 v{m(h, 1)}, v{m(h, 0)}, {vC1}')
            I(f'v_mul_f32 v{m(h, 0)}, v{m(h, 0)}, {vC1}')
        for h in range(2):
            I(f'v_permlane32_swap_b32 v{m(h, 0)}, v{m(h, 1)}')
        c2 = 'v[44:45]'
        for h in range(2):
            for s in range(2):
                b = A(2 + h) + 8 * s
                mm = vr(M + 2 * h, 2)
                for r in range(0, 8, 2):
                    I(f'v_pk_fma_f32 {vr(b + r, 2)}, {vr(b + r, 2)}, {c2}, {mm} op_sel:[0,0,{s}] op_sel_hi:[1,0,{s}] neg_lo:[0,0,1] neg_hi:[0,0,1]')
        for h in range(2):
            for r in range(16):
                I(f'v_exp_f32 v{A(2 + h) + r}, v{A(2 + h) + r}')
        for h in range(2):
            for s in range(2):
                b = A(2 + h) + 8 * s
                t = TMP + 4 * h + 2 * s
                I(f'v_pk_add_f32 {vr(t, 2)}, {vr(b, 2)}, {vr(b + 2, 2)}')
                I(f'v_pk_add_f32 {vr(t, 2)}, {vr(t, 2)}, {vr(b + 4, 2)}')
                I(f'v_pk_add_f32 {vr(t, 2)}, {vr(t, 2)}, {vr(b + 6, 2)}')
                I(f'v_add_f32 v{m(h, s)}, v{t}, v{t+1}')
        cross('v_add_f32')
        for h in range(2):
            I(f'v_rcp_f32 v{m(h, 0)}, v{m(h, 0)}')
        for h in range(2):
            I(f'v_mov_b32 v{m(h, 1)}, v{m(h, 0)}')
        for h in range(2):
            I(f'v_permlane32_swap_b32 v{m(h, 0)}, v{m(h, 1)}')
        for h in range(2):
            for s in range(2):
                b = A(2 + h) + 8 * s
                mm = vr(M + 2 * h, 2)
                for r in range(0, 8, 2):
                    I(f'v_pk_mul_f32 {vr(b + r, 2)}, {vr(b + r, 2)}, {mm} op_sel:[0,{s}] op_sel_hi:[1,{s}]')
            for g in range(4):
                sink(h, g, A(2 + h) + 4 * g)

    def stream_events(self, ld, SP, gap_of, extra=(), bks=29, la0=None):
        LA = self.o['LA']
        LA0 = la0 or self.o.get('LA0', 7)
        self.run(ld[:LA0])
        rest = list(ld[LA0:]) + list(extra)
        tot = len(ld) + len(extra)
        ev = {}
        for ks in range(32):
            pos = ks if ks < SP else ks + 2
            want = min(tot if ks >= bks else len(ld), pos + 1 + LA)
            k = 0
            while tot - len(rest) < want and k < 2:
                ev.setdefault(gap_of(ks) + k, []).append(rest.pop(0))
                k += 1
        return ev, rest

    def p1(self, L):
        p, I = self.p, self.I
        sk, sv, sq = self.slot(L, 0), self.slot(L, 1), self.slot(L, 2)
        streg = PQ
        SP = self.o.get('SP1', 24)
        ld = self.load_x(streg, SP, 384 + 64 if L else None)
        extra = [lambda: self.flag_issue(vFB, '0')] if L == 0 else []
        extra += self.sched(L, 'A0')
        ev, rest = self.stream_events(ld, SP, lambda ks: 2 * ks, extra, self.o.get('bks1', 27), 16 if L == 0 else None)
        if L == 0:
            self.setup3()
            p.wait(*self.need(0, 0, 1))
            I('s_barrier')
            self.post0(FLB, False)
            self.stamp('k,v in LDS')
        steps = []
        for ks in range(31):
            steps.append((A(0), sk, ks, vr(X + 4 * ks, 4), ks == 0))
            steps.append((A(1), sv, ks, vr(X + 4 * ks, 4), ks == 0))
        steps.append((A(0), sk, 32, vr(MF, 4), False))
        steps.append((A(1), sv, 32, vr(MF, 4), False))
        steps.append((A(0), sk, 31, vr(X + 124, 4), False))
        steps.append((A(1), sv, 31, vr(X + 124, 4), False))
        st = self.stats_code(streg) + [f'v_mul_f32 {vC1}, {hx(f2u(math.log2(math.e)))}, {vRS}']
        phi = []
        ev.setdefault(63, []).append(lambda: phi.extend(self.phi_read()))
        cuts = {}
        if any(isinstance(it, tuple) and it[1] in (4, 5) for it in self.plan[L].get('A0', [])):
            cuts[36] = lambda: I('s_barrier')
        left = self.mstream(steps, events=ev, fill=[(2 * SP + 1, t, 62) for t in st], cuts=cuts)
        assert not left
        self.stamp('p1 kv gemm')
        if L == 0:
            self.flag_check(vFB, '0', 0, 3)
        if self.plan[L].get('A'):
            I('s_barrier')
        vep = []
        for r in range(16):
            vep.append(f'v_mul_f32 v{A(1) + r}, v{A(1) + r}, {vRS}')
        for g in range(4):
            b = A(1) + 4 * g
            vep.append(f'v_cvt_pk_bf16_f32 v{b}, v{b}, v{b+1}')
            vep.append(f'v_cvt_pk_bf16_f32 v{b+1}, v{b+2}, v{b+3}')
            vep.append(f'ds_write_b64 {vTW}, {vr(b, 2)} offset:{128 + 16 * g}')

        def sink_k(h, g, b):
            I(f'v_cvt_pk_bf16_f32 v{b}, v{b}, v{b+1}')
            I(f'v_cvt_pk_bf16_f32 v{b+1}, v{b+2}, v{b+3}')
            I(f'ds_write_b64 {vTW}, {vr(b, 2)} offset:{64 * h + 16 * g}')
        q = rest + self.sched(L, 'A')
        self.bg_on(q, self.o.get('perA', 64))
        self.feature_map(A(0), phi, sink_k, between=vep)
        self.bg_off()
        for r in range(4):
            I(f'v_mov_b32 v{TMP + r}, {sONE}')
        p.wait_lg_all()
        I('s_barrier')
        self.stamp('p1 k softmax')
        fa = [A(1) + 4 * i for i in range(4)]
        fb = [A(2) + 4 * i for i in range(4)]
        for s in range(4):
            for base, reg in ((vTA, fa[s]), (vTB_, fb[s])):
                for rd in range(2):
                    I(f'ds_read_b64_tr_b16 {vr(reg + 2 * rd, 2)}, {base} offset:{(32 * s + 4 * rd) * TRP}')
        if L:
            I(f's_add_u32 {sKV}, {sKV}, {KVP_SZ}')
        for s in range(4):
            I(f'v_mfma_f32_16x16x32_bf16 {vr(A(0), 4)}, {vr(fa[s], 4)}, {vr(fb[s], 4)}, {"0" if s == 0 else vr(A(0), 4)}')
            I(f'v_mfma_f32_16x16x32_bf16 {vr(A(0) + 4, 4)}, {vr(fa[s], 4)}, {vr(TMP, 4)}, {"0" if s == 0 else vr(A(0) + 4, 4)}')
        for n, vo in enumerate((vKV, vKZ)):
            b = A(0) + 4 * n
            d = A(0) + 8 + 2 * n
            I(f'v_cvt_pk_bf16_f32 v{d}, v{b}, v{b+1}')
            I(f'v_cvt_pk_bf16_f32 v{d+1}, v{b+2}, v{b+3}')
            I(f'v_min_u32 v{d}, -2, v{d}')
            I(f'buffer_store_dwordx2 {vr(d, 2)}, {vo}, {WS}, {sKV} offen sc1')
        self.stamp('p1 kv partial')
        p.wait(*self.need(L, 2))
        I('s_barrier')
        steps = [(A(1), sq, ks, vr(X + 4 * ks, 4), ks == 0) for ks in range(32)] + [(A(1), sq, 32, vr(MF, 4), False)]
        bg = self.sched(L, 'B')
        phi = []
        ev = {30: [lambda: phi.extend(self.phi_read())]}
        GR = self.GR
        gl = self.gather_list(GR)
        g0 = self.o.get('gath0', 20)
        for k, f in enumerate(gl):
            gap = g0 + (k * (33 - g0)) // 9
            if gap < 33:
                ev.setdefault(gap, []).append(f)
        self.mstream(steps, events=ev, bg=bg, bg_gap=self.o.get('gapB', 2))
        assert not bg
        self.stamp('p1 q gemm')
        w2 = []
        for cbl in range(2):
            for i in range(8):
                def f(cbl=cbl, i=i):
                    if i == 4:
                        I(f's_add_u32 {sLD}, {sW2[cbl]}, 4096')
                    I(f'buffer_load_dwordx4 {vr(self.W2R + 4 * (cbl * 8 + i), 4)}, {vL16P}, {WS}, {sW2[cbl] if i < 4 else sLD} offen{off((i % 4) * 1024)}')
                w2.append(f)

        def sink_q(h, g, b):
            d = PQ + 8 * h + 2 * g
            I(f'v_cvt_pk_bf16_f32 v{d}, v{b}, v{b+1}')
            I(f'v_cvt_pk_bf16_f32 v{d+1}, v{b+2}, v{b+3}')
        q = w2 + self.sched(L, 'C')
        self.bg_on(q, self.o.get('perC', 80))
        self.feature_map(A(1), phi, sink_q)
        self.bg_off(flush=False)
        self.cleft = q
        self.stamp('p1 q done')

    GR = X
    W2R = X + 64

    def gather_list(self, GR):
        I = self.p.I
        out = []
        for i in range(8):
            def f(i=i):
                if i == 4:
                    I(f's_add_u32 {sLD2}, {sKV}, 4096')
                I(f'buffer_load_dwordx4 {vr(GR + 4 * i, 4)}, {vL16}, {WS}, {sKV if i < 4 else sLD2} offen{off((i % 4) * 1024)} sc1')
            out.append(f)
        out.append(lambda: I(f'buffer_load_dwordx4 {vr(GR + 32, 4)}, {vGZ}, {WS}, {sKV} offen sc1'))
        return out

    def gather_issue(self, GR):
        for f in self.gather_list(GR):
            f()

    def gather_test(self, GR):
        I = self.p.I
        t = TMP
        I(f'v_max3_u32 v{t}, v{GR}, v{GR+4}, v{GR+8}')
        I(f'v_max3_u32 v{t}, v{GR+12}, v{GR+16}, v{t}')
        I(f'v_max3_u32 v{t}, v{GR+20}, v{GR+24}, v{t}')
        I(f'v_max3_u32 v{t}, v{GR+28}, v{GR+32}, v{t}')
        I(f'v_cmp_eq_u32 vcc, -1, v{t}')

    def p2a(self, L):
        p, I = self.p, self.I
        GR = self.GR
        idn = self.stage()
        I(f'ds_read_b128 {idn}, {vSC} offset:{CST - SCR + 2048}')
        stub, back = p.newlabel('gstub'), p.newlabel('gback')
        self.gather_test(GR)
        I(f's_cbranch_vccnz {stub}')
        p.label(back)

        def emit():
            lp = p.newlabel('gl')
            p.label(stub)
            p.I(f's_mov_b32 {sCNT}, 0')
            p.label(lp)
            self.gather_issue(GR)
            p.wait_vm_all()
            self.gather_test(GR)
            p.I(f's_cbranch_vccz {back}')
            self.spin_tail(lp, 2, 2)
        self.stubs.append(emit)
        self.stamp('G checked')
        self.bg_on(self.cleft, 16)
        Z, K = A(0), A(0) + 4
        I(f'v_mfma_f32_16x16x32_bf16 {vr(Z, 4)}, {idn}, {vr(GR + 32, 4)}, 0')
        for i in range(8):
            I(f'v_mfma_f32_16x16x32_bf16 {vr(K, 4)}, {idn}, {vr(GR + 4 * i, 4)}, {"0" if i == 0 else vr(K, 4)}')
        self.bg_off()
        for sh in (1, 2, 4):
            for r in range(4):
                I(f'v_add_f32_dpp v{Z + r}, v{Z + r}, v{Z + r} row_ror:{sh} row_mask:0xf bank_mask:0xf')
        for n, b in enumerate((Z, K)):
            d = A(0) + 8 + 2 * n
            I(f'v_cvt_pk_bf16_f32 v{d}, v{b}, v{b+1}')
            I(f'v_cvt_pk_bf16_f32 v{d+1}, v{b+2}, v{b+3}')
            I(f'ds_write_b64 {vGW}, {vr(d, 2)} offset:{256 if n == 0 else 0}')
        p.wait_lg_all()
        I('s_barrier')
        kf = [self.stage() for _ in range(4)]
        for i in (0, 2, 1, 3):
            I(f'ds_read_b128 {kf[i]}, {vSC} offset:{i * 1024}')
        for s in range(2):
            for h in range(2):
                I(f'v_mfma_f32_32x32x16_bf16 {vr(A(h), 16)}, {kf[2 * h + s]}, {vr(PQ + 8 * h + 4 * s, 4)}, {"0" if s == 0 else vr(A(h), 16)}')
        self.res_load()
        self.red_addr()
        toks = []
        for h in range(2):
            b = A(h)
            I(f'v_add_f32 v{b + 8}, {hx(f2u(1e-6))}, v{b + 8}')
            I(f'v_rcp_f32 v{b + 8}, v{b + 8}')
            for r in range(0, 8, 2):
                I(f'v_pk_mul_f32 {vr(b + r, 2)}, {vr(b + r, 2)}, {vr(b + 8, 2)} op_sel_hi:[1,0]')
            for r in range(4):
                I(f'v_cvt_pk_bf16_f32 v{TMP + 4 * h + r}, v{b + 2 * r}, v{b + 2 * r + 1}')
            toks += self.st_group(TMP + 4 * h, 4, vL16, sOout, h * 1024)
        self.stamp('o stored')
        self.hop(3 * L, toks, before=self.sched(L, 'D'))
        self.stamp('o hop')

    def res_load(self):
        for tl in range(2):
            self.I(f'buffer_load_dwordx4 {vr(RES + 4 * tl, 4)}, {vL16}, {WS}, {sXu[tl]} offen sc1')

    def res_init(self):
        I = self.I
        for tl in range(2):
            b = A(2 * tl)
            for r in range(4):
                I(f'v_lshlrev_b32 v{b + 2 * r}, 16, v{RES + 4 * tl + r}')
                I(f'v_and_b32 v{b + 2 * r + 1}, 0xffff0000, v{RES + 4 * tl + r}')
            for r in range(8, 16, 2):
                I(f'v_mov_b64 {vr(b + r, 2)}, 0')

    def red_addr(self):
        I = self.I
        for u in range(4):
            I(f'v_add_u32 v{PQ + u}, {sRW[u]}, {vSC}')
        I(f's_add_u32 {sT0}, {sRW[3]}, {SCR}')
        I(f'v_add_u32 v{PQ + 4}, {sT0}, {vL4}')
        I(f's_and_b32 {sT0}, {sW}, 1')
        I(f's_lshl_b32 {sT0}, {sT0}, 8')
        I(f's_add_u32 {sT0}, {sT0}, {SCR}')
        I(f'v_add_u32 v{PQ + 5}, {sT0}, {vL4}')

    def red_write(self, tl):
        src = [A(2 * tl) + 8, A(2 * tl + 1), A(2 * tl + 1) + 8]
        out = []
        for u in range(3):
            out.append(f'ds_write_b128 v{PQ + u}, {vr(src[u], 4)}')
            out.append(f'ds_write_b128 v{PQ + u}, {vr(src[u] + 4, 4)} offset:1024')
        return out

    def stats_out(self, slot):
        p, I = self.p, self.I
        skip = p.newlabel('sto')
        I(f's_cmp_lt_u32 {sW}, 2')
        I(f's_cbranch_scc1 {skip}')
        p.begin_div()
        for u in range(4):
            I(f'ds_read_b32 v{TMP + u}, v{PQ + 5} offset:{u * 6144}')
        I(f'v_add_f32 v{TMP}, v{TMP}, v{TMP + 1}')
        I(f'v_add_f32 v{TMP + 2}, v{TMP + 2}, v{TMP + 3}')
        I(f'v_add_f32 v{TMP}, v{TMP}, v{TMP + 2}')
        t = self.st_group(TMP, 1, vL4, sSu)
        p.wait(*t)
        I('s_mov_b64 exec, 1')
        self.st_group(vTAG, 2, 'off', sFSo, slot)
        I('s_mov_b64 exec, -1')
        p.end_div()
        p.label(skip)

    def finalize(self, tl, final, toks, pk=True):
        b = A(2 * tl)
        dst = [b + 8, b + 12, b + 16, b + 20, b + 24, b + 28]
        out = []
        for u in range(3):
            for q in range(2):
                out.append(f'ds_read_b128 {vr(dst[2 * u + q], 4)}, v{PQ + 3} offset:{u * 2048 + q * 1024}')
        for u in range(3):
            for q in range(2):
                if pk:
                    for h in range(0, 4, 2):
                        out.append(f'v_pk_add_f32 {vr(b + 4 * q + h, 2)}, {vr(b + 4 * q + h, 2)}, {vr(dst[2 * u + q] + h, 2)}')
                else:
                    for h in range(4):
                        out.append(f'v_add_f32 v{b + 4 * q + h}, v{b + 4 * q + h}, v{dst[2 * u + q] + h}')
        o = b + 8
        for r in range(4):
            out.append(f'v_cvt_pk_bf16_f32 v{o + r}, v{b + 2 * r}, v{b + 2 * r + 1}')
        if final:
            out.append(f'v_permlane32_swap_b32 v{o}, v{o+2}')
            out.append(f'v_permlane32_swap_b32 v{o+1}, v{o+3}')
            out.append(f'buffer_store_dwordx4 {vr(o, 4)}, {vOUT}, {OUT}, {sOu[tl]} offen')
            return out
        out.append(lambda: toks.extend(self.st_group(o, 4, vL16, sXu[tl])))
        out.append(f'v_mov_b64 {vr(b, 2)}, 0')
        for r in range(4):
            out.append(f'v_dot2c_f32_bf16 v{b}, {sONE}, v{o + r}')
            out.append(f'v_dot2c_f32_bf16 v{b+1}, v{o + r}, v{o + r}')
        out.append(f'v_permlane32_swap_b32 v{b}, v{b+1}')
        out.append(f'v_add_f32 v{b}, v{b}, v{b+1}')
        return out

    def ksplit(self, order, areg, breg, load, nl0, final, ev, hooks=None, mix=(), behind=()):
        p, I = self.p, self.I
        N = len(order)
        mix, behind = list(mix), list(behind)
        steps = []
        seen = set()
        last0 = max(n for n, o in enumerate(order) if o[0] == 0)
        first1 = min(n for n, o in enumerate(order) if o[0] == 1)
        nl = nl0
        for n, (tl, key) in enumerate(order):
            g = len(steps)
            if nl < N:
                if hooks:
                    hooks(nl, g)
                ev.setdefault(g, []).append(lambda nl=nl: load(nl))
                nl += 1
                if mix and n >= 1:
                    ev.setdefault(g + 1, []).append(mix.pop(0))
            else:
                for k in range(2):
                    q = mix or (behind if n >= N - self.o.get('behind_n', 5) else None)
                    if q:
                        ev.setdefault(g + k, []).append(q.pop(0))
            for cbl in range(2):
                a = 2 * tl + cbl
                steps.append((A(a), None, areg(key, cbl), breg(n), a not in seen and cbl == 1))
                seen.add(a)
        toks = []
        gm = 2 * last0 + 1
        for k, w in enumerate(self.red_write(0)):
            ev.setdefault(gm + 2 + k, []).append(w)

        def mid():
            p.wait_lg_all()
            I('s_barrier')
        ev.setdefault(gm + 8, []).append(mid)
        f0 = self.finalize(0, final, toks, pk=False)
        f0.insert(30, 's_barrier')
        cut = 36 if not final else len(f0)
        left = self.mstream(steps, events=ev, fill=[(gm + 8, it) for it in f0[:cut]])
        if self.o.get('fine'):
            self.stamp('mfma end')
        rest = [it[1] for it in left] + f0[cut:] + mix + behind
        if 's_barrier' in rest:
            k = rest.index('s_barrier')
            self.run(rest[:k + 1])
            rest = rest[k + 1:]
        k0 = min(len(rest), 5)
        self.run(rest[:k0])
        rest = rest[k0:]
        w1 = self.red_write(1)
        per = -(-len(rest) // 6)
        for k, w in enumerate(w1):
            self.run([w] + rest[k * per:(k + 1) * per])
        p.wait_lg_all()
        I('s_barrier')
        self.run(self.finalize(1, final, toks))
        if not final:
            toks.append(I(f'ds_write_b32 v{PQ + 4}, v{A(0)}'))
            toks.append(I(f'ds_write_b32 v{PQ + 4}, v{A(2)} offset:256'))
        return toks

    def p2(self, L):
        p, I = self.p, self.I

        def load(n):
            tl, i = divmod(n, 8)
            if i == 4:
                I(f's_add_u32 {sLD}, {sOin[tl]}, 4096')
            I(f'buffer_load_dwordx4 {vr(X + 4 * n, 4)}, {vL16}, {WS}, {sOin[tl] if i < 4 else sLD} offen{off((i % 4) * 1024)} sc1')
        LA = self.o.get('LA2', 8)
        q = [(lambda n=n: load(n)) for n in range(LA)]
        self.bg_on(q, 12)
        self.res_init()
        self.bg_off()
        order = [divmod(n, 8) for n in range(16)]
        toks = self.ksplit(order, lambda i, cbl: vr(self.W2R + 4 * (cbl * 8 + i), 4), lambda n: vr(X + 4 * n, 4), load, LA, False, {},
                           behind=self.sched(L, 'E0'))
        self.stamp('p2 done')
        self.hop(3 * L + 1, toks, before=self.sched(L, 'E'), stats=L * 512 + 384, extra_wait=self.need_later(L, 3, 4, 5))
        self.stamp('x1 hop')

    def need_later(self, L, *tiles):
        class Lazy(list):
            def __iter__(s):
                return iter(self.need(L, *tiles))
        return Lazy()

    def geglu(self, L, acc, tile, toks, pk=False):
        out = []
        T = [TMP + i for i in range(8)]
        if pk:
            for r in range(0, 8, 2):
                out.append(f'v_pk_mul_f32 {vr(T[r], 2)}, {vr(acc + r, 2)}, {vr(acc + r, 2)}')
            for r in range(0, 8, 2):
                out.append(f'v_pk_fma_f32 {vr(T[r], 2)}, {vr(T[r], 2)}, v[44:45], v[44:45] op_sel:[0,1,0] op_sel_hi:[1,1,0]')
            for r in range(0, 8, 2):
                out.append(f'v_pk_mul_f32 {vr(T[r], 2)}, {vr(T[r], 2)}, {vr(acc + r, 2)}')
            for r in range(8):
                out.append(f'v_exp_f32 v{T[r]}, v{T[r]}')
            for r in range(0, 8, 2):
                out.append(f'v_pk_mul_f32 {vr(acc + 8 + r, 2)}, {vr(acc + r, 2)}, {vr(acc + 8 + r, 2)}')
            for r in range(0, 8, 2):
                out.append(f'v_pk_fma_f32 {vr(T[r], 2)}, {vr(T[r], 2)}, v[46:47], v[46:47] op_sel:[0,0,0] op_sel_hi:[1,0,0]')
            for r in range(8):
                out.append(f'v_rcp_f32 v{T[r]}, v{T[r]}')
            for r in range(0, 8, 2):
                out.append(f'v_pk_mul_f32 {vr(acc + 8 + r, 2)}, {vr(acc + 8 + r, 2)}, {vr(T[r], 2)}')
            for r in range(4):
                out.append(f'v_cvt_pk_bf16_f32 v{TMP + 8 + r}, v{acc + 8 + 2 * r}, v{acc + 9 + 2 * r}')
        else:
            for r in range(8):
                out.append(f'v_mul_f32 v{T[r]}, v{acc + r}, v{acc + r}')
            for r in range(8):
                out.append(f'v_fma_f32 v{T[r]}, v{T[r]}, {vC3}, {vC1}')
            for r in range(8):
                out.append(f'v_mul_f32 v{T[r]}, v{T[r]}, v{acc + r}')
            for r in range(8):
                out.append(f'v_exp_f32 v{T[r]}, v{T[r]}')
                out.append(f'v_mul_f32 v{acc + 8 + r}, v{acc + r}, v{acc + 8 + r}')
            for r in range(8):
                out.append(f'v_fma_f32 v{T[r]}, v{T[r]}, {vS2}, {vS2}')
            for r in range(8):
                out.append(f'v_rcp_f32 v{T[r]}, v{T[r]}')
                if r:
                    out.append(f'v_mul_f32 v{acc + 7 + r}, v{acc + 7 + r}, v{T[r-1]}')
            out.append(f'v_cvt_pk_bf16_f32 v{TMP + 8}, v{acc + 8}, v{acc + 9}')
            out.append(f'v_mul_f32 v{acc + 15}, v{acc + 15}, v{T[7]}')
            for r in range(1, 4):
                out.append(f'v_cvt_pk_bf16_f32 v{TMP + 8 + r}, v{acc + 8 + 2 * r}, v{acc + 9 + 2 * r}')

        def store():
            ph = self.perm(L, tile)
            if tile == 0:
                self.I(f's_add_u32 {sLD2}, {sHout}, 4096')
            toks[tile] = self.I(f'buffer_store_dwordx4 {vr(TMP + 8, 4)}, {vL16}, {WS}, {sHout if ph < 4 else sLD2} offen{off((ph % 4) * 1024)} sc1')
        out.append(store)
        return out

    def h_post(self, L, stage, tok):
        def f():
            self.p.wait(tok())
            self.p.I('s_mov_b64 exec, 1')
            self.st_group(vTAG, 2, 'off', sFHo, L * 512 + stage * 128)
            self.p.I('s_mov_b64 exec, -1')
        return f

    def h_order(self):
        o = []
        for tl in range(2):
            o += [(tl, pl, t) for t in range(3) for pl in range(4)]
        s1 = len(o)
        for tl in range(2):
            o += [(tl, pl, t) for t in (3, 4) for pl in range(4)]
        s2 = len(o)
        for tl in range(2):
            o += [(tl, pl, t) for t in (5, 6) for pl in range(4)]
        return o, s1, s2

    def h_load(self, n):
        tl, pl, t = self.hord[n]
        self.I(f'buffer_load_dwordx4 {vr(X + 4 * (n % 32), 4)}, {vL16}, {WS}, s{sH + 8 * tl + 2 * pl + (t >> 2)} offen{off((t % 4) * 1024)} sc1')

    def p3(self, L):
        p, I = self.p, self.I
        streg = PQ
        SP = self.o.get('SP3', 24)
        ld = self.load_x(streg, SP, L * 512 + 384)
        slot = lambda t: self.slot(L, 3 + t)
        acc = lambda t: A(t % 4)
        xr = lambda ks: vr(X + 4 * ks, 4) if ks < 32 else vr(MF, 4)
        steps = []
        n2 = 0
        num, den = self.o.get('skew', (2, 3))
        first = {}
        for ks in range(33):
            first[ks] = len(steps)
            steps.append((acc(0), slot(0), ks, xr(ks), ks == 0))
            steps.append((acc(1), slot(1), ks, xr(ks), ks == 0))
            while ks < 32 and n2 < ((ks + 1) * num) // den:
                steps.append((acc(2), slot(2), n2, xr(n2), n2 == 0))
                n2 += 1
        end = {0: len(steps) - 2, 1: len(steps) - 1}
        start = {}
        for t in range(2, 7):
            start[t] = len(steps)
            for ks in range(n2 if t == 2 else 0, 33):
                steps.append((acc(t), slot(t), ks, xr(ks), ks == 0))
            end[t] = len(steps) - 1
        pendq = self.sched(L, 'F0')
        popper = lambda: pendq.pop(0)() if pendq else None
        ev, rest = self.stream_events(ld, SP, lambda ks: first[ks], [popper] * len(pendq), self.o.get('bks3', 0))
        assert all(r is popper for r in rest)
        c1 = -2.0 * math.sqrt(2.0 / math.pi) * math.log2(math.e)
        st = self.stats_code(streg) + [
            f'v_mul_f32 {vC1}, {hx(f2u(c1))}, {vRS}',
            f'v_mul_f32 {vC3}, {vRS}, {vRS}',
            f'v_mul_f32 {vC3}, {hx(f2u(0.044715))}, {vC3}',
            f'v_mul_f32 {vC3}, {vC3}, {vC1}']
        fill = [(first[SP] + 1, t, end[0]) for t in st]
        toks = {}
        for t in range(6):
            dl = start.get(t + 4, 10**6)
            if t == 2:
                dl = min(dl, start[5] - 8)
            if t == 4:
                dl = start[6] + 4
            fill += [(end[t] + 3, it, dl) for it in self.geglu(L, acc(t), t, toks)]
        cuts = {}

        def cut(win, needs):
            def f():
                for t in needs:
                    while len(self.dma[(L, t)]) < 9:
                        pendq.pop(0)()
                    p.wait(*self.dma[(L, t)])
                I('s_barrier')
                if self.o.get('fine'):
                    self.stamp(f'cut {win}')
                pendq.extend(self.sched(L, win))
            return f
        cuts[start[2]] = cut('F2', [])
        cuts[start[3]] = cut('F3', [6])
        cuts[start[4]] = cut('F4', [7])
        cuts[start[5]] = cut('F5', [8])
        cuts[start[6]] = cut('F6', [9])
        self.hord, self.hs1, self.hs2 = self.h_order()
        self.hord = [(tl, pl, self.perm(L, t)) for tl, pl, t in self.hord]
        ev.setdefault(start[5] + 16, []).append(self.h_post(L, 0, lambda: toks[2]))
        ev.setdefault(start[6] + self.o.get('post1', 28), []).append(self.h_post(L, 1, lambda: toks[4]))
        ev.setdefault(start[6] + 2, []).append(self.res_load)
        g0 = start[6] + self.o.get('hchk', 8)
        ev.setdefault(g0, []).append(lambda: self.flag_issue(vHF, sFHi, L * 512))
        left = self.mstream(steps, events=ev, fill=fill, cuts=cuts, bg=pendq, bg_gap=self.o.get('gapF', 3), bg_start=first[32])
        self.run(list(pendq))
        self.flag_check(vHF, sFHi, L * 512, 4)
        LA = self.o['LA']
        q = [(lambda n=n: self.h_load(n)) for n in range(LA)]
        self.bg_on(q, 24)
        self.run(left)
        self.run(self.geglu(L, acc(6), 6, toks, pk=True))
        self.bg_off()
        self.htoks = toks
        self.stamp('p3 done')

    def p4(self, L):
        p, I = self.p, self.I
        final = L == 1
        LA = self.o['LA']
        s1, s2 = self.hs1, self.hs2
        self.res_init()
        self.red_addr()
        ev = {}
        FL = self.o.get('flead', LA)

        def hooks(nl, g):
            for st, s in ((1, s1), (2, s2)):
                if nl == s:
                    ev.setdefault(g, []).append(lambda st=st: self.flag_check(vHF, sFHi, L * 512 + st * 128, 4 + st))
                if nl == s - FL:
                    ev.setdefault(g, []).append(lambda st=st: self.flag_issue(vHF, sFHi, L * 512 + st * 128))
        ev.setdefault(2 * self.o.get('post2', LA), []).append(self.h_post(L, 2, lambda: self.htoks[6]))
        order = [(tl, (pl, t)) for tl, pl, t in self.hord]
        toks = self.ksplit(order, lambda k, cbl: vr(4 * (cbl * 28 + k[0] * 7 + k[1]), 4, 'a'), lambda n: vr(X + 4 * (n % 32), 4),
                           self.h_load, LA, final, ev, hooks=hooks, mix=self.sched(L, 'P4'), behind=self.sched(L, 'G0'))
        self.stamp('p4 done')
        if not final:
            self.hop(2, toks, before=self.sched(L, 'G'), stats=384 + 64, extra_wait=self.need_later(1, 0, 1))
            self.stamp('x2 hop')

    def zero_init(self):
        for tl in range(2):
            for r in range(0, 16, 2):
                self.I(f'v_mov_b64 {vr(A(2 * tl) + r, 2)}, 0')

    def res_add(self, tl):
        out = []
        b = A(2 * tl)
        for r in range(4):
            out.append(f'v_lshlrev_b32 v{TMP + 2 * r}, 16, v{RES + 4 * tl + r}')
            out.append(f'v_and_b32 v{TMP + 2 * r + 1}, 0xffff0000, v{RES + 4 * tl + r}')
            out.append(f'v_pk_add_f32 {vr(b + 2 * r, 2)}, {vr(b + 2 * r, 2)}, {vr(TMP + 2 * r, 2)}')
        return out

    def default_plan(self):
        return {
            0: {'A0': [(0, 2), 'touch'], 'B': [(0, 3)], 'D': [(0, 4, 'a')], 'E0': [(0, 4), (0, 5, 'a')], 'E': [(0, 5)], 'F0': [(0, 6)],
                'F2': [(0, 7), (0, 8)], 'F3': [(0, 9)], 'F4': ['w4:18'], 'F5': ['w4:19'], 'F6': ['w4:19'],
                'P4': [(1, 0), (1, 1)], 'G0': [(1, 2)]},
            1: {'A0': [(1, 4, 'a'), (1, 5, 'a'), 'touch'], 'B': [(1, 4)], 'D': [(1, 5)], 'E0': [(1, 6)],
                'F2': [(1, 7), (1, 8)], 'F3': [(1, 9)]},
        }

    def dump_prof(self):
        I = self.I
        I(f's_lshl_b32 {sT0}, s2, 2')
        I(f's_add_u32 {sT0}, {sT0}, {sW}')
        I(f's_lshl_b32 {sT0}, {sT0}, 9')
        I(f's_add_u32 {sT0}, {sT0}, {hx(PROF)}')
        I(f'buffer_store_dword v{vP2}, {vL4}, {WS}, {sT0} offen')

    def build(self):
        p, I = self.p, self.I
        self.plan = self.o.get('plan') or self.default_plan()
        self.w4q = self.w4_loads()
        if self.prof:
            I('s_memtime s[88:89]')
            I('s_memrealtime s[90:91]')
            p.wait_lg_all()
            I(f'v_mov_b32 v{vP2}, 0')
            I(f'v_writelane_b32 v{vP2}, s88, 0')
            I(f'v_writelane_b32 v{vP2}, s90, 60')
            self.stamps = ['start']
            self.nstamp = 1
        self.prologue()
        self.stamp('p0 synced')
        done = self.stop == 'p0'
        for L in range(2):
            for name, f in (('p1', self.p1), ('p2a', self.p2a), ('p2', self.p2), ('p3', self.p3), ('p4', self.p4)):
                if done:
                    break
                f(L)
                if self.stop == f'{name}_{L}':
                    done = True
        assert done or not self.w4q
        p.label('L_finish')
        if self.prof:
            I('s_memrealtime s[90:91]')
            I('s_memtime s[88:89]')
            p.wait_lg_all()
            I(f'v_writelane_b32 v{vP2}, s90, 61')
            I(f'v_writelane_b32 v{vP2}, s88, 62')
            self.dump_prof()
        I('s_cmp_lg_u32 s2, 0')
        I('s_cbranch_scc1 L_end')
        I(f's_cmp_lg_u32 {sW}, 0')
        I('s_cbranch_scc1 L_end')
        I('s_mov_b64 exec, 1')
        I(f'buffer_store_dwordx2 {vr(vTAG, 2)}, off, {WS}, 0')
        p.label('L_end')
        I('s_endpgm')
        for e in self.stubs:
            p.hist, p.alts, p.vm, p.lg, p.sm, p.pend = [], [], [], [], [], {}
            e()
        p.label('L_timeout')
        I(f'v_mov_b32 v{TMP}, {sCNT}')
        I(f'v_mov_b32 v{TMP+1}, 0')
        I('s_mov_b64 exec, 1')
        I(f'global_store_dword v{TMP+1}, v{TMP}, {sDBG}')
        I('s_endpgm')
        p.label('L_codeend')
        return self.wrap(p.text())

    def wrap(self, body):
        ref = open(os.path.join(os.path.dirname(os.path.abspath(__file__)), '..', 'cdna_kernels', NAME + '.s.ref')).read()
        hdr = []
        for line in ref.splitlines():
            if line.startswith('; @launch'):
                break
            hdr.append(line)
        out = '\n'.join(hdr) + '\n'
        out += f'; @launch grid=(256,1,1) block=(256,1,1) lds={LDS_BYTES}\n'
        out += '.amdgcn_target "amdgcn-amd-amdhsa--gfx950"\n.text\n'
        out += f'.globl {NAME}_kernel\n.p2align 8\n.type {NAME}_kernel,@function\n{NAME}_kernel:\n'
        out += body
        out += f'''.section .rodata,"a"
.p2align 6
.amdhsa_kernel {NAME}_kernel
  .amdhsa_next_free_vgpr 512
  .amdhsa_next_free_sgpr 102
  .amdhsa_accum_offset 256
  .amdhsa_group_segment_fixed_size 0
  .amdhsa_kernarg_size 88
  .amdhsa_user_sgpr_count 2
  .amdhsa_user_sgpr_kernarg_segment_ptr 1
  .amdhsa_system_sgpr_workgroup_id_x 1
.end_amdhsa_kernel
'''
        return out


if __name__ == '__main__':
    import argparse, ast
    ap = argparse.ArgumentParser()
    ap.add_argument('-o', default=None)
    ap.add_argument('--stop', default=None)
    ap.add_argument('--prof', action='store_true')
    ap.add_argument('--safe', action='store_true')
    ap.add_argument('--map', type=int, default=1)
    ap.add_argument('--opts', default='{}')
    a = ap.parse_args()
    g = Gen(stop=a.stop, prof=a.prof, fast=not a.safe, mapping=a.map, opts=ast.literal_eval(a.opts))
    txt = g.build()
    path = a.o or os.path.join(os.path.dirname(os.path.abspath(__file__)), '..', 'cdna_kernels', NAME + '.s')
    if g.o.get('align', 1):
        from align import align
        txt, nw, mis = align(txt)
    open(path, 'w').write(txt)
    if a.prof:
        open(path + '.stamps', 'w').write('\n'.join(g.stamps))
    print('wrote', path, 'lines', txt.count('\n'), 'late fill', g.late)
```

```python
import sys, os, math, struct
sys.path.insert(0, os.path.dirname(os.path.abspath(__file__)))
from asmlib import Prog, Ins
from layout import *

NAME = 'interleave_layers__linear_kernel_hedgehog__geglu_ffn__prompt'


def f2u(x):
    return struct.unpack('<I', struct.pack('<f', x))[0]


def hx(x):
    return '0x%x' % x


def vr(a, n=1, k='v'):
    return f'{k}{a}' if n == 1 else f'{k}[{a}:{a+n-1}]'


def off(x):
    return f' offset:{x}' if x else ''


WS, WSP, WSS, AUX, OUT, INS = 's[4:7]', 's[8:11]', 's[12:15]', 's[16:19]', 's[20:23]', 's[24:27]'
TAG = 28
TAGS = 's[28:29]'
sG, sJ, sW = 's30', 's31', 's32'
sW8K, sW13, sQ4, sW13c, sDM, sW4t = 's33', 's34', 's35', 's36', 's37', 's38'
sT0, sT1, sT2, sT3 = 's39', 's62', 's63', 's64'
sH = 40
sDBG = 's[58:59]'
sXin, sSin, sOout = 's65', 's66', 's67'
sOin = ['s68', 's96']
sXu = ['s69', 's70']
sSu = 's71'
sHout, sCNT, sXCC, sKV, sFI = 's73', 's74', 's75', 's76', 's77'
sM = 's[78:79]'
sONE = 's80'
sW2 = ['s81', 's82']
sW4 = ['s83', 's84']
sOu = ['s85', 's86']
sFHo, sFHi, sLD, sLD2, sC = 's87', 's92', 's93', 's94', 's95'
sTB, sTBP = 's97', 's98'
sMODE = 's8'
sW4K = 's11'
sFSo, sFSi = 's9', 's10'
sRW = ['s99', 's100', 's101', 's3']
vL16, vL4 = 'v0', 'v1'
vRB = [2, 3, 4, 5]
vTW, vTA, vTB_, vKV, vKZ, vGZ, vGW, vL16P, vOUT, vHF = ('v%d' % i for i in range(6, 16))
vTAG = 16
vFB = 'v18'
vFI = 'v19'
vSC = 'v20'
PQ = 24
RES = 32
MF = 40
vC1, vC3, vS2, vRS = 'v44', 'v45', 'v46', 'v47'
TMP = 48
vCK = 60
vFL = 'v62'
vFS = 'v62'
vCS = 'v63'
vP2 = 23
ACC = 64
X = 128
STG = 224


def A(i):
    return ACC + 16 * i


class Gen:
    def __init__(self, stop=None, prof=False, fast=True, mapping=1, opts=None):
        self.p = Prog()
        self.stop = stop
        self.prof = prof
        self.fast = fast
        self.mapping = mapping
        self.o = dict(LA=11, nt0=2, gapF=2, p0mode=0)
        self.o.update(opts or {})
        self.nt0 = ' nt' if self.o.get('nt0', 0) >= 1 else ''
        self.nt0x = ' nt' if self.o.get('nt0', 0) >= 2 else ''
        self.nstamp = 0
        self.stamps = []
        self.dma = {}
        self.stg = 0
        self.late = 0
        self.stubs = []
        self.part = {}
        self.bgq = None
        self.inbg = False

    def I(self, t, also=()):
        r = self.p.I(t, also)
        if self.bgq and not self.inbg and self.p.cyc - self.bglast >= self.bgper:
            self.inbg = True
            self.bgq.pop(0)()
            self.bglast = self.p.cyc
            self.inbg = False
        return r

    def bg_on(self, q, period):
        self.bgq, self.bgper, self.bglast = q, period, self.p.cyc - period

    def bg_off(self, flush=True):
        q, self.bgq = self.bgq, None
        if flush and q:
            self.run(list(q))
            del q[:]

    def pad(self, name):
        pad = self.o.get('pad')
        if not pad or pad[0] != name:
            return
        self.padn = getattr(self, 'padn', 0) + 1
        if self.padn != pad[1]:
            return
        p = self.p
        lp = p.newlabel('pad')
        p.wait_lg_all()
        p.label(lp)
        p.I('s_memrealtime s[88:89]')
        p.wait_lg_all()
        p.I('s_sub_u32 s88, s88, s90')
        p.I(f's_cmp_lt_u32 s88, {pad[2] * 100}')
        p.I(f's_cbranch_scc1 {lp}')

    def stamp(self, name, again=False):
        self.pad(name)
        if not self.prof:
            return
        if self.o.get('fine') and name in ('kernarg', 'crit loads issued', 'all loads issued', 'barrier 1', 'p0 crit issued', 'p0 crit drained', 'rest issued', 'rest loaded', 'p1 kv partial', 'k,v in LDS'):
            return
        p = self.p
        if again:
            idx = len(self.stamps) - 1 - self.stamps[::-1].index(name)
        else:
            idx = self.nstamp
            self.stamps.append(name)
            self.nstamp += 1
        p.I(f's_memtime {sM}')
        p.wait_lg_all()
        p.I(f'v_writelane_b32 v{vP2}, s78, {idx}')
        assert self.nstamp <= 60

    def srd(self, base, lo, hi, nrec):
        I = self.I
        I(f's_mov_b32 s{base}, s{lo}')
        I(f's_and_b32 s{base+1}, s{hi}, 0xffff')
        if nrec is not None:
            I(f's_mov_b32 s{base+2}, {hx(nrec)}')
        I(f's_mov_b32 s{base+3}, 0x20000')

    def run(self, items):
        for it in items:
            if isinstance(it, tuple):
                it = it[1]
            if isinstance(it, str):
                self.I(it)
            else:
                it()

    def st_group(self, data, n, voff, soff, imm=0):
        op = {1: 'buffer_store_dword', 2: 'buffer_store_dwordx2', 4: 'buffer_store_dwordx4'}[n]
        en = ' offen' if voff != 'off' else ''
        p = self.p
        txt = f'{op} {vr(data, n)}, {voff}, {WS}, {soff}{en}{off(imm)}'
        if not self.fast:
            return [p.I(txt + ' sc1')]
        stub, back = p.newlabel('ss'), p.newlabel('sb')
        p.wait(*p.pending(txt))
        p.I(f's_cmp_lg_u32 {sMODE}, 0')
        p.I(f's_cbranch_scc1 {stub}')
        tok = p.I(txt)
        p.label(back)

        def emit():
            p.label(stub)
            p.nop(12)
            p.I(txt + ' sc1')
            p.I(f's_branch {back}')
        self.stubs.append(emit)
        return [tok]

    def spin_tail(self, lp, code, sleep):
        I = self.p.I
        if sleep:
            I(f's_sleep {sleep}')
        I(f's_add_u32 {sCNT}, {sCNT}, 1')
        I(f's_cmp_lt_u32 {sCNT}, 0x20000')
        I(f's_cbranch_scc1 {lp}')
        I(f's_mov_b32 {sCNT}, {code}')
        I('s_branch L_timeout')

    def poll(self, vo, so, imm=0, mask_low=False, code=1, sleep=1, pre=None):
        p, I = self.p, self.p.I
        lp, done, chk = p.newlabel('poll'), p.newlabel('polled'), p.newlabel('pchk')
        I(f's_mov_b32 {sCNT}, 0')
        if pre is not None:
            p.wait(pre)
            I(f's_branch {chk}')
            p.label(lp)
            p.raw(f'    buffer_load_dwordx2 {vr(vCK, 2)}, {vo}, {WS}, {so} offen{off(imm)} sc1')
            p.raw('    s_waitcnt vmcnt(0)')
            p.label(chk)
        else:
            p.label(lp)
            I(f'buffer_load_dwordx2 {vr(vCK, 2)}, {vo}, {WS}, {so} offen{off(imm)} sc1')
            p.wait_vm_all()
        if mask_low:
            I(f'v_and_b32 v{TMP}, -16, v{vCK}')
            I(f'v_mov_b32 v{TMP+1}, v{vCK+1}')
            I(f'v_cmp_ne_u64 vcc, {TAGS}, {vr(TMP, 2)}')
        else:
            I(f'v_cmp_ne_u64 vcc, {TAGS}, {vr(vCK, 2)}')
        I(f's_cbranch_vccz {done}')
        if mask_low:
            I('s_mov_b64 exec, vcc')
        self.spin_tail(lp, code, sleep)
        p.label(done)
        if mask_low:
            I('s_mov_b64 exec, -1')

    def flag_issue(self, vo, so, imm=0):
        return self.I(f'buffer_load_dwordx2 {vr(vCK, 2)}, {vo}, {WS}, {so} offen{off(imm)} sc1')

    def flag_check(self, vo, so, imm, code):
        p = self.p
        stub, back = p.newlabel('fstub'), p.newlabel('fback')
        p.I(f'v_cmp_ne_u64 vcc, {TAGS}, {vr(vCK, 2)}')
        if self.o.get('fine'):
            self.stamp(f'flag {code} loaded')
            p.I(f'v_cmp_ne_u64 vcc, {TAGS}, {vr(vCK, 2)}')
        p.I(f's_cbranch_vccnz {stub}')
        p.label(back)
        if self.o.get('fine'):
            self.stamp(f'flag {code} ok')

        def emit():
            lp = p.newlabel('fl')
            p.label(stub)
            p.I(f's_mov_b32 {sCNT}, 0')
            p.label(lp)
            p.I(f'buffer_load_dwordx2 {vr(vCK, 2)}, {vo}, {WS}, {so} offen{off(imm)} sc1')
            p.wait_vm_all()
            p.I(f'v_cmp_ne_u64 vcc, {TAGS}, {vr(vCK, 2)}')
            p.I(f's_cbranch_vccz {back}')
            self.spin_tail(lp, code, 1)
        self.stubs.append(emit)

    def hop(self, slot, toks, before=(), stats=None, extra_wait=()):
        p, I = self.p, self.I
        self.run(before)
        p.wait(*toks)
        I('s_barrier')
        skip = p.newlabel('hop')
        I(f's_cmp_lg_u32 {sW}, 0')
        I(f's_cbranch_scc1 {skip}')
        p.begin_div()
        I('s_mov_b64 exec, 1')
        self.st_group(vTAG, 2, 'off', sFI, slot * 128)
        I('s_mov_b64 exec, -1')
        self.poll(vFI, '0', slot * 128, code=16 + slot, sleep=0)
        p.end_div()
        p.label(skip)
        if stats is not None:
            self.stats_out(stats)
        p.wait(*extra_wait)
        I('s_barrier')

    def slot(self, L, tile):
        return (10 * L + tile) % 4

    def perm(self, L, t):
        return 6 - t if (L == 1 and self.o.get('rev', 1)) else t

    def dma_block(self, L, tile):
        toks = []
        self.dma[(L, tile)] = toks
        I = self.I
        lb = RING + self.slot(L, tile) * BLK
        if tile >= 3:
            tile = 3 + self.perm(L, tile - 3)
        steps = []

        def grp(k):
            def f():
                I(f's_add_u32 m0, {sW4K}, {lb + k * 16384}')
                I(f's_add_u32 {sDM}, {sW13}, {tile * BLK + k * 16384}')
                toks.append(I(f'buffer_load_dwordx4 {vL16}, {WS}, {sDM} offen lds'))
            return f

        def one(i):
            def f():
                toks.append(I(f'buffer_load_dwordx4 {vL16}, {WS}, {sDM} offen offset:{i * 1024} lds'))
            return f

        def cs():
            I(f's_add_u32 m0, {sQ4}, {lb}')
            I(f's_add_u32 {sDM}, {sW13c}, {tile * BLK}')
            toks.append(I(f'buffer_load_dword {vCS}, {WS}, {sDM} offen lds'))
        for k in range(2):
            steps += [grp(k), one(1), one(2), one(3)]
        steps.append(cs)
        return steps

    def need(self, L, *tiles):
        toks = []
        for t in tiles:
            if (L, t) == (1, 3) and self.o.get('rev', 1):
                continue
            assert len(self.dma[(L, t)]) == 9, (L, t)
            toks += self.dma[(L, t)]
        return toks

    def w4_loads(self):
        I = self.I
        out = []
        for cbl in range(2):
            for pl in range(4):
                for t in range(7):
                    def f(cbl=cbl, pl=pl, t=t):
                        if t == 0:
                            I(f's_add_u32 {sW4t}, {sC}, {pl}')
                            I(f's_and_b32 {sW4t}, {sW4t}, 3')
                            I(f's_mul_i32 {sW4t}, {sW4t}, 7168')
                            I(f's_add_u32 {sW4t}, {sW4t}, {sW4[cbl]}')
                        if t == 4:
                            I(f's_add_u32 {sW4t}, {sW4t}, 4096')
                        I(f'buffer_load_dwordx4 {vr(4 * (cbl * 28 + pl * 7 + t), 4, "a")}, {vL16P}, {WS}, {sW4t} offen{off((t % 4) * 1024)}')
                    out.append(f)
        return out

    def sched(self, L, win):
        out = []
        for it in self.plan[L].get(win, []):
            if isinstance(it, tuple):
                key = it[:2]
                if key not in self.part:
                    self.part[key] = self.dma_block(*key)
                n = 4 if (len(it) > 2 and it[2] == 'a') else 9
                out += self.part[key][:n]
                del self.part[key][:n]
            elif it.startswith('code:'):
                def f(lab=it[5:]):
                    I = self.I
                    I(f's_lshr_b32 {sT0}, s2, 3')
                    I(f's_lshl_b32 {sT0}, {sT0}, 2')
                    I(f's_add_u32 {sT0}, {sT0}, {sW}')
                    I(f's_lshl_b32 {sT0}, {sT0}, 8')
                    I(f's_add_u32 {sT0}, {sT0}, {lab}-{NAME}_kernel')
                    I(f'v_and_b32 {vFB}, 0x80, {vL16}')
                    I(f'v_add_u32 {vFB}, {sT0}, {vFB}')
                    I(f'v_min_u32 {vFB}, L_codeend-{NAME}_kernel-4, {vFB}')
                    I(f'global_load_dword v21, {vFB}, s[12:13]')
                out.append(f)
            elif it == 'touch':
                out.append(lambda: self.I(f'buffer_load_dword v21, v22, {WS}, 0 offen'))
            elif it.startswith('w4:'):
                n = int(it[3:])
                out += self.w4q[:n]
                del self.w4q[:n]
        return out

    def stage(self):
        r = vr(STG + 4 * (self.stg % 8), 4, 'a')
        self.stg += 1
        return r

    def wread(self, slot, idx):
        r = self.stage()
        tok = self.I(f'ds_read_b128 {r}, v{vRB[slot]} offset:{idx * 1024}')
        return r, tok

    def mstream(self, steps, events=None, fill=None, depth=6, cuts=(), bg=None, bg_gap=2, pre=None, bg_start=0):
        p, I = self.p, self.I
        events = events or {}
        pre = pre or {}
        fill = list(fill or [])
        cuts = dict(cuts)
        bg = bg if bg is not None else []
        n = len(steps)
        regs = [None] * n
        toks = [None] * n
        nread = 0
        lastread_gap = -10
        last_bg = -100

        def issue_read(g):
            nonlocal nread, lastread_gap
            if nread >= n:
                return False
            if nread in cuts:
                if g - lastread_gap < 2 and nread - g > 2:
                    return False
                p.wait(toks[nread - 1])
                cuts.pop(nread)()
            _, slot, idx, _, _ = steps[nread]
            if slot is None:
                regs[nread] = idx
            else:
                regs[nread], toks[nread] = self.wread(slot, idx)
            nread += 1
            lastread_gap = g
            return True

        def mtext(g):
            acc, slot, idx, breg, first = steps[g]
            c = '0' if first else vr(acc, 16)
            return f'v_mfma_f32_32x32x16_bf16 {vr(acc, 16)}, {regs[g]}, {breg}, {c}'
        while nread < min(depth, n) and issue_read(-1 if nread not in cuts else 10**6):
            pass
        for g in range(n):
            while nread <= g:
                issue_read(10**6)
            due = [i for i, f in enumerate(fill) if len(f) > 2 and f[2] <= g]
            if due:
                self.late += due[-1] + 1
                self.run(fill[:due[-1] + 1])
                del fill[:due[-1] + 1]
            self.run(pre.get(g, []))
            also = []
            if toks[g] is not None and not toks[g].done:
                k = min(g + 2, nread - 4)
                if k > g:
                    also = [toks[k]]
            I(mtext(g), also)
            start = p.cyc
            k = 0
            while nread < min(n, g + 1 + depth) and k < 2:
                if not issue_read(g):
                    break
                k += 1
            self.run(events.get(g, []))
            if bg and g >= bg_start and g - last_bg >= bg_gap:
                bg.pop(0)()
                last_bg = g
            budget = 24
            if g + 1 < n and regs[g + 1] is not None and p.pending(mtext(g + 1)):
                budget -= 4
            while fill and fill[0][0] <= g:
                it = fill[0][1]
                cost = Ins(it).cost if isinstance(it, str) else 4
                if p.cyc - start + cost > budget:
                    break
                fill.pop(0)
                self.run([it])
        return fill

    def prologue(self):
        p, I = self.p, self.I
        I('s_cmp_ge_u32 s2, 256')
        I('s_cbranch_scc1 L_end')
        I('s_load_dwordx16 s[40:55], s[0:1], 0x0')
        I('s_load_dwordx4 s[56:59], s[0:1], 0x40')
        I('s_load_dwordx2 s[60:61], s[0:1], 0x50')
        I('v_lshrrev_b32 v2, 6, v0')
        I(f'v_readfirstlane_b32 {sW}, v2')
        I('v_and_b32 v63, 63, v0')
        I(f'v_lshlrev_b32 {vL16}, 4, v63')
        I(f'v_lshlrev_b32 {vL4}, 2, v63')
        I(f's_getreg_b32 {sXCC}, hwreg(HW_REG_XCC_ID, 0, 4)')
        I(f's_and_b32 {sT0}, s2, 7')
        I(f's_lshr_b32 {sT1}, s2, 3')
        if self.mapping == 1:
            I(f's_and_b32 {sJ}, {sT1}, 15')
            I(f's_lshr_b32 {sT1}, {sT1}, 4')
            I(f's_lshl_b32 {sG}, {sT0}, 1')
            I(f's_add_u32 {sG}, {sG}, {sT1}')
        else:
            I(f's_and_b32 {sJ}, {sT0}, 1')
            I(f's_lshl_b32 {sJ}, {sJ}, 3')
            I(f's_and_b32 {sT2}, {sT1}, 7')
            I(f's_add_u32 {sJ}, {sJ}, {sT2}')
            I(f's_lshr_b32 {sG}, {sT0}, 1')
            I(f's_lshl_b32 {sG}, {sG}, 2')
            I(f's_lshr_b32 {sT1}, {sT1}, 3')
            I(f's_add_u32 {sG}, {sG}, {sT1}')
        I(f's_mov_b32 {sONE}, 0x3f803f80')
        I('v_and_b32 v24, 31, v63')
        I('v_lshrrev_b32 v25, 5, v63')
        I('v_and_b32 v26, 15, v63')
        I('v_bfe_u32 v27, v63, 4, 1')
        I('v_lshrrev_b32 v28, 4, v63')
        I('v_lshrrev_b32 v29, 3, v63')
        I('v_and_b32 v30, 7, v63')
        I('v_lshlrev_b32 v30, 4, v30')
        I(f's_lshl_b32 {sTB}, {sG}, 2')
        I(f's_lshr_b32 {sT0}, {sJ}, 3')
        I(f's_lshl_b32 {sT0}, {sT0}, 1')
        I(f's_add_u32 {sTBP}, {sTB}, {sT0}')
        I(f's_add_u32 {sTB}, {sTB}, {sW}')
        I(f's_and_b32 {sC}, {sJ}, 7')
        I('s_and_b32 s65, s2, 7')
        I('s_lshr_b32 s66, s2, 3')
        I('v_lshrrev_b32 v31, 2, v26')
        I('v_lshl_add_u32 v31, v25, 2, v31')
        I('v_lshlrev_b32 v31, 7, v31')
        I('v_and_b32 v32, 3, v26')
        I('v_lshl_add_u32 v31, v32, 3, v31')
        I('v_lshlrev_b32 v33, 2, v24')
        I('s_lshl_b32 s67, s65, 7')
        I(f's_add_u32 s67, s67, {32 * 1024}')
        I(f's_lshl_b32 {sT0}, s66, 2')
        I(f's_add_u32 {sT0}, {sT0}, {sW}')
        I(f's_mul_i32 {sT1}, {sT0}, 147')
        I(f's_lshr_b32 {sT1}, {sT1}, 10')
        I(f's_mul_i32 {sT1}, {sT1}, 3')
        I(f's_add_u32 {sT0}, {sT0}, {sT1}')
        I(f's_add_u32 {sT0}, {sT0}, 3')
        I(f's_mul_i32 {sT0}, {sT0}, {BLK}')
        I(f's_add_u32 s68, {sT0}, {hx(W13)}')
        p.wait_lg_all()
        self.stamp('kernarg')
        I(f's_load_dwordx2 {TAGS}, s[60:61], 0x0')
        if self.o.get('tlb'):
            I('v_lshlrev_b32 v34, 21, v26')
            I(f'v_min_u32 v34, {hx(WS_BYTES - 4)}, v34')
            I('v_mov_b32 v35, s61')
            I('v_add_co_u32 v34, vcc, s60, v34')
            I('v_addc_co_u32 v35, vcc, 0, v35, vcc')
            for n, ptr in enumerate((40, 42, 44, 46, 50, 52, 54, 56)):
                I(f'v_writelane_b32 v34, s{ptr}, {16 + n}')
                I(f'v_writelane_b32 v35, s{ptr + 1}, {16 + n}')
            I('global_load_dword v21, v[34:35], off')
            if self.o['tlb'] == 2:
                p.wait_vm_all()
                self.stamp('tlb touch')
        self.srd(4, 60, 61, WS_BYTES)
        self.srd(16, 60, 61, 0)
        self.srd(20, 56, 57, S * D * 2)
        self.p0()

    def p0_common_loads(self):
        p, I = self.p, self.I
        I(f's_mov_b32 {sT0}, 3584')
        I(f'v_mul_lo_u32 v34, v29, {sT0}')
        I('v_add_u32 v34, v34, v30')
        I(f's_mul_i32 {sT1}, s65, {64 * 3584}')
        I(f's_lshl_b32 {sT0}, s66, 7')
        I(f's_add_u32 {sT1}, {sT1}, {sT0}')
        I(f's_mul_i32 {sT0}, {sW}, {16 * 3584}')
        I(f's_add_u32 {sT1}, {sT1}, {sT0}')
        I(f's_add_u32 {sT2}, {sT1}, {8 * 3584}')
        I(f's_lshl_b32 {sT3}, {sW}, 11')
        for m, ptr in enumerate((50, 52)):
            self.srd(24, ptr, ptr + 1, None)
            I('s_cmp_lt_u32 s2, 224')
            I(f's_cselect_b32 s26, {hx(D * F * 2)}, 0')
            I(f's_add_u32 m0, {sT3}, {8192 + m * 8192}')
            I(f'buffer_load_dwordx4 v34, {INS}, {sT1} offen{self.nt0} lds')
            I(f's_add_u32 m0, {sT3}, {8192 + m * 8192 + 1024}')
            I(f'buffer_load_dwordx4 v34, {INS}, {sT2} offen{self.nt0} lds')
        self.srd(24, 54, 55, F * D * 2)
        I('v_lshl_add_u32 v34, v29, 10, v30')
        I(f's_lshl_b32 {sT1}, s66, 16')
        I(f's_lshl_b32 {sT0}, s65, 7')
        I(f's_add_u32 {sT1}, {sT1}, {sT0}')
        I(f's_lshl_b32 {sT0}, {sW}, 14')
        I(f's_add_u32 {sT1}, {sT1}, {sT0}')
        I(f's_add_u32 {sT2}, {sT1}, 8192')
        I(f's_add_u32 m0, {sT3}, 24576')
        I(f'buffer_load_dwordx4 v34, {INS}, {sT1} offen{self.nt0} lds')
        I(f's_add_u32 m0, {sT3}, {24576 + 1024}')
        I(f'buffer_load_dwordx4 v34, {INS}, {sT2} offen{self.nt0} lds')

    def touch_addr(self):
        p, I = self.p, self.I
        I(f's_lshl_b32 {sT0}, {sTB}, 15')
        I(f's_lshl_b32 {sT1}, {sJ}, 11')
        I(f's_add_u32 {sT0}, {sT0}, {sT1}')
        I(f's_add_u32 {sT0}, {sT0}, {hx(OF)}')
        I(f's_lshl_b32 {sT1}, {sTB}, 10')
        I(f's_add_u32 {sT1}, {sT1}, {hx(FLH)}')
        I(f's_lshl_b32 {sT2}, {sG}, 10')
        I(f's_add_u32 {sT2}, {sT2}, {hx(FLI - 1024)}')
        I(f'v_mov_b32 v36, {sT1}')
        I(f'v_mov_b32 v37, {sT2}')
        I('v_cmp_gt_u32 vcc, 8, v26')
        I('v_cndmask_b32 v36, v37, v36, vcc')
        I(f'v_mov_b32 v37, {sT0}')
        I('v_cmp_eq_u32 vcc, 0, v27')
        I('v_cndmask_b32 v36, v36, v37, vcc')
        I('v_lshl_add_u32 v36, v26, 7, v36')
        I('v_mov_b32 v22, v36')

    def p0_early(self):
        p, I = self.p, self.I
        I('s_getpc_b64 s[12:13]')
        lab = p.newlabel('pc')
        p.label(lab)
        I(f's_sub_u32 s12, s12, {lab}-{NAME}_kernel')
        I('s_subb_u32 s13, s13, 0')
        I(f's_and_b32 {sT0}, s66, 7')
        I(f's_lshl_b32 {sT0}, {sT0}, 2')
        I(f's_add_u32 {sT0}, {sT0}, {sW}')
        I(f's_lshl_b32 {sT0}, {sT0}, 11')
        I('v_lshlrev_b32 v36, 7, v26')
        I(f'v_add_u32 v36, {sT0}, v36')
        I(f'v_min_u32 v36, L_codeend-{NAME}_kernel-4, v36')
        I('global_load_dword v39, v36, s[12:13]')
        I(f's_lshl_b32 {sT0}, {sJ}, 2')
        I(f's_add_u32 {sT0}, {sT0}, {sW}')
        I(f's_mul_i32 {sKV}, {sT0}, {KVW}')
        I(f's_add_u32 {sKV}, {sKV}, {hx(KVP)}')
        I(f'v_lshrrev_b32 {vKV}, 1, v28')
        I(f'v_lshlrev_b32 {vKV}, 8, {vKV}')
        I(f'v_lshl_add_u32 {vKV}, v26, 4, {vKV}')
        I(f'v_lshl_add_u32 {vKV}, v27, 3, {vKV}')
        I(f's_lshl_b32 {sT0}, {sG}, 9')
        I(f'v_add_u32 {vKV}, {sT0}, {vKV}')
        I(f's_lshl_b32 {sT0}, {sG}, 7')
        I(f's_add_u32 {sT0}, {sT0}, 8192')
        I(f'v_lshlrev_b32 {vKZ}, 3, v28')
        I(f'v_lshl_add_u32 {vKZ}, v32, 5, {vKZ}')
        I(f'v_add_u32 {vKZ}, {sT0}, {vKZ}')
        I('v_mov_b32 v40, -1')
        I('v_mov_b32 v41, -1')
        I(f's_add_u32 {sT0}, {sKV}, {KVP_SZ}')
        for so in (sKV, sT0):
            I(f'buffer_store_dwordx2 v[40:41], {vKV}, {WS}, {so} offen sc1')
            I(f'buffer_store_dwordx2 v[40:41], {vKZ}, {WS}, {so} offen sc1')

    def tr_tile(self, vaddr, base, imm0, kss):
        for n, ks in enumerate(kss):
            for rd in range(2):
                self.I(f'ds_read_b64_tr_b16 {vr(base + 4 * n + 2 * rd, 2)}, {vaddr} offset:{imm0 + ks * 2048 + rd * 1024}')

    def colsum(self, base, srd, so):
        I = self.I
        I('v_mov_b32 v56, 0')
        I('v_mov_b32 v57, 0')
        for r in range(0, 16, 2):
            I(f'v_dot2c_f32_bf16 v56, {sONE}, v{base + r}')
            I(f'v_dot2c_f32_bf16 v57, {sONE}, v{base + r + 1}')
        I('v_add_f32 v56, v56, v57')
        I('v_mov_b32 v57, v56')
        I('v_permlane32_swap_b32 v56, v57')
        I('v_add_f32 v56, v56, v57')
        I('v_cvt_pk_bf16_f32 v57, v56, v56')
        I('v_lshlrev_b32 v57, 16, v57')
        I('v_sub_f32 v57, v56, v57')
        I('v_cvt_pk_bf16_f32 v58, v56, v57')
        return I(f'buffer_store_dword v58, v33, {srd}, {so} offen sc1')

    def p0_q_loads(self, l_q):
        p, I = self.p, self.I
        p.label(l_q)
        p.begin_div()
        l_o, l_go = p.newlabel('p0o'), p.newlabel('p0go')
        I(f's_and_b32 s72, {sW}, 1')
        I('s_cmp_ge_u32 s2, 192')
        I(f's_cbranch_scc1 {l_o}')
        self.srd(24, 42, 43, D * 3 * D * 2)
        I(f's_mov_b32 s18, {hx(WS_BYTES)}')
        I(f's_mov_b32 {sT3}, 3072')
        I(f's_mul_i32 {sT1}, s65, {64 * 3072}')
        I(f's_lshl_b32 {sT0}, s66, 7')
        I(f's_add_u32 {sT1}, {sT1}, {sT0}')
        I('s_lshr_b32 s69, s66, 3')
        I('s_add_u32 s69, s69, 2')
        I('s_cmp_ge_u32 s69, 3')
        I(f's_cselect_b32 {sT0}, 3, 0')
        I(f's_sub_u32 s69, s69, {sT0}')
        I(f's_and_b32 {sT0}, s66, 7')
        I(f's_lshl_b32 {sT0}, {sT0}, 1')
        I(f's_add_u32 {sT0}, {sT0}, s72')
        I(f's_mul_i32 {sT0}, {sT0}, 10')
        I(f's_add_u32 s69, s69, {sT0}')
        I(f's_mul_i32 s69, s69, {BLK}')
        I(f's_add_u32 s69, s69, {hx(W13)}')
        I(f's_add_u32 {sLD2}, s69, s67')
        I(f's_lshl_b32 {sT0}, s65, 12')
        I(f's_add_u32 s69, s69, {sT0}')
        I(f's_branch {l_go}')
        p.label(l_o)
        self.srd(24, 46, 47, D * D * 2)
        I(f's_mov_b32 {sT3}, 1024')
        I(f's_sub_u32 {sT2}, s66, 24')
        I(f's_lshl_b32 {sT1}, {sT2}, 16')
        I(f's_lshl_b32 {sT0}, s65, 7')
        I(f's_add_u32 {sT1}, {sT1}, {sT0}')
        I('s_lshl_b32 s69, s65, 1')
        I('s_add_u32 s69, s69, s72')
        I('s_lshl_b32 s69, s69, 15')
        I(f's_lshl_b32 {sT0}, {sT2}, 12')
        I(f's_add_u32 s69, s69, {sT0}')
        I(f's_add_u32 s69, s69, {hx(W2)}')
        I(f's_mov_b32 {sLD2}, 0')
        p.label(l_go)
        I(f'v_mul_lo_u32 v52, v29, {sT3}')
        I('v_add_u32 v52, v52, v30')
        I(f's_lshl_b32 {sT3}, {sT3}, 3')
        I(f's_lshl_b32 {sT0}, s72, 2')
        I(f's_mul_i32 {sT0}, {sT0}, {sT3}')
        I(f's_add_u32 {sT1}, {sT1}, {sT0}')
        I(f's_lshl_b32 {sT2}, s72, 12')
        qt = []
        for pc in range(4):
            I(f's_add_u32 m0, {sT2}, {pc * 1024}')
            if pc:
                I(f's_add_u32 {sT1}, {sT1}, {sT3}')
            qt.append(I(f'buffer_load_dwordx4 v52, {INS}, {sT1} offen{self.nt0} lds'))
        p.end_div()

    def p0(self):
        p, I = self.p, self.I
        l_q, l_join, l_j1, l_q2 = p.newlabel('p0q'), p.newlabel('p0join'), p.newlabel('p0j1'), p.newlabel('p0q2')
        I(f's_cmp_ge_u32 {sW}, 2')
        I(f's_cbranch_scc1 {l_q}')
        p.begin_div()
        self.srd(24, 40, 41, S * D * 2)
        I(f's_lshr_b32 s69, {sJ}, 2')
        I(f's_lshl_b32 {sT0}, {sG}, 2')
        I(f's_add_u32 s69, s69, {sT0}')
        I(f's_and_b32 s72, {sJ}, 3')
        I('s_lshl_b32 s72, s72, 1')
        I(f's_add_u32 s72, s72, {sW}')
        I('v_lshlrev_b32 v52, 10, v24')
        I('v_lshl_add_u32 v52, v25, 4, v52')
        I(f's_lshl_b32 {sT0}, s69, 15')
        I(f's_lshl_b32 {sT1}, s72, 7')
        I(f's_add_u32 {sT1}, {sT1}, {sT0}')
        for u in range(4):
            I(f'buffer_load_dwordx4 {vr(X + 4 * u, 4)}, v52, {INS}, {sT1} offen{off(u * 32)}{self.nt0x}')
        I(f's_branch {l_j1}')
        p.end_div()
        self.p0_q_loads(l_q)
        p.label(l_j1)
        self.stamp('crit loads issued')
        self.setup1()
        self.stamp('all loads issued')
        I('s_barrier')
        self.stamp('barrier 1')
        I(f's_cmp_ge_u32 {sW}, 2')
        I(f's_cbranch_scc1 {l_q2}')
        p.begin_div()
        I(f's_lshl_b32 {sT0}, s69, 15')
        I(f's_lshl_b32 {sT1}, s72, 12')
        I(f's_add_u32 {sT1}, {sT1}, {sT0}')
        I(f's_add_u32 {sT1}, {sT1}, {hx(XF)}')
        I('v_mov_b32 v56, 0')
        I('v_mov_b32 v57, 0')
        for u in range(4):
            b = X + 4 * u
            I(f'v_permlane32_swap_b32 v{b}, v{b+2}')
            I(f'v_permlane32_swap_b32 v{b+1}, v{b+3}')
            I(f'buffer_store_dwordx4 {vr(b, 4)}, {vL16}, {WS}, {sT1} offen{off(u * 1024)} sc1')
        for r in range(16):
            I(f'v_dot2c_f32_bf16 v56, {sONE}, v{X + r}')
            I(f'v_dot2c_f32_bf16 v57, v{X + r}, v{X + r}')
        I('v_permlane32_swap_b32 v56, v57')
        I('v_add_f32 v56, v56, v57')
        I(f's_lshl_b32 {sT0}, s69, 11')
        I(f's_lshl_b32 {sT1}, s72, 8')
        I(f's_add_u32 {sT1}, {sT1}, {sT0}')
        I(f's_add_u32 {sT1}, {sT1}, {hx(ST)}')
        tx = I(f'buffer_store_dword v56, {vL4}, {WS}, {sT1} offen sc1')
        I(f's_branch {l_join}')
        p.end_div()
        p.label(l_q2)
        p.begin_div()
        I('v_lshl_add_u32 v52, v27, 5, v31')
        I(f's_lshl_b32 {sT0}, s72, 6')
        I(f'v_add_u32 v52, {sT0}, v52')
        self.tr_tile('v52', X, 0, range(4))
        for ks in range(4):
            I(f'buffer_store_dwordx4 {vr(X + 4 * ks, 4)}, {vL16}, {WS}, s69 offen{off(ks * 1024)} sc1')
        tq = self.colsum(X, AUX, sLD2)
        p.end_div()
        p.label(l_join)
        p.nop(2)
        self.stamp_early('p0 crit issued')
        if self.o.get('p0mode', 1) == 0:
            self.p0_common_loads()
        p.wait(tx, tq)
        p.wait_lg_all()
        I(f's_add_u32 s{TAG}, s{TAG}, 0x7f4a7c10')
        I(f's_addc_u32 s{TAG+1}, s{TAG+1}, 0x9e3779b9')
        I(f's_and_b32 s{TAG}, s{TAG}, -16')
        I(f'v_mov_b32 v{vTAG}, s{TAG}')
        I(f'v_mov_b32 v{vTAG+1}, s{TAG+1}')
        I('s_barrier')
        self.stamp_early('p0 crit drained')
        live = [t for t in p.vm if not t.done]
        self.post0(FLA, True)
        pre = None
        if live:
            p.wait(live[-1])
            self.stamp('rest loaded')
            skip = p.newlabel('p0pre')
            I(f's_cmp_lg_u32 {sW}, 0')
            I(f's_cbranch_scc1 {skip}')
            p.begin_div()
            pre = self.flag_issue(vFL, '0')
            p.end_div()
            p.label(skip)
            I('s_barrier')
        I('s_cmp_lt_u32 s2, 224')
        I(f's_cselect_b32 s18, {hx(WS_BYTES)}, 0')
        I('v_lshl_add_u32 v52, v27, 13, v31')
        I(f's_lshl_b32 {sT0}, {sW}, 5')
        I(f'v_add_u32 v52, {sT0}, v52')
        self.tr_tile('v52', X, 8192, range(4))
        I('v_lshl_add_u32 v53, v27, 5, v31')
        I(f's_lshr_b32 {sT0}, {sW}, 1')
        I(f's_lshl_b32 {sT0}, {sT0}, 6')
        I(f's_and_b32 {sT1}, {sW}, 1')
        I(f's_lshl_b32 {sT2}, {sT1}, 12')
        I(f's_add_u32 {sT0}, {sT0}, {sT2}')
        I(f'v_add_u32 v53, {sT0}, v53')
        self.tr_tile('v53', X + 16, 24576, range(2))
        I(f's_lshl_b32 {sT0}, s65, 12')
        I(f's_add_u32 {sT0}, {sT0}, s68')
        for ks in range(4):
            I(f'buffer_store_dwordx4 {vr(X + 4 * ks, 4)}, {vL16}, {AUX}, {sT0} offen{off(ks * 1024)} sc1')
        I(f's_lshl_b32 {sT0}, s65, 1')
        I(f's_lshr_b32 {sT2}, {sW}, 1')
        I(f's_add_u32 {sT0}, {sT0}, {sT2}')
        I(f's_mul_i32 {sT0}, {sT0}, 112')
        I(f's_lshl_b32 {sT2}, s66, 2')
        I(f's_add_u32 {sT0}, {sT0}, {sT2}')
        I(f's_lshl_b32 {sT1}, {sT1}, 1')
        I(f's_add_u32 {sT0}, {sT0}, {sT1}')
        I(f's_lshl_b32 {sT0}, {sT0}, 10')
        I(f's_add_u32 {sT0}, {sT0}, {hx(W4)}')
        for n in range(2):
            I(f'buffer_store_dwordx4 {vr(X + 16 + 4 * n, 4)}, {vL16}, {AUX}, {sT0} offen{off(n * 1024)} sc1')
        I(f's_add_u32 {sT0}, s68, s67')
        self.colsum(X, AUX, sT0)
        self.setup2()
        self.stamp('rest issued')
        skip = p.newlabel('p0poll')
        I(f's_cmp_lg_u32 {sW}, 0')
        I(f's_cbranch_scc1 {skip}')
        p.begin_div()
        self.poll(vFL, '0', 0, mask_low=True, code=1, sleep=2, pre=pre)
        if self.fast:
            I(f's_or_b32 {sT0}, s{TAG}, {sXCC}')
            I(f'v_cmp_ne_u32 vcc, {sT0}, v{vCK}')
            p.nop(1)
            I(f's_and_b32 {sT0}, vcc_lo, 0xffff')
            I(f'v_mov_b32 v{TMP}, {sT0}')
            I(f'ds_write_b32 {vSC}, v{TMP}')
        p.end_div()
        p.label(skip)
        p.wait_lg_all()
        I('s_barrier')
        if self.fast:
            I(f'ds_read_b32 v{TMP}, {vSC}')
        self.run(self.dma_block(0, 0) + self.dma_block(0, 1))
        if self.fast:
            I(f'v_readfirstlane_b32 {sMODE}, v{TMP}')
            p.nop(1)

    def stamp_early(self, name):
        self.stamp(name)

    def post0(self, base, with_xcc):
        p, I = self.p, self.I
        skip = p.newlabel('post')
        I(f's_cmp_lg_u32 {sW}, 3')
        I(f's_cbranch_scc1 {skip}')
        p.begin_div()
        if with_xcc:
            I(f'v_or_b32 v{TMP}, {sXCC}, v{vTAG}')
        else:
            I(f'v_mov_b32 v{TMP}, v{vTAG}')
        I(f'v_mov_b32 v{TMP+1}, v{vTAG+1}')
        I(f'v_lshlrev_b32 v{TMP+2}, 1, {vL4}')
        I(f's_lshl_b32 {sT0}, s2, 7')
        I(f's_add_u32 {sT0}, {sT0}, {hx(base)}')
        I('s_mov_b64 exec, 0xffff')
        I(f'buffer_store_dwordx2 {vr(TMP, 2)}, v{TMP+2}, {WS}, {sT0} offen sc1')
        I('s_mov_b64 exec, -1')
        p.end_div()
        p.label(skip)

    def setup1(self):
        p, I = self.p, self.I
        self.srd(24, 44, 45, H * DH * DH * 2)
        I('v_lshlrev_b32 v42, 7, v25')
        I('v_lshl_add_u32 v42, v26, 1, v42')
        I(f's_lshl_b32 {sT0}, {sJ}, 10')
        I(f's_and_b32 {sT1}, {sW}, 1')
        I(f's_lshl_b32 {sT1}, {sT1}, 9')
        I(f's_add_u32 {sT0}, {sT0}, {sT1}')
        for j in range(8):
            I(f'buffer_load_ushort v{ACC + j}, v42, {INS}, {sT0} offen{off(pi(0, j) * 32)}')
        if self.o.get('p0mode', 1) == 1:
            self.p0_common_loads()
        self.p0_early()
        self.touch_addr()
        for b in range(4):
            I(f'v_add_u32 v{vRB[b]}, {RING + b * BLK}, {vL16}')
        I(f'v_add_u32 {vSC}, {SCR}, {vL16}')
        I(f's_lshl_b32 {sT0}, {sW}, 5')
        I(f'v_add_u32 {vTW}, {sT0}, v24')
        I(f'v_mul_u32_u24 {vTW}, {TRP}, {vTW}')
        I(f'v_lshl_add_u32 {vTW}, v25, 3, {vTW}')
        I(f'v_add_u32 {vTW}, {SCR}, {vTW}')
        I('v_lshrrev_b32 v43, 2, v26')
        I('v_lshl_add_u32 v43, v28, 3, v43')
        I(f'v_mul_u32_u24 v43, {TRP}, v43')
        I('v_lshl_add_u32 v43, v32, 3, v43')
        I(f's_lshl_b32 {sT0}, {sW}, 5')
        I(f's_add_u32 {sT0}, {sT0}, {SCR}')
        I(f'v_add_u32 {vTA}, {sT0}, v43')
        I(f's_lshr_b32 {sT0}, {sW}, 1')
        I(f's_lshl_b32 {sT0}, {sT0}, 5')
        I(f's_add_u32 {sT0}, {sT0}, {SCR + 128}')
        I(f'v_add_u32 {vTB_}, {sT0}, v43')
        I(f'v_lshlrev_b32 {vGZ}, 4, v30')
        I(f'v_lshl_add_u32 {vGZ}, v25, 7, {vGZ}')
        I(f'v_lshl_add_u32 {vGZ}, v27, 4, {vGZ}')
        I(f'v_add_u32 {vGZ}, 8192, {vGZ}')
        I(f'v_lshlrev_b32 {vGW}, 9, v27')
        I(f'v_lshl_add_u32 {vGW}, v26, 4, {vGW}')
        I(f'v_lshl_add_u32 {vGW}, v25, 3, {vGW}')
        I(f's_lshl_b32 {sT0}, {sW}, 10')
        I(f's_add_u32 {sT0}, {sT0}, {SCR}')
        I(f'v_add_u32 {vGW}, {sT0}, {vGW}')
        I(f's_and_b32 {sT0}, {sW}, 1')
        I(f's_lshl_b32 {sT0}, {sT0}, 8')
        I(f'v_xor_b32 {vL16P}, {sT0}, {vL16}')
        I(f'v_lshlrev_b32 {vOUT}, 10, v24')
        I(f'v_lshl_add_u32 {vOUT}, v25, 4, {vOUT}')
        I(f'v_bfe_u32 {vHF}, v63, 2, 1')
        I(f'v_lshlrev_b32 {vHF}, 10, {vHF}')
        I(f'v_lshl_add_u32 {vHF}, v32, 3, {vHF}')
        I(f's_lshl_b32 {sFI}, {sG}, 10')
        I(f's_add_u32 {sFI}, {sFI}, {hx(FLI)}')
        I(f'v_lshlrev_b32 {vFI}, 3, v26')
        I(f'v_add_u32 {vFI}, {sFI}, {vFI}')
        I(f's_lshl_b32 {sT0}, {sJ}, 3')
        I(f's_add_u32 {sFI}, {sFI}, {sT0}')
        if self.mapping == 1:
            I(f's_and_b32 {sT0}, {sG}, 1')
            I(f's_lshl_b32 {sT0}, {sT0}, 7')
            I(f's_lshr_b32 {sT1}, {sG}, 1')
            I(f's_add_u32 {sT0}, {sT0}, {sT1}')
            I('v_lshlrev_b32 v44, 3, v26')
            I(f'v_add_u32 v44, {sT0}, v44')
        else:
            I(f's_and_b32 {sT0}, {sG}, 3')
            I(f's_lshl_b32 {sT0}, {sT0}, 6')
            I(f's_lshr_b32 {sT1}, {sG}, 2')
            I(f's_lshl_b32 {sT1}, {sT1}, 1')
            I(f's_add_u32 {sT0}, {sT0}, {sT1}')
            I('v_lshrrev_b32 v44, 1, v30')
            I('v_bfe_u32 v45, v63, 3, 1')
            I(f'v_add3_u32 v44, v44, v45, {sT0}')
        I('v_subrev_u32 v45, 2, v29')
        I('v_lshlrev_b32 v45, 6, v45')
        I('v_lshrrev_b32 v46, 4, v30')
        I(f's_lshr_b32 {sT0}, {sJ}, 1')
        I(f's_lshl_b32 {sT0}, {sT0}, 3')
        I(f'v_add3_u32 v45, v45, v46, {sT0}')
        I('v_subrev_u32 v47, 16, v63')
        I('v_cmp_gt_u32 vcc, 24, v47')
        I('v_cndmask_b32 v44, v44, v45, vcc')
        if self.mapping == 1:
            I('v_and_b32 v45, 1, v26')
            I('v_lshlrev_b32 v45, 7, v45')
            I('v_lshrrev_b32 v47, 1, v26')
            I(f's_lshl_b32 {sT0}, {sJ}, 3')
            I(f'v_add3_u32 v45, v45, v47, {sT0}')
        else:
            I('v_lshlrev_b32 v45, 6, v32')
            I('v_lshrrev_b32 v47, 2, v26')
            I('v_lshlrev_b32 v47, 1, v47')
            I(f's_lshl_b32 {sT0}, {sC}, 3')
            I(f's_lshr_b32 {sT1}, {sJ}, 3')
            I(f's_add_u32 {sT0}, {sT0}, {sT1}')
            I(f'v_add3_u32 v45, v45, v47, {sT0}')
        I('v_cmp_eq_u32 vcc, 3, v28')
        I('v_cndmask_b32 v44, v44, v45, vcc')
        I('v_lshlrev_b32 v44, 7, v44')
        I(f'v_add_u32 {vFL}, {hx(FLA)}, v44')
        I(f's_mul_i32 {sT0}, {sJ}, 7')
        I(f's_add_u32 {sT1}, {sT0}, 6')
        I(f's_lshr_b32 {sT0}, {sT0}, 2')
        I(f's_lshr_b32 {sT1}, {sT1}, 2')
        I(f'v_add_u32 v44, {sT0}, v29')
        I(f'v_min_u32 v44, {sT1}, v44')
        I('v_lshl_add_u32 v44, v44, 3, v46')
        I('v_subrev_u32 v45, 24, v63')
        I('v_and_b32 v45, 31, v45')
        I('v_lshlrev_b32 v45, 3, v45')
        I(f'v_add_u32 v45, {sC}, v45')
        I('v_cmp_gt_u32 vcc, 24, v63')
        I('v_cndmask_b32 v44, v45, v44, vcc')
        I('v_lshlrev_b32 v44, 7, v44')
        I(f'v_add_u32 {vFB}, {hx(FLB)}, v44')
        I('v_lshlrev_b32 v44, 3, v27')
        I('v_sub_u32 v44, v26, v44')
        I('v_and_b32 v45, 1, v44')
        I('v_lshlrev_b32 v45, 4, v45')
        I('v_mov_b32 v46, 0x3f80')
        I('v_lshlrev_b32 v45, v45, v46')
        I('v_lshrrev_b32 v44, 1, v44')
        for r in range(4):
            I(f'v_cmp_eq_u32 vcc, {r}, v44')
            I(f'v_cndmask_b32 v{ACC + 16 + r}, 0, v45, vcc')
        I(f'ds_write_b128 {vSC}, {vr(ACC + 16, 4)} offset:{CST - SCR + 2048}')
        I('v_lshlrev_b32 v44, 31, v27')
        I('v_lshrrev_b32 v45, 16, v44')
        I('v_or_b32 v44, v44, v45')
        for r in range(4):
            I(f'v_lshl_or_b32 v{ACC + 8 + r}, v{ACC + 2 * r + 1}, 16, v{ACC + 2 * r}')
            I(f'v_xor_b32 v{ACC + 8 + r}, v44, v{ACC + 8 + r}')
        I(f's_and_b32 {sT0}, {sW}, 1')
        I(f's_lshl_b32 {sT0}, {sT0}, 10')
        I(f'v_add_u32 v44, {sT0}, {vSC}')
        I(f'ds_write_b128 v44, {vr(ACC + 8, 4)} offset:{CST - SCR}')

    def setup2(self):
        I = self.I
        I(f'v_and_b32 v34, -4, v63')
        I(f'v_lshl_add_u32 v34, v32, 7, v34')
        I(f's_lshr_b32 {sT0}, {sW}, 1')
        I(f's_lshl_b32 {sT0}, {sT0}, 9')
        I(f's_and_b32 {sT1}, {sW}, 1')
        I(f's_lshl_b32 {sT1}, {sT1}, 6')
        I(f's_add_u32 {sT0}, {sT0}, {sT1}')
        I(f'v_add_u32 {vCS}, {sT0}, v34')
        I(f's_lshl_b32 {sW8K}, {sW}, 13')
        I(f's_mul_i32 {sT0}, {sJ}, {10 * BLK}')
        I(f's_add_u32 {sT0}, {sT0}, {hx(W13)}')
        I(f's_lshl_b32 {sW4K}, {sW}, 12')
        I(f's_add_u32 {sW13}, {sT0}, {sW4K}')
        I(f's_lshl_b32 {sQ4}, {sW}, 8')
        I(f's_add_u32 {sQ4}, {sQ4}, 32768')
        I(f's_add_u32 {sW13c}, {sT0}, 32768')
        I(f's_lshl_b32 {sT0}, {sTB}, 15')
        I(f's_add_u32 {sXin}, {sT0}, {hx(XF)}')
        I(f's_lshl_b32 {sT1}, {sJ}, 11')
        I(f's_add_u32 {sT0}, {sT0}, {sT1}')
        I(f's_add_u32 {sOout}, {sT0}, {hx(OF)}')
        I(f's_lshl_b32 {sT0}, {sTB}, 11')
        I(f's_add_u32 {sSin}, {sT0}, {hx(ST)}')

    def setup3(self):
        I = self.I
        I(f'v_lshrrev_b32 {vFS}, 1, {vL16}')
        I(f'v_and_b32 {vFS}, 0x38, {vFS}')
        I(f's_lshr_b32 {sT3}, {sC}, 2')
        I(f's_xor_b32 {sT3}, {sT3}, {sW}')
        I(f's_and_b32 {sT3}, {sT3}, 1')
        I(f's_add_u32 {sT3}, {sT3}, {sTBP}')
        I(f's_lshl_b32 {sT0}, {sT3}, 11')
        I(f's_lshl_b32 {sT1}, {sC}, 8')
        I(f's_add_u32 {sT0}, {sT0}, {sT1}')
        I(f's_add_u32 {sSu}, {sT0}, {hx(ST)}')
        I(f's_lshl_b32 {sT0}, {sT3}, 10')
        I(f's_lshl_b32 {sT1}, {sC}, 3')
        I(f's_add_u32 {sT0}, {sT0}, {sT1}')
        I(f's_add_u32 {sFSo}, {sT0}, {hx(FLH)}')
        I(f's_lshl_b32 {sT0}, {sTB}, 10')
        I(f's_add_u32 {sFSi}, {sT0}, {hx(FLH)}')
        I(f's_mul_i32 {sT0}, {sTB}, {112 * 1024}')
        I(f's_mul_i32 {sT1}, {sJ}, 7168')
        I(f's_add_u32 {sT0}, {sT0}, {sT1}')
        I(f's_add_u32 {sHout}, {sT0}, {hx(HF)}')
        I(f's_lshl_b32 {sT0}, {sTB}, 10')
        I(f's_lshl_b32 {sT1}, {sJ}, 3')
        I(f's_add_u32 {sT0}, {sT0}, {sT1}')
        I(f's_add_u32 {sFHo}, {sT0}, {hx(FLH)}')
        I(f's_lshl_b32 {sT0}, {sTBP}, 10')
        I(f's_lshl_b32 {sT1}, {sW}, 5')
        I(f's_add_u32 {sT0}, {sT0}, {sT1}')
        I(f's_add_u32 {sFHi}, {sT0}, {hx(FLH)}')
        for tl in range(2):
            I(f's_lshr_b32 {sT3}, {sC}, 2')
            I(f's_xor_b32 {sT3}, {sT3}, {tl}')
            I(f's_add_u32 {sT3}, {sT3}, {sTBP}')
            I(f's_lshl_b32 {sT0}, {sT3}, 15')
            I(f's_add_u32 {sT1}, {sT0}, {sW8K}')
            I(f's_add_u32 {sOin[tl]}, {sT1}, {hx(OF)}')
            I(f's_lshl_b32 {sT1}, {sC}, 2')
            I(f's_add_u32 {sT1}, {sT1}, {sW}')
            I(f's_lshl_b32 {sT2}, {sT1}, 10')
            I(f's_add_u32 {sT2}, {sT2}, {sT0}')
            I(f's_add_u32 {sXu[tl]}, {sT2}, {hx(XF)}')
            I(f's_lshl_b32 {sT2}, {sT1}, 5')
            I(f's_add_u32 {sOu[tl]}, {sT2}, {sT0}')
            I(f's_mul_i32 {sT0}, {sT3}, {112 * 1024}')
            I(f's_mul_i32 {sT1}, {sW}, {28 * 1024}')
            I(f's_add_u32 {sT0}, {sT0}, {sT1}')
            I(f's_add_u32 {sT0}, {sT0}, {hx(HF)}')
            for pl in range(4):
                I(f's_add_u32 {sT1}, {sC}, {pl}')
                I(f's_and_b32 {sT1}, {sT1}, 3')
                I(f's_mul_i32 {sT1}, {sT1}, 7168')
                I(f's_add_u32 s{sH + 8 * tl + 2 * pl}, {sT0}, {sT1}')
                I(f's_add_u32 s{sH + 8 * tl + 2 * pl + 1}, s{sH + 8 * tl + 2 * pl}, 4096')
            I(f's_lshr_b32 {sT0}, {sW}, 1')
            I(f's_xor_b32 {sT0}, {sT0}, {tl}')
            I(f's_lshl_b32 {sT1}, {sC}, 1')
            I(f's_add_u32 {sT0}, {sT0}, {sT1}')
            I(f's_lshl_b32 {sT1}, {sT0}, 15')
            I(f's_add_u32 {sT1}, {sT1}, {sW8K}')
            I(f's_add_u32 {sW2[tl]}, {sT1}, {hx(W2)}')
            I(f's_mul_i32 {sT0}, {sT0}, {112 * 1024}')
            I(f's_mul_i32 {sT1}, {sW}, {28 * 1024}')
            I(f's_add_u32 {sT0}, {sT0}, {sT1}')
            I(f's_add_u32 {sW4[tl]}, {sT0}, {hx(W4)}')
        for u in range(1, 4):
            I(f's_xor_b32 {sT0}, {sW}, {u}')
            I(f's_mul_i32 {sT0}, {sT0}, 6144')
            I(f's_add_u32 {sRW[u-1]}, {sT0}, {(u - 1) * 2048}')
        I(f's_mul_i32 {sRW[3]}, {sW}, 6144')

    def load_x(self, streg, stat_pos, fslot):
        I = self.I

        def xl(ks):
            def f():
                so = sXin
                if ks >= 4:
                    so = sLD
                    if ks % 4 == 0:
                        I(f's_add_u32 {sLD}, {sXin}, {ks * 1024}')
                I(f'buffer_load_dwordx4 {vr(X + 4 * ks, 4)}, {vL16}, {WS}, {so} offen{off((ks % 4) * 1024)} sc1')
                if fslot is not None and ks == stat_pos - self.o['LA'] - 1:
                    self.flag_issue(vFS, sFSi, fslot)
            return f

        def sl(c):
            def f():
                if c == 0 and fslot is not None:
                    self.flag_check(vFS, sFSi, fslot, 8)
                for cc in range(4 * c, 4 * c + 4):
                    I(f'buffer_load_dword v{streg + cc}, {vL4}, {WS}, {sSin} offen{off(cc * 256)} sc1')
            return f
        return [xl(k) for k in range(stat_pos)] + [sl(c) for c in range(2)] + [xl(k) for k in range(stat_pos, 32)]

    def stats_code(self, streg):
        regs = [streg + c for c in range(8)]
        out = []
        while len(regs) > 1:
            nxt = []
            for a, b in zip(regs[0::2], regs[1::2]):
                out.append(f'v_add_f32 v{a}, v{a}, v{b}')
                nxt.append(a)
            regs = nxt
        s = regs[0]
        t = s + 1
        out += [f'v_mul_f32 v{s}, {hx(f2u(1.0 / 512))}, v{s}',
                f'v_mov_b32 v{t}, v{s}',
                f'v_permlane32_swap_b32 v{s}, v{t}',
                f'v_fma_f32 v{t}, -v{s}, v{s}, v{t}',
                f'v_max_f32 v{t}, 0, v{t}',
                f'v_add_f32 {vS2}, {hx(f2u(1e-5))}, v{t}',
                f'v_rsq_f32 {vRS}, {vS2}',
                f'v_cvt_pk_bf16_f32 v{MF}, -v{s}, -v{s}',
                f'v_mov_b32 v{MF+1}, v{MF}',
                f'v_mov_b32 v{MF+2}, v{MF}',
                f'v_mov_b32 v{MF+3}, v{MF}']
        return out

    def phi_read(self):
        r = [self.stage(), self.stage()]
        for h in range(2):
            self.I(f'ds_read_b128 {r[h]}, {vSC} offset:{CST - SCR + 1024 * h}')
        return r

    def feature_map(self, src, phi, sink, between=()):
        p, I = self.p, self.I
        KF = TMP
        for h in range(2):
            for r in range(4 * h, 4 * h + 4):
                I(f'v_cvt_pk_bf16_f32 v{KF + r}, v{src + 2 * r}, v{src + 2 * r + 1}')
        for h in range(2):
            I(f'v_mfma_f32_32x32x16_bf16 {vr(A(2 + h), 16)}, {phi[h]}, {vr(KF + 4 * h, 4)}, 0')
        self.run(between)
        M = TMP + 8
        m = lambda h, s: M + 2 * h + s
        for h in range(2):
            for s in range(2):
                b = A(2 + h) + 8 * s
                I(f'v_max3_f32 v{m(h, s)}, v{b}, v{b+1}, v{b+2}')
                I(f'v_max3_f32 v{TMP + 2 * h + s}, v{b+3}, v{b+4}, v{b+5}')
                I(f'v_max3_f32 v{m(h, s)}, v{b+6}, v{b+7}, v{m(h, s)}')
                I(f'v_max_f32 v{m(h, s)}, v{m(h, s)}, v{TMP + 2 * h + s}')

        def cross(op):
            for h in range(2):
                I(f'v_permlane32_swap_b32 v{m(h, 0)}, v{m(h, 1)}')
            for h in range(2):
                I(f'{op} v{m(h, 0)}, v{m(h, 0)}, v{m(h, 1)}')
        cross('v_max_f32')
        for h in range(2):
            I(f'v_mul_f32 v{m(h, 1)}, v{m(h, 0)}, {vC1}')
            I(f'v_mul_f32 v{m(h, 0)}, v{m(h, 0)}, {vC1}')
        for h in range(2):
            I(f'v_permlane32_swap_b32 v{m(h, 0)}, v{m(h, 1)}')
        c2 = 'v[44:45]'
        for h in range(2):
            for s in range(2):
                b = A(2 + h) + 8 * s
                mm = vr(M + 2 * h, 2)
                for r in range(0, 8, 2):
                    I(f'v_pk_fma_f32 {vr(b + r, 2)}, {vr(b + r, 2)}, {c2}, {mm} op_sel:[0,0,{s}] op_sel_hi:[1,0,{s}] neg_lo:[0,0,1] neg_hi:[0,0,1]')
        for h in range(2):
            for r in range(16):
                I(f'v_exp_f32 v{A(2 + h) + r}, v{A(2 + h) + r}')
        for h in range(2):
            for s in range(2):
                b = A(2 + h) + 8 * s
                t = TMP + 4 * h + 2 * s
                I(f'v_pk_add_f32 {vr(t, 2)}, {vr(b, 2)}, {vr(b + 2, 2)}')
                I(f'v_pk_add_f32 {vr(t, 2)}, {vr(t, 2)}, {vr(b + 4, 2)}')
                I(f'v_pk_add_f32 {vr(t, 2)}, {vr(t, 2)}, {vr(b + 6, 2)}')
                I(f'v_add_f32 v{m(h, s)}, v{t}, v{t+1}')
        cross('v_add_f32')
        for h in range(2):
            I(f'v_rcp_f32 v{m(h, 0)}, v{m(h, 0)}')
        for h in range(2):
            I(f'v_mov_b32 v{m(h, 1)}, v{m(h, 0)}')
        for h in range(2):
            I(f'v_permlane32_swap_b32 v{m(h, 0)}, v{m(h, 1)}')
        for h in range(2):
            for s in range(2):
                b = A(2 + h) + 8 * s
                mm = vr(M + 2 * h, 2)
                for r in range(0, 8, 2):
                    I(f'v_pk_mul_f32 {vr(b + r, 2)}, {vr(b + r, 2)}, {mm} op_sel:[0,{s}] op_sel_hi:[1,{s}]')
            for g in range(4):
                sink(h, g, A(2 + h) + 4 * g)

    def stream_events(self, ld, SP, gap_of, extra=(), bks=29, la0=None):
        LA = self.o['LA']
        LA0 = la0 or self.o.get('LA0', 7)
        self.run(ld[:LA0])
        rest = list(ld[LA0:]) + list(extra)
        tot = len(ld) + len(extra)
        ev = {}
        for ks in range(32):
            pos = ks if ks < SP else ks + 2
            want = min(tot if ks >= bks else len(ld), pos + 1 + LA)
            k = 0
            while tot - len(rest) < want and k < 2:
                ev.setdefault(gap_of(ks) + k, []).append(rest.pop(0))
                k += 1
        return ev, rest

    def p1(self, L):
        p, I = self.p, self.I
        sk, sv, sq = self.slot(L, 0), self.slot(L, 1), self.slot(L, 2)
        streg = PQ
        SP = self.o.get('SP1', 24)
        ld = self.load_x(streg, SP, 384 + 64 if L else None)
        extra = [lambda: self.flag_issue(vFB, '0')] if L == 0 else []
        extra += self.sched(L, 'A0')
        ev, rest = self.stream_events(ld, SP, lambda ks: 2 * ks, extra, self.o.get('bks1', 27), 16 if L == 0 else None)
        if L == 0:
            self.setup3()
            p.wait(*self.need(0, 0, 1))
            I('s_barrier')
            self.post0(FLB, False)
            self.stamp('k,v in LDS')
        steps = []
        for ks in range(31):
            steps.append((A(0), sk, ks, vr(X + 4 * ks, 4), ks == 0))
            steps.append((A(1), sv, ks, vr(X + 4 * ks, 4), ks == 0))
        steps.append((A(0), sk, 32, vr(MF, 4), False))
        steps.append((A(1), sv, 32, vr(MF, 4), False))
        steps.append((A(0), sk, 31, vr(X + 124, 4), False))
        steps.append((A(1), sv, 31, vr(X + 124, 4), False))
        st = self.stats_code(streg) + [f'v_mul_f32 {vC1}, {hx(f2u(math.log2(math.e)))}, {vRS}']
        phi = []
        ev.setdefault(63, []).append(lambda: phi.extend(self.phi_read()))
        cuts = {}
        if any(isinstance(it, tuple) and it[1] in (4, 5) for it in self.plan[L].get('A0', [])):
            cuts[36] = lambda: I('s_barrier')
        left = self.mstream(steps, events=ev, fill=[(2 * SP + 1, t, 62) for t in st], cuts=cuts)
        assert not left
        self.stamp('p1 kv gemm')
        if L == 0:
            self.flag_check(vFB, '0', 0, 3)
        if self.plan[L].get('A'):
            I('s_barrier')
        vep = []
        for r in range(16):
            vep.append(f'v_mul_f32 v{A(1) + r}, v{A(1) + r}, {vRS}')
        for g in range(4):
            b = A(1) + 4 * g
            vep.append(f'v_cvt_pk_bf16_f32 v{b}, v{b}, v{b+1}')
            vep.append(f'v_cvt_pk_bf16_f32 v{b+1}, v{b+2}, v{b+3}')
            vep.append(f'ds_write_b64 {vTW}, {vr(b, 2)} offset:{128 + 16 * g}')

        def sink_k(h, g, b):
            I(f'v_cvt_pk_bf16_f32 v{b}, v{b}, v{b+1}')
            I(f'v_cvt_pk_bf16_f32 v{b+1}, v{b+2}, v{b+3}')
            I(f'ds_write_b64 {vTW}, {vr(b, 2)} offset:{64 * h + 16 * g}')
        q = rest + self.sched(L, 'A')
        self.bg_on(q, self.o.get('perA', 64))
        self.feature_map(A(0), phi, sink_k, between=vep)
        self.bg_off()
        for r in range(4):
            I(f'v_mov_b32 v{TMP + r}, {sONE}')
        p.wait_lg_all()
        I('s_barrier')
        self.stamp('p1 k softmax')
        fa = [A(1) + 4 * i for i in range(4)]
        fb = [A(2) + 4 * i for i in range(4)]
        for s in range(4):
            for base, reg in ((vTA, fa[s]), (vTB_, fb[s])):
                for rd in range(2):
                    I(f'ds_read_b64_tr_b16 {vr(reg + 2 * rd, 2)}, {base} offset:{(32 * s + 4 * rd) * TRP}')
        if L:
            I(f's_add_u32 {sKV}, {sKV}, {KVP_SZ}')
        for s in range(4):
            I(f'v_mfma_f32_16x16x32_bf16 {vr(A(0), 4)}, {vr(fa[s], 4)}, {vr(fb[s], 4)}, {"0" if s == 0 else vr(A(0), 4)}')
            I(f'v_mfma_f32_16x16x32_bf16 {vr(A(0) + 4, 4)}, {vr(fa[s], 4)}, {vr(TMP, 4)}, {"0" if s == 0 else vr(A(0) + 4, 4)}')
        for n, vo in enumerate((vKV, vKZ)):
            b = A(0) + 4 * n
            d = A(0) + 8 + 2 * n
            I(f'v_cvt_pk_bf16_f32 v{d}, v{b}, v{b+1}')
            I(f'v_cvt_pk_bf16_f32 v{d+1}, v{b+2}, v{b+3}')
            I(f'v_min_u32 v{d}, -2, v{d}')
            I(f'buffer_store_dwordx2 {vr(d, 2)}, {vo}, {WS}, {sKV} offen sc1')
        self.stamp('p1 kv partial')
        p.wait(*self.need(L, 2))
        I('s_barrier')
        steps = [(A(1), sq, ks, vr(X + 4 * ks, 4), ks == 0) for ks in range(32)] + [(A(1), sq, 32, vr(MF, 4), False)]
        bg = self.sched(L, 'B')
        phi = []
        ev = {30: [lambda: phi.extend(self.phi_read())]}
        GR = self.GR
        gl = self.gather_list(GR)
        g0 = self.o.get('gath0', 20)
        for k, f in enumerate(gl):
            gap = g0 + (k * (33 - g0)) // 9
            if gap < 33:
                ev.setdefault(gap, []).append(f)
        self.mstream(steps, events=ev, bg=bg, bg_gap=self.o.get('gapB', 2))
        assert not bg
        self.stamp('p1 q gemm')
        w2 = []
        for cbl in range(2):
            for i in range(8):
                def f(cbl=cbl, i=i):
                    if i == 4:
                        I(f's_add_u32 {sLD}, {sW2[cbl]}, 4096')
                    I(f'buffer_load_dwordx4 {vr(self.W2R + 4 * (cbl * 8 + i), 4)}, {vL16P}, {WS}, {sW2[cbl] if i < 4 else sLD} offen{off((i % 4) * 1024)}')
                w2.append(f)

        def sink_q(h, g, b):
            d = PQ + 8 * h + 2 * g
            I(f'v_cvt_pk_bf16_f32 v{d}, v{b}, v{b+1}')
            I(f'v_cvt_pk_bf16_f32 v{d+1}, v{b+2}, v{b+3}')
        q = w2 + self.sched(L, 'C')
        self.bg_on(q, self.o.get('perC', 80))
        self.feature_map(A(1), phi, sink_q)
        self.bg_off(flush=False)
        self.cleft = q
        self.stamp('p1 q done')

    GR = X
    W2R = X + 64

    def gather_list(self, GR):
        I = self.p.I
        out = []
        for i in range(8):
            def f(i=i):
                if i == 4:
                    I(f's_add_u32 {sLD2}, {sKV}, 4096')
                I(f'buffer_load_dwordx4 {vr(GR + 4 * i, 4)}, {vL16}, {WS}, {sKV if i < 4 else sLD2} offen{off((i % 4) * 1024)} sc1')
            out.append(f)
        out.append(lambda: I(f'buffer_load_dwordx4 {vr(GR + 32, 4)}, {vGZ}, {WS}, {sKV} offen sc1'))
        return out

    def gather_issue(self, GR):
        for f in self.gather_list(GR):
            f()

    def gather_test(self, GR):
        I = self.p.I
        t = TMP
        I(f'v_max3_u32 v{t}, v{GR}, v{GR+4}, v{GR+8}')
        I(f'v_max3_u32 v{t}, v{GR+12}, v{GR+16}, v{t}')
        I(f'v_max3_u32 v{t}, v{GR+20}, v{GR+24}, v{t}')
        I(f'v_max3_u32 v{t}, v{GR+28}, v{GR+32}, v{t}')
        I(f'v_cmp_eq_u32 vcc, -1, v{t}')

    def p2a(self, L):
        p, I = self.p, self.I
        GR = self.GR
        idn = self.stage()
        I(f'ds_read_b128 {idn}, {vSC} offset:{CST - SCR + 2048}')
        stub, back = p.newlabel('gstub'), p.newlabel('gback')
        self.gather_test(GR)
        I(f's_cbranch_vccnz {stub}')
        p.label(back)

        def emit():
            lp = p.newlabel('gl')
            p.label(stub)
            p.I(f's_mov_b32 {sCNT}, 0')
            p.label(lp)
            self.gather_issue(GR)
            p.wait_vm_all()
            self.gather_test(GR)
            p.I(f's_cbranch_vccz {back}')
            self.spin_tail(lp, 2, 2)
        self.stubs.append(emit)
        self.stamp('G checked')
        self.bg_on(self.cleft, 16)
        Z, K = A(0), A(0) + 4
        I(f'v_mfma_f32_16x16x32_bf16 {vr(Z, 4)}, {idn}, {vr(GR + 32, 4)}, 0')
        for i in range(8):
            I(f'v_mfma_f32_16x16x32_bf16 {vr(K, 4)}, {idn}, {vr(GR + 4 * i, 4)}, {"0" if i == 0 else vr(K, 4)}')
        self.bg_off()
        for sh in (1, 2, 4):
            for r in range(4):
                I(f'v_add_f32_dpp v{Z + r}, v{Z + r}, v{Z + r} row_ror:{sh} row_mask:0xf bank_mask:0xf')
        for n, b in enumerate((Z, K)):
            d = A(0) + 8 + 2 * n
            I(f'v_cvt_pk_bf16_f32 v{d}, v{b}, v{b+1}')
            I(f'v_cvt_pk_bf16_f32 v{d+1}, v{b+2}, v{b+3}')
            I(f'ds_write_b64 {vGW}, {vr(d, 2)} offset:{256 if n == 0 else 0}')
        p.wait_lg_all()
        I('s_barrier')
        kf = [self.stage() for _ in range(4)]
        for i in (0, 2, 1, 3):
            I(f'ds_read_b128 {kf[i]}, {vSC} offset:{i * 1024}')
        for s in range(2):
            for h in range(2):
                I(f'v_mfma_f32_32x32x16_bf16 {vr(A(h), 16)}, {kf[2 * h + s]}, {vr(PQ + 8 * h + 4 * s, 4)}, {"0" if s == 0 else vr(A(h), 16)}')
        self.res_load()
        self.red_addr()
        toks = []
        for h in range(2):
            b = A(h)
            I(f'v_add_f32 v{b + 8}, {hx(f2u(1e-6))}, v{b + 8}')
            I(f'v_rcp_f32 v{b + 8}, v{b + 8}')
            for r in range(0, 8, 2):
                I(f'v_pk_mul_f32 {vr(b + r, 2)}, {vr(b + r, 2)}, {vr(b + 8, 2)} op_sel_hi:[1,0]')
            for r in range(4):
                I(f'v_cvt_pk_bf16_f32 v{TMP + 4 * h + r}, v{b + 2 * r}, v{b + 2 * r + 1}')
            toks += self.st_group(TMP + 4 * h, 4, vL16, sOout, h * 1024)
        self.stamp('o stored')
        self.hop(3 * L, toks, before=self.sched(L, 'D'))
        self.stamp('o hop')

    def res_load(self):
        for tl in range(2):
            self.I(f'buffer_load_dwordx4 {vr(RES + 4 * tl, 4)}, {vL16}, {WS}, {sXu[tl]} offen sc1')

    def res_init(self):
        I = self.I
        for tl in range(2):
            b = A(2 * tl)
            for r in range(4):
                I(f'v_lshlrev_b32 v{b + 2 * r}, 16, v{RES + 4 * tl + r}')
                I(f'v_and_b32 v{b + 2 * r + 1}, 0xffff0000, v{RES + 4 * tl + r}')
            for r in range(8, 16, 2):
                I(f'v_mov_b64 {vr(b + r, 2)}, 0')

    def red_addr(self):
        I = self.I
        for u in range(4):
            I(f'v_add_u32 v{PQ + u}, {sRW[u]}, {vSC}')
        I(f's_add_u32 {sT0}, {sRW[3]}, {SCR}')
        I(f'v_add_u32 v{PQ + 4}, {sT0}, {vL4}')
        I(f's_and_b32 {sT0}, {sW}, 1')
        I(f's_lshl_b32 {sT0}, {sT0}, 8')
        I(f's_add_u32 {sT0}, {sT0}, {SCR}')
        I(f'v_add_u32 v{PQ + 5}, {sT0}, {vL4}')

    def red_write(self, tl):
        src = [A(2 * tl) + 8, A(2 * tl + 1), A(2 * tl + 1) + 8]
        out = []
        for u in range(3):
            out.append(f'ds_write_b128 v{PQ + u}, {vr(src[u], 4)}')
            out.append(f'ds_write_b128 v{PQ + u}, {vr(src[u] + 4, 4)} offset:1024')
        return out

    def stats_out(self, slot):
        p, I = self.p, self.I
        skip = p.newlabel('sto')
        I(f's_cmp_lt_u32 {sW}, 2')
        I(f's_cbranch_scc1 {skip}')
        p.begin_div()
        for u in range(4):
            I(f'ds_read_b32 v{TMP + u}, v{PQ + 5} offset:{u * 6144}')
        I(f'v_add_f32 v{TMP}, v{TMP}, v{TMP + 1}')
        I(f'v_add_f32 v{TMP + 2}, v{TMP + 2}, v{TMP + 3}')
        I(f'v_add_f32 v{TMP}, v{TMP}, v{TMP + 2}')
        t = self.st_group(TMP, 1, vL4, sSu)
        p.wait(*t)
        I('s_mov_b64 exec, 1')
        self.st_group(vTAG, 2, 'off', sFSo, slot)
        I('s_mov_b64 exec, -1')
        p.end_div()
        p.label(skip)

    def finalize(self, tl, final, toks, pk=True):
        b = A(2 * tl)
        dst = [b + 8, b + 12, b + 16, b + 20, b + 24, b + 28]
        out = []
        for u in range(3):
            for q in range(2):
                out.append(f'ds_read_b128 {vr(dst[2 * u + q], 4)}, v{PQ + 3} offset:{u * 2048 + q * 1024}')
        for u in range(3):
            for q in range(2):
                if pk:
                    for h in range(0, 4, 2):
                        out.append(f'v_pk_add_f32 {vr(b + 4 * q + h, 2)}, {vr(b + 4 * q + h, 2)}, {vr(dst[2 * u + q] + h, 2)}')
                else:
                    for h in range(4):
                        out.append(f'v_add_f32 v{b + 4 * q + h}, v{b + 4 * q + h}, v{dst[2 * u + q] + h}')
        o = b + 8
        for r in range(4):
            out.append(f'v_cvt_pk_bf16_f32 v{o + r}, v{b + 2 * r}, v{b + 2 * r + 1}')
        if final:
            out.append(f'v_permlane32_swap_b32 v{o}, v{o+2}')
            out.append(f'v_permlane32_swap_b32 v{o+1}, v{o+3}')
            out.append(f'buffer_store_dwordx4 {vr(o, 4)}, {vOUT}, {OUT}, {sOu[tl]} offen')
            return out
        out.append(lambda: toks.extend(self.st_group(o, 4, vL16, sXu[tl])))
        out.append(f'v_mov_b64 {vr(b, 2)}, 0')
        for r in range(4):
            out.append(f'v_dot2c_f32_bf16 v{b}, {sONE}, v{o + r}')
            out.append(f'v_dot2c_f32_bf16 v{b+1}, v{o + r}, v{o + r}')
        out.append(f'v_permlane32_swap_b32 v{b}, v{b+1}')
        out.append(f'v_add_f32 v{b}, v{b}, v{b+1}')
        return out

    def ksplit(self, order, areg, breg, load, nl0, final, ev, hooks=None, mix=(), behind=()):
        p, I = self.p, self.I
        N = len(order)
        mix, behind = list(mix), list(behind)
        steps = []
        seen = set()
        last0 = max(n for n, o in enumerate(order) if o[0] == 0)
        first1 = min(n for n, o in enumerate(order) if o[0] == 1)
        nl = nl0
        for n, (tl, key) in enumerate(order):
            g = len(steps)
            if nl < N:
                if hooks:
                    hooks(nl, g)
                ev.setdefault(g, []).append(lambda nl=nl: load(nl))
                nl += 1
                if mix and n >= 1:
                    ev.setdefault(g + 1, []).append(mix.pop(0))
            else:
                for k in range(2):
                    q = mix or (behind if n >= N - self.o.get('behind_n', 5) else None)
                    if q:
                        ev.setdefault(g + k, []).append(q.pop(0))
            for cbl in range(2):
                a = 2 * tl + cbl
                steps.append((A(a), None, areg(key, cbl), breg(n), a not in seen and cbl == 1))
                seen.add(a)
        toks = []
        gm = 2 * last0 + 1
        for k, w in enumerate(self.red_write(0)):
            ev.setdefault(gm + 2 + k, []).append(w)

        def mid():
            p.wait_lg_all()
            I('s_barrier')
        ev.setdefault(gm + 8, []).append(mid)
        f0 = self.finalize(0, final, toks, pk=False)
        f0.insert(30, 's_barrier')
        cut = 36 if not final else len(f0)
        left = self.mstream(steps, events=ev, fill=[(gm + 8, it) for it in f0[:cut]])
        if self.o.get('fine'):
            self.stamp('mfma end')
        rest = [it[1] for it in left] + f0[cut:] + mix + behind
        if 's_barrier' in rest:
            k = rest.index('s_barrier')
            self.run(rest[:k + 1])
            rest = rest[k + 1:]
        k0 = min(len(rest), 5)
        self.run(rest[:k0])
        rest = rest[k0:]
        w1 = self.red_write(1)
        per = -(-len(rest) // 6)
        for k, w in enumerate(w1):
            self.run([w] + rest[k * per:(k + 1) * per])
        p.wait_lg_all()
        I('s_barrier')
        self.run(self.finalize(1, final, toks))
        if not final:
            toks.append(I(f'ds_write_b32 v{PQ + 4}, v{A(0)}'))
            toks.append(I(f'ds_write_b32 v{PQ + 4}, v{A(2)} offset:256'))
        return toks

    def p2(self, L):
        p, I = self.p, self.I

        def load(n):
            tl, i = divmod(n, 8)
            if i == 4:
                I(f's_add_u32 {sLD}, {sOin[tl]}, 4096')
            I(f'buffer_load_dwordx4 {vr(X + 4 * n, 4)}, {vL16}, {WS}, {sOin[tl] if i < 4 else sLD} offen{off((i % 4) * 1024)} sc1')
        LA = self.o.get('LA2', 8)
        q = [(lambda n=n: load(n)) for n in range(LA)]
        self.bg_on(q, 12)
        self.res_init()
        self.bg_off()
        order = [divmod(n, 8) for n in range(16)]
        toks = self.ksplit(order, lambda i, cbl: vr(self.W2R + 4 * (cbl * 8 + i), 4), lambda n: vr(X + 4 * n, 4), load, LA, False, {},
                           behind=self.sched(L, 'E0'))
        self.stamp('p2 done')
        self.hop(3 * L + 1, toks, before=self.sched(L, 'E'), stats=L * 512 + 384, extra_wait=self.need_later(L, 3, 4, 5))
        self.stamp('x1 hop')

    def need_later(self, L, *tiles):
        class Lazy(list):
            def __iter__(s):
                return iter(self.need(L, *tiles))
        return Lazy()

    def geglu(self, L, acc, tile, toks, pk=False):
        out = []
        T = [TMP + i for i in range(8)]
        if pk:
            for r in range(0, 8, 2):
                out.append(f'v_pk_mul_f32 {vr(T[r], 2)}, {vr(acc + r, 2)}, {vr(acc + r, 2)}')
            for r in range(0, 8, 2):
                out.append(f'v_pk_fma_f32 {vr(T[r], 2)}, {vr(T[r], 2)}, v[44:45], v[44:45] op_sel:[0,1,0] op_sel_hi:[1,1,0]')
            for r in range(0, 8, 2):
                out.append(f'v_pk_mul_f32 {vr(T[r], 2)}, {vr(T[r], 2)}, {vr(acc + r, 2)}')
            for r in range(8):
                out.append(f'v_exp_f32 v{T[r]}, v{T[r]}')
            for r in range(0, 8, 2):
                out.append(f'v_pk_mul_f32 {vr(acc + 8 + r, 2)}, {vr(acc + r, 2)}, {vr(acc + 8 + r, 2)}')
            for r in range(0, 8, 2):
                out.append(f'v_pk_fma_f32 {vr(T[r], 2)}, {vr(T[r], 2)}, v[46:47], v[46:47] op_sel:[0,0,0] op_sel_hi:[1,0,0]')
            for r in range(8):
                out.append(f'v_rcp_f32 v{T[r]}, v{T[r]}')
            for r in range(0, 8, 2):
                out.append(f'v_pk_mul_f32 {vr(acc + 8 + r, 2)}, {vr(acc + 8 + r, 2)}, {vr(T[r], 2)}')
            for r in range(4):
                out.append(f'v_cvt_pk_bf16_f32 v{TMP + 8 + r}, v{acc + 8 + 2 * r}, v{acc + 9 + 2 * r}')
        else:
            for r in range(8):
                out.append(f'v_mul_f32 v{T[r]}, v{acc + r}, v{acc + r}')
            for r in range(8):
                out.append(f'v_fma_f32 v{T[r]}, v{T[r]}, {vC3}, {vC1}')
            for r in range(8):
                out.append(f'v_mul_f32 v{T[r]}, v{T[r]}, v{acc + r}')
            for r in range(8):
                out.append(f'v_exp_f32 v{T[r]}, v{T[r]}')
                out.append(f'v_mul_f32 v{acc + 8 + r}, v{acc + r}, v{acc + 8 + r}')
            for r in range(8):
                out.append(f'v_fma_f32 v{T[r]}, v{T[r]}, {vS2}, {vS2}')
            for r in range(8):
                out.append(f'v_rcp_f32 v{T[r]}, v{T[r]}')
                if r:
                    out.append(f'v_mul_f32 v{acc + 7 + r}, v{acc + 7 + r}, v{T[r-1]}')
            out.append(f'v_cvt_pk_bf16_f32 v{TMP + 8}, v{acc + 8}, v{acc + 9}')
            out.append(f'v_mul_f32 v{acc + 15}, v{acc + 15}, v{T[7]}')
            for r in range(1, 4):
                out.append(f'v_cvt_pk_bf16_f32 v{TMP + 8 + r}, v{acc + 8 + 2 * r}, v{acc + 9 + 2 * r}')

        def store():
            ph = self.perm(L, tile)
            if tile == 0:
                self.I(f's_add_u32 {sLD2}, {sHout}, 4096')
            toks[tile] = self.I(f'buffer_store_dwordx4 {vr(TMP + 8, 4)}, {vL16}, {WS}, {sHout if ph < 4 else sLD2} offen{off((ph % 4) * 1024)} sc1')
        out.append(store)
        return out

    def h_post(self, L, stage, tok):
        def f():
            self.p.wait(tok())
            self.p.I('s_mov_b64 exec, 1')
            self.st_group(vTAG, 2, 'off', sFHo, L * 512 + stage * 128)
            self.p.I('s_mov_b64 exec, -1')
        return f

    def h_order(self):
        o = []
        for tl in range(2):
            o += [(tl, pl, t) for t in range(3) for pl in range(4)]
        s1 = len(o)
        for tl in range(2):
            o += [(tl, pl, t) for t in (3, 4) for pl in range(4)]
        s2 = len(o)
        for tl in range(2):
            o += [(tl, pl, t) for t in (5, 6) for pl in range(4)]
        return o, s1, s2

    def h_load(self, n):
        tl, pl, t = self.hord[n]
        self.I(f'buffer_load_dwordx4 {vr(X + 4 * (n % 32), 4)}, {vL16}, {WS}, s{sH + 8 * tl + 2 * pl + (t >> 2)} offen{off((t % 4) * 1024)} sc1')

    def p3(self, L):
        p, I = self.p, self.I
        streg = PQ
        SP = self.o.get('SP3', 24)
        ld = self.load_x(streg, SP, L * 512 + 384)
        slot = lambda t: self.slot(L, 3 + t)
        acc = lambda t: A(t % 4)
        xr = lambda ks: vr(X + 4 * ks, 4) if ks < 32 else vr(MF, 4)
        steps = []
        n2 = 0
        num, den = self.o.get('skew', (2, 3))
        first = {}
        for ks in range(33):
            first[ks] = len(steps)
            steps.append((acc(0), slot(0), ks, xr(ks), ks == 0))
            steps.append((acc(1), slot(1), ks, xr(ks), ks == 0))
            while ks < 32 and n2 < ((ks + 1) * num) // den:
                steps.append((acc(2), slot(2), n2, xr(n2), n2 == 0))
                n2 += 1
        end = {0: len(steps) - 2, 1: len(steps) - 1}
        start = {}
        for t in range(2, 7):
            start[t] = len(steps)
            for ks in range(n2 if t == 2 else 0, 33):
                steps.append((acc(t), slot(t), ks, xr(ks), ks == 0))
            end[t] = len(steps) - 1
        pendq = self.sched(L, 'F0')
        popper = lambda: pendq.pop(0)() if pendq else None
        ev, rest = self.stream_events(ld, SP, lambda ks: first[ks], [popper] * len(pendq), self.o.get('bks3', 0))
        assert all(r is popper for r in rest)
        c1 = -2.0 * math.sqrt(2.0 / math.pi) * math.log2(math.e)
        st = self.stats_code(streg) + [
            f'v_mul_f32 {vC1}, {hx(f2u(c1))}, {vRS}',
            f'v_mul_f32 {vC3}, {vRS}, {vRS}',
            f'v_mul_f32 {vC3}, {hx(f2u(0.044715))}, {vC3}',
            f'v_mul_f32 {vC3}, {vC3}, {vC1}']
        fill = [(first[SP] + 1, t, end[0]) for t in st]
        toks = {}
        for t in range(6):
            dl = start.get(t + 4, 10**6)
            if t == 2:
                dl = min(dl, start[5] - 8)
            if t == 4:
                dl = start[6] + 4
            fill += [(end[t] + 3, it, dl) for it in self.geglu(L, acc(t), t, toks)]
        cuts = {}

        def cut(win, needs):
            def f():
                for t in needs:
                    while len(self.dma[(L, t)]) < 9:
                        pendq.pop(0)()
                    p.wait(*self.dma[(L, t)])
                I('s_barrier')
                if self.o.get('fine'):
                    self.stamp(f'cut {win}')
                pendq.extend(self.sched(L, win))
            return f
        cuts[start[2]] = cut('F2', [])
        cuts[start[3]] = cut('F3', [6])
        cuts[start[4]] = cut('F4', [7])
        cuts[start[5]] = cut('F5', [8])
        cuts[start[6]] = cut('F6', [9])
        self.hord, self.hs1, self.hs2 = self.h_order()
        self.hord = [(tl, pl, self.perm(L, t)) for tl, pl, t in self.hord]
        ev.setdefault(start[5] + 16, []).append(self.h_post(L, 0, lambda: toks[2]))
        ev.setdefault(start[6] + self.o.get('post1', 28), []).append(self.h_post(L, 1, lambda: toks[4]))
        ev.setdefault(start[6] + 2, []).append(self.res_load)
        g0 = start[6] + self.o.get('hchk', 8)
        ev.setdefault(g0, []).append(lambda: self.flag_issue(vHF, sFHi, L * 512))
        left = self.mstream(steps, events=ev, fill=fill, cuts=cuts, bg=pendq, bg_gap=self.o.get('gapF', 3), bg_start=first[32])
        self.run(list(pendq))
        self.flag_check(vHF, sFHi, L * 512, 4)
        LA = self.o['LA']
        q = [(lambda n=n: self.h_load(n)) for n in range(LA)]
        self.bg_on(q, 24)
        self.run(left)
        self.run(self.geglu(L, acc(6), 6, toks, pk=True))
        self.bg_off()
        self.htoks = toks
        self.stamp('p3 done')

    def p4(self, L):
        p, I = self.p, self.I
        final = L == 1
        LA = self.o['LA']
        s1, s2 = self.hs1, self.hs2
        self.res_init()
        self.red_addr()
        ev = {}
        FL = self.o.get('flead', LA)

        def hooks(nl, g):
            for st, s in ((1, s1), (2, s2)):
                if nl == s:
                    ev.setdefault(g, []).append(lambda st=st: self.flag_check(vHF, sFHi, L * 512 + st * 128, 4 + st))
                if nl == s - FL:
                    ev.setdefault(g, []).append(lambda st=st: self.flag_issue(vHF, sFHi, L * 512 + st * 128))
        ev.setdefault(2 * self.o.get('post2', LA), []).append(self.h_post(L, 2, lambda: self.htoks[6]))
        order = [(tl, (pl, t)) for tl, pl, t in self.hord]
        toks = self.ksplit(order, lambda k, cbl: vr(4 * (cbl * 28 + k[0] * 7 + k[1]), 4, 'a'), lambda n: vr(X + 4 * (n % 32), 4),
                           self.h_load, LA, final, ev, hooks=hooks, mix=self.sched(L, 'P4'), behind=self.sched(L, 'G0'))
        self.stamp('p4 done')
        if not final:
            self.hop(2, toks, before=self.sched(L, 'G'), stats=384 + 64, extra_wait=self.need_later(1, 0, 1))
            self.stamp('x2 hop')

    def zero_init(self):
        for tl in range(2):
            for r in range(0, 16, 2):
                self.I(f'v_mov_b64 {vr(A(2 * tl) + r, 2)}, 0')

    def res_add(self, tl):
        out = []
        b = A(2 * tl)
        for r in range(4):
            out.append(f'v_lshlrev_b32 v{TMP + 2 * r}, 16, v{RES + 4 * tl + r}')
            out.append(f'v_and_b32 v{TMP + 2 * r + 1}, 0xffff0000, v{RES + 4 * tl + r}')
            out.append(f'v_pk_add_f32 {vr(b + 2 * r, 2)}, {vr(b + 2 * r, 2)}, {vr(TMP + 2 * r, 2)}')
        return out

    def default_plan(self):
        c = lambda lab: ['code:' + lab] if self.o.get('codepf', 1) and not self.stop else []
        return {
            0: {'A0': [(0, 2), 'touch'], 'B': [(0, 3)] + c('L_p3_0'), 'D': [(0, 4, 'a')], 'E0': [(0, 4), (0, 5, 'a')], 'E': [(0, 5)], 'F0': [(0, 6)],
                'F2': [(0, 7), (0, 8)], 'F3': [(0, 9)], 'F4': ['w4:18'], 'F5': ['w4:19'], 'F6': ['w4:19'],
                'P4': c('L_p1_1') + [(1, 0), (1, 1)], 'G0': [(1, 2)]},
            1: {'A0': [(1, 4, 'a'), (1, 5, 'a'), 'touch'], 'B': [(1, 4)] + c('L_p3_1'), 'D': [(1, 5)], 'E0': [(1, 6)],
                'F2': [(1, 7), (1, 8)], 'F3': [(1, 9)]},
        }

    def dump_prof(self):
        I = self.I
        I(f's_lshl_b32 {sT0}, s2, 2')
        I(f's_add_u32 {sT0}, {sT0}, {sW}')
        I(f's_lshl_b32 {sT0}, {sT0}, 9')
        I(f's_add_u32 {sT0}, {sT0}, {hx(PROF)}')
        I(f'buffer_store_dword v{vP2}, {vL4}, {WS}, {sT0} offen')

    def build(self):
        p, I = self.p, self.I
        self.plan = self.o.get('plan') or self.default_plan()
        self.w4q = self.w4_loads()
        if self.prof:
            I('s_memtime s[88:89]')
            I('s_memrealtime s[90:91]')
            p.wait_lg_all()
            I(f'v_mov_b32 v{vP2}, 0')
            I(f'v_writelane_b32 v{vP2}, s88, 0')
            I(f'v_writelane_b32 v{vP2}, s90, 60')
            self.stamps = ['start']
            self.nstamp = 1
        if self.o.get('pad'):
            I('s_memrealtime s[90:91]')
        self.prologue()
        self.stamp('p0 synced')
        done = self.stop == 'p0'
        for L in range(2):
            for name, f in (('p1', self.p1), ('p2a', self.p2a), ('p2', self.p2), ('p3', self.p3), ('p4', self.p4)):
                if done:
                    break
                p.label(f'L_{name}_{L}')
                f(L)
                if self.stop == f'{name}_{L}':
                    done = True
        assert done or not self.w4q
        p.label('L_finish')
        if self.prof:
            I('s_memrealtime s[90:91]')
            I('s_memtime s[88:89]')
            p.wait_lg_all()
            I(f'v_writelane_b32 v{vP2}, s90, 61')
            I(f'v_writelane_b32 v{vP2}, s88, 62')
            self.dump_prof()
        I('s_cmp_lg_u32 s2, 0')
        I('s_cbranch_scc1 L_end')
        I(f's_cmp_lg_u32 {sW}, 0')
        I('s_cbranch_scc1 L_end')
        I('s_mov_b64 exec, 1')
        I(f'buffer_store_dwordx2 {vr(vTAG, 2)}, off, {WS}, 0')
        p.label('L_end')
        I('s_endpgm')
        for e in self.stubs:
            p.hist, p.alts, p.vm, p.lg, p.sm, p.pend = [], [], [], [], [], {}
            e()
        p.label('L_timeout')
        I(f'v_mov_b32 v{TMP}, {sCNT}')
        I(f'v_mov_b32 v{TMP+1}, 0')
        I('s_mov_b64 exec, 1')
        I(f'global_store_dword v{TMP+1}, v{TMP}, {sDBG}')
        I('s_endpgm')
        p.label('L_codeend')
        return self.wrap(p.text())

    def wrap(self, body):
        ref = open(os.path.join(os.path.dirname(os.path.abspath(__file__)), '..', 'cdna_kernels', NAME + '.s.ref')).read()
        hdr = []
        for line in ref.splitlines():
            if line.startswith('; @launch'):
                break
            hdr.append(line)
        out = '\n'.join(hdr) + '\n'
        out += f'; @launch grid=(256,1,1) block=(256,1,1) lds={LDS_BYTES}\n'
        out += '.amdgcn_target "amdgcn-amd-amdhsa--gfx950"\n.text\n'
        out += f'.globl {NAME}_kernel\n.p2align 8\n.type {NAME}_kernel,@function\n{NAME}_kernel:\n'
        out += body
        out += f'''.section .rodata,"a"
.p2align 6
.amdhsa_kernel {NAME}_kernel
  .amdhsa_next_free_vgpr 512
  .amdhsa_next_free_sgpr 102
  .amdhsa_accum_offset 256
  .amdhsa_group_segment_fixed_size 0
  .amdhsa_kernarg_size 88
  .amdhsa_user_sgpr_count 2
  .amdhsa_user_sgpr_kernarg_segment_ptr 1
  .amdhsa_system_sgpr_workgroup_id_x 1
.end_amdhsa_kernel
'''
        return out


if __name__ == '__main__':
    import argparse, ast
    ap = argparse.ArgumentParser()
    ap.add_argument('-o', default=None)
    ap.add_argument('--stop', default=None)
    ap.add_argument('--prof', action='store_true')
    ap.add_argument('--safe', action='store_true')
    ap.add_argument('--map', type=int, default=1)
    ap.add_argument('--opts', default='{}')
    a = ap.parse_args()
    g = Gen(stop=a.stop, prof=a.prof, fast=not a.safe, mapping=a.map, opts=ast.literal_eval(a.opts))
    txt = g.build()
    path = a.o or os.path.join(os.path.dirname(os.path.abspath(__file__)), '..', 'cdna_kernels', NAME + '.s')
    if g.o.get('align', 1):
        from align import align
        txt, nw, mis = align(txt)
    open(path, 'w').write(txt)
    if a.prof:
        open(path + '.stamps', 'w').write('\n'.join(g.stamps))
    print('wrote', path, 'lines', txt.count('\n'), 'late fill', g.late)
```

```python
import sys, os, math, struct
sys.path.insert(0, os.path.dirname(os.path.abspath(__file__)))
from asmlib import Prog, Ins
from layout import *

NAME = 'interleave_layers__linear_kernel_hedgehog__geglu_ffn__prompt'


def f2u(x):
    return struct.unpack('<I', struct.pack('<f', x))[0]


def hx(x):
    return '0x%x' % x


def vr(a, n=1, k='v'):
    return f'{k}{a}' if n == 1 else f'{k}[{a}:{a+n-1}]'


def off(x):
    return f' offset:{x}' if x else ''


WS, WSP, WSS, AUX, OUT, INS = 's[4:7]', 's[8:11]', 's[12:15]', 's[16:19]', 's[20:23]', 's[24:27]'
RS = OUT
TAG = 28
TAGS = 's[28:29]'
sG, sJ, sW = 's30', 's31', 's32'
sW8K, sW13, sQ4, sW13c, sDM, sW4t = 's33', 's34', 's35', 's36', 's37', 's38'
sT0, sT1, sT2, sT3 = 's39', 's62', 's63', 's64'
sH = 40
sDBG = 's[58:59]'
sXin, sSin, sOout = 's65', 's66', 's67'
sOin = ['s68', 's96']
sXu = ['s69', 's70']
sSu = 's71'
sHout, sCNT, sXCC, sKV, sFI = 's73', 's74', 's75', 's76', 's77'
sM = 's[78:79]'
sONE = 's80'
sW2 = ['s81', 's82']
sW4 = ['s83', 's84']
sOu = ['s85', 's86']
sFHo, sFHi, sLD, sLD2, sC = 's87', 's92', 's93', 's94', 's95'
sTB, sTBP = 's97', 's98'
sMODE = 's8'
sW4K = 's11'
sFSo, sFSi = 's9', 's10'
sRW = ['s99', 's100', 's101', 's3']
vL16, vL4 = 'v0', 'v1'
vRB = [2, 3, 4, 5]
vTW, vTA, vTB_, vKV, vKZ, vGZ, vGW, vL16P, vOUT, vHF = ('v%d' % i for i in range(6, 16))
vL64 = vOUT
vTAG = 16
vFB = 'v18'
vFI = 'v19'
vSC = 'v20'
PQ = 24
RES = 32
MF = 40
vC1, vC3, vS2, vRS = 'v44', 'v45', 'v46', 'v47'
TMP = 48
vCK = 60
vFL = 'v62'
vFS = 'v62'
vCS = 'v63'
vP2 = 23
ACC = 64
X = 128
STG = 224


def A(i):
    return ACC + 16 * i


class Gen:
    def __init__(self, stop=None, prof=False, fast=True, mapping=1, opts=None):
        self.p = Prog()
        self.stop = stop
        self.prof = prof
        self.fast = fast
        self.mapping = mapping
        self.o = dict(LA=11, nt0=2, gapF=(2, 2), xper=48, xla=8, xd0=2, xdots=16, xdots2=0, xpoll=7)
        self.o.update(opts or {})
        self.nt0 = ' nt' if self.o.get('nt0', 0) >= 1 else ''
        self.nt0x = ' nt' if self.o.get('nt0', 0) >= 2 else ''
        self.nstamp = 0
        self.stamps = []
        self.dma = {}
        self.stg = 0
        self.late = 0
        self.stubs = []
        self.part = {}
        self.wt = False
        self.bgq = None
        self.inbg = False

    def I(self, t, also=()):
        r = self.p.I(t, also)
        if self.bgq and not self.inbg and self.p.cyc - self.bglast >= self.bgper:
            self.inbg = True
            self.bgq.pop(0)()
            self.bglast = self.p.cyc
            self.inbg = False
        return r

    def bg_on(self, q, period):
        self.bgq, self.bgper, self.bglast = q, period, self.p.cyc - period

    def bg_off(self, flush=True):
        q, self.bgq = self.bgq, None
        if flush and q:
            self.run(list(q))
            del q[:]

    def pad(self, name):
        pad = self.o.get('pad')
        if not pad or pad[0] != name:
            return
        self.padn = getattr(self, 'padn', 0) + 1
        if self.padn != pad[1]:
            return
        p = self.p
        lp = p.newlabel('pad')
        p.wait_lg_all()
        p.label(lp)
        p.I('s_memrealtime s[88:89]')
        p.wait_lg_all()
        p.I('s_sub_u32 s88, s88, s90')
        p.I(f's_cmp_lt_u32 s88, {pad[2] * 100}')
        p.I(f's_cbranch_scc1 {lp}')

    def stamp(self, name, again=False):
        self.pad(name)
        if not self.prof:
            return
        if (self.o.get('fine') or self.o.get('rt')) and name in ('kernarg', 'crit loads issued', 'all loads issued', 'barrier 1', 'p0 crit issued', 'p0 crit drained', 'rest issued', 'rest loaded', 'x in regs', 'p1 kv partial', 'k,v in LDS'):
            return
        p = self.p
        if again:
            idx = len(self.stamps) - 1 - self.stamps[::-1].index(name)
        else:
            idx = self.nstamp
            self.stamps.append(name)
            self.nstamp += 1
        p.I(f's_memtime {sM}')
        if self.o.get('rt'):
            p.I('s_memrealtime s[88:89]')
        p.wait_lg_all()
        p.I(f'v_writelane_b32 v{vP2}, s78, {idx}')
        if self.o.get('rt'):
            assert idx < 30
            p.I(f'v_writelane_b32 v{vP2}, s88, {idx + 30}')
        assert self.nstamp <= 60

    def srd(self, base, lo, hi, nrec):
        I = self.I
        I(f's_mov_b32 s{base}, s{lo}')
        I(f's_and_b32 s{base+1}, s{hi}, 0xffff')
        if nrec is not None:
            I(f's_mov_b32 s{base+2}, {hx(nrec)}')
        I(f's_mov_b32 s{base+3}, 0x20000')

    def run(self, items):
        for it in items:
            if isinstance(it, tuple):
                it = it[1]
            if isinstance(it, str):
                self.I(it)
            else:
                it()

    def st_group(self, data, n, voff, soff, imm=0):
        op = {1: 'buffer_store_dword', 2: 'buffer_store_dwordx2', 4: 'buffer_store_dwordx4'}[n]
        en = ' offen' if voff != 'off' else ''
        p = self.p
        txt = f'{op} {vr(data, n)}, {voff}, {WS}, {soff}{en}{off(imm)}'
        if not self.fast or (self.wt and n != 2):
            return [p.I(txt + ' sc1')]
        stub, back = p.newlabel('ss'), p.newlabel('sb')
        p.wait(*p.pending(txt))
        p.I(f's_cmp_lg_u32 {sMODE}, 0')
        p.I(f's_cbranch_scc1 {stub}')
        tok = p.I(txt)
        p.label(back)

        def emit():
            p.label(stub)
            p.nop(12)
            p.I(txt + ' sc1')
            p.I(f's_branch {back}')
        self.stubs.append(emit)
        return [tok]

    def spin_tail(self, lp, code, sleep):
        I = self.p.I
        if sleep:
            I(f's_sleep {sleep}')
        I(f's_add_u32 {sCNT}, {sCNT}, 1')
        I(f's_cmp_lt_u32 {sCNT}, 0x20000')
        I(f's_cbranch_scc1 {lp}')
        I(f's_mov_b32 {sCNT}, {code}')
        I('s_branch L_timeout')

    def poll(self, vo, so, imm=0, mask_low=False, code=1, sleep=1, pre=None):
        p, I = self.p, self.p.I
        lp, done, chk = p.newlabel('poll'), p.newlabel('polled'), p.newlabel('pchk')
        I(f's_mov_b32 {sCNT}, 0')
        if pre is not None:
            p.wait(pre)
            I(f's_branch {chk}')
            p.label(lp)
            p.raw(f'    buffer_load_dwordx2 {vr(vCK, 2)}, {vo}, {WS}, {so} offen{off(imm)} sc1')
            p.raw('    s_waitcnt vmcnt(0)')
            p.label(chk)
        else:
            p.label(lp)
            I(f'buffer_load_dwordx2 {vr(vCK, 2)}, {vo}, {WS}, {so} offen{off(imm)} sc1')
            p.wait_vm_all()
        if mask_low:
            I(f'v_and_b32 v{TMP}, -16, v{vCK}')
            I(f'v_mov_b32 v{TMP+1}, v{vCK+1}')
            I(f'v_cmp_ne_u64 vcc, {TAGS}, {vr(TMP, 2)}')
        else:
            I(f'v_cmp_ne_u64 vcc, {TAGS}, {vr(vCK, 2)}')
        I(f's_cbranch_vccz {done}')
        if mask_low:
            I('s_mov_b64 exec, vcc')
        self.spin_tail(lp, code, sleep)
        p.label(done)
        if mask_low:
            I('s_mov_b64 exec, -1')

    def flag_issue(self, vo, so, imm=0):
        return self.I(f'buffer_load_dwordx2 {vr(vCK, 2)}, {vo}, {WS}, {so} offen{off(imm)} sc1')

    def flag_check(self, vo, so, imm, code):
        p = self.p
        stub, back = p.newlabel('fstub'), p.newlabel('fback')
        p.I(f'v_cmp_ne_u64 vcc, {TAGS}, {vr(vCK, 2)}')
        if self.o.get('fine'):
            self.stamp(f'flag {code} loaded')
            p.I(f'v_cmp_ne_u64 vcc, {TAGS}, {vr(vCK, 2)}')
        p.I(f's_cbranch_vccnz {stub}')
        p.label(back)
        if self.o.get('fine'):
            self.stamp(f'flag {code} ok')

        def emit():
            lp = p.newlabel('fl')
            p.label(stub)
            p.I(f's_mov_b32 {sCNT}, 0')
            p.label(lp)
            p.I(f'buffer_load_dwordx2 {vr(vCK, 2)}, {vo}, {WS}, {so} offen{off(imm)} sc1')
            p.wait_vm_all()
            p.I(f'v_cmp_ne_u64 vcc, {TAGS}, {vr(vCK, 2)}')
            p.I(f's_cbranch_vccz {back}')
            self.spin_tail(lp, code, 1)
        self.stubs.append(emit)

    def hop(self, slot, toks, before=(), stats=None, extra_wait=()):
        p, I = self.p, self.I
        self.run(before)
        p.wait(*toks)
        I('s_barrier')
        skip = p.newlabel('hop')
        I(f's_cmp_lg_u32 {sW}, 0')
        I(f's_cbranch_scc1 {skip}')
        p.begin_div()
        I('s_mov_b64 exec, 1')
        self.st_group(vTAG, 2, 'off', sFI, slot * 128)
        I('s_mov_b64 exec, -1')
        self.poll(vFI, '0', slot * 128, code=16 + slot, sleep=0)
        p.end_div()
        p.label(skip)
        if stats is not None:
            self.stats_out(stats)
        p.wait(*extra_wait)
        I('s_barrier')

    def slot(self, L, tile):
        return (10 * L + tile) % 4

    def perm(self, L, t):
        return 6 - t if (L == 1 and self.o.get('rev', 1)) else t

    def dma_block(self, L, tile):
        toks = []
        self.dma[(L, tile)] = toks
        I = self.I
        lb = RING + self.slot(L, tile) * BLK
        if tile >= 3:
            tile = 3 + self.perm(L, tile - 3)
        steps = []

        def grp(k):
            def f():
                I(f's_add_u32 m0, {sW4K}, {lb + k * 16384}')
                I(f's_add_u32 {sDM}, {sW13}, {tile * BLK + k * 16384}')
                toks.append(I(f'buffer_load_dwordx4 {vL16}, {WS}, {sDM} offen lds'))
            return f

        def one(i):
            def f():
                toks.append(I(f'buffer_load_dwordx4 {vL16}, {WS}, {sDM} offen offset:{i * 1024} lds'))
            return f

        def cs():
            I(f's_add_u32 m0, {sQ4}, {lb}')
            I(f's_add_u32 {sDM}, {sW13c}, {tile * BLK}')
            toks.append(I(f'buffer_load_dword {vCS}, {WS}, {sDM} offen lds'))
        for k in range(2):
            steps += [grp(k), one(1), one(2), one(3)]
        steps.append(cs)
        return steps

    def need(self, L, *tiles):
        toks = []
        for t in tiles:
            if (L, t) == (1, 3) and self.o.get('rev', 1):
                continue
            assert len(self.dma[(L, t)]) == 9, (L, t)
            toks += self.dma[(L, t)]
        return toks

    def w4_loads(self):
        I = self.I
        out = []
        for cbl in range(2):
            for pl in range(4):
                for t in range(7):
                    def f(cbl=cbl, pl=pl, t=t):
                        if t == 0:
                            I(f's_add_u32 {sW4t}, {sC}, {pl}')
                            I(f's_and_b32 {sW4t}, {sW4t}, 3')
                            I(f's_mul_i32 {sW4t}, {sW4t}, 7168')
                            I(f's_add_u32 {sW4t}, {sW4t}, {sW4[cbl]}')
                        if t == 4:
                            I(f's_add_u32 {sW4t}, {sW4t}, 4096')
                        I(f'buffer_load_dwordx4 {vr(4 * (cbl * 28 + pl * 7 + t), 4, "a")}, {vL16P}, {WS}, {sW4t} offen{off((t % 4) * 1024)}')
                    out.append(f)
        return out

    def sched(self, L, win):
        out = []
        for it in self.plan[L].get(win, []):
            if isinstance(it, tuple):
                key = it[:2]
                if key not in self.part:
                    self.part[key] = self.dma_block(*key)
                n = 4 if (len(it) > 2 and it[2] == 'a') else 9
                out += self.part[key][:n]
                del self.part[key][:n]
            elif it.startswith('code:'):
                def f(lab=it[5:]):
                    I = self.I
                    I(f's_lshr_b32 {sT0}, s2, 3')
                    I(f's_lshl_b32 {sT0}, {sT0}, 2')
                    I(f's_add_u32 {sT0}, {sT0}, {sW}')
                    I(f's_lshl_b32 {sT0}, {sT0}, 8')
                    I(f's_add_u32 {sT0}, {sT0}, {lab}-{NAME}_kernel')
                    I(f'v_and_b32 {vFB}, 0x80, {vL16}')
                    I(f'v_add_u32 {vFB}, {sT0}, {vFB}')
                    I(f'v_min_u32 {vFB}, L_codeend-{NAME}_kernel-4, {vFB}')
                    I(f'global_load_dword v21, {vFB}, s[12:13]')
                out.append(f)
            elif it == 'warmw2':
                def f0():
                    I = self.I
                    I(f's_and_b32 {sT0}, {sG}, 1')
                    I(f's_lshl_b32 {sT0}, {sT0}, 1')
                    I(f's_lshr_b32 {sT1}, {sJ}, 3')
                    I(f's_add_u32 {sT0}, {sT0}, {sT1}')
                    I(f's_lshl_b32 {sT0}, {sT0}, 14')
                    I(f's_lshl_b32 {sT1}, {sC}, 16')
                    I(f's_add_u32 {sT0}, {sT0}, {sT1}')
                    I(f's_add_u32 {sT0}, {sT0}, {sW4K}')
                    I(f's_add_u32 {sT0}, {sT0}, {hx(W2)}')
                    I(f'buffer_load_dword v21, {vL64}, {WS}, {sT0} offen')
                out.append(f0)
            elif it.startswith('warm:'):
                L2, tile = (int(x) for x in it[5:].split(','))
                ph = 3 + self.perm(L2, tile - 3) if tile >= 3 else tile

                def f1(ph=ph):
                    I = self.I
                    I(f's_and_b32 {sT0}, {sG}, 1')
                    I(f's_lshl_b32 {sT0}, {sT0}, 14')
                    I(f's_add_u32 {sT0}, {sT0}, {sW13}')
                    I(f's_add_u32 {sT0}, {sT0}, {ph * BLK}')
                    I(f'buffer_load_dword v21, {vL64}, {WS}, {sT0} offen')
                out.append(f1)
            elif it == 'skip':
                out.append(lambda: None)
            elif it == 'rest':
                out += self.restq
            elif it == 'fbi':
                out.append(lambda: self.flag_issue(vFB, '0'))
            elif it == 'fbc':
                out.append(lambda: self.flag_check(vFB, '0', 0, 3))
            elif it == 'touch':
                out.append(lambda: self.I(f'buffer_load_dword v21, v22, {WS}, 0 offen'))
            elif it == 'touchnt':
                out.append(lambda: self.I(f'buffer_load_dword v21, v22, {WS}, 0 offen nt'))
            elif it == 'toucho':
                def to():
                    self.I('s_mov_b64 exec, 0xffffffff')
                    self.I(f'buffer_load_dword v21, v22, {WS}, 0 offen')
                    self.I('s_mov_b64 exec, -1')
                out.append(to)
            elif it == 'touchf':
                def tf():
                    self.I('s_mov_b64 exec, 0xffff0000')
                    self.I(f'buffer_load_dword v21, v22, {WS}, 0 offen')
                    self.I('s_mov_b64 exec, -1')
                out.append(tf)
            elif it.startswith('w4:'):
                n = int(it[3:])
                out += self.w4q[:n]
                del self.w4q[:n]
        return out

    def stage(self):
        r = vr(STG + 4 * (self.stg % 8), 4, 'a')
        self.stg += 1
        return r

    def wread(self, slot, idx):
        r = self.stage()
        tok = self.I(f'ds_read_b128 {r}, v{vRB[slot]} offset:{idx * 1024}')
        return r, tok

    def mstream(self, steps, events=None, fill=None, depth=6, cuts=(), bg=None, bg_gap=2, pre=None, bg_start=0):
        p, I = self.p, self.I
        events = events or {}
        pre = pre or {}
        fill = list(fill or [])
        cuts = dict(cuts)
        bg = bg if bg is not None else []
        n = len(steps)
        regs = [None] * n
        toks = [None] * n
        nread = 0
        lastread_gap = -10
        last_bg = -100

        def issue_read(g):
            nonlocal nread, lastread_gap
            if nread >= n:
                return False
            if nread in cuts:
                if g - lastread_gap < 2 and nread - g > 2:
                    return False
                p.wait(toks[nread - 1])
                cuts.pop(nread)()
            _, slot, idx, _, _ = steps[nread]
            if slot is None:
                regs[nread] = idx
            else:
                regs[nread], toks[nread] = self.wread(slot, idx)
            nread += 1
            lastread_gap = g
            return True

        def mtext(g):
            acc, slot, idx, breg, first = steps[g]
            c = '0' if first else vr(acc, 16)
            return f'v_mfma_f32_32x32x16_bf16 {vr(acc, 16)}, {regs[g]}, {breg}, {c}'
        while nread < min(depth, n) and issue_read(-1 if nread not in cuts else 10**6):
            pass
        for g in range(n):
            while nread <= g:
                issue_read(10**6)
            due = [i for i, f in enumerate(fill) if len(f) > 2 and f[2] <= g]
            if due:
                self.late += due[-1] + 1
                self.run(fill[:due[-1] + 1])
                del fill[:due[-1] + 1]
            self.run(pre.get(g, []))
            also = []
            if toks[g] is not None and not toks[g].done:
                k = min(g + 2, nread - 4)
                if k > g:
                    also = [toks[k]]
            I(mtext(g), also)
            start = p.cyc
            k = 0
            while nread < min(n, g + 1 + depth) and k < 2:
                if not issue_read(g):
                    break
                k += 1
            self.run(events.get(g, []))
            if bg and g >= bg_start and g - last_bg >= bg_gap:
                bg.pop(0)()
                last_bg = g
            budget = 24
            if g + 1 < n and regs[g + 1] is not None and p.pending(mtext(g + 1)):
                budget -= 4
            while fill and fill[0][0] <= g:
                it = fill[0][1]
                cost = Ins(it).cost if isinstance(it, str) else 4
                if p.cyc - start + cost > budget:
                    break
                fill.pop(0)
                self.run([it])
        return fill

    def prologue(self):
        p, I = self.p, self.I
        assert self.mapping == 1
        I('s_cmp_ge_u32 s2, 256')
        I('s_cbranch_scc1 L_end')
        I('s_getpc_b64 s[12:13]')
        p.label('L_pc')
        I('s_bfe_u32 s3, s2, 0x30003')
        I('s_lshl_b32 s3, s3, 13')
        I('v_lshl_add_u32 v1, v0, 5, s3')
        I('v_min_u32 v1, L_codeend-L_pc-4, v1')
        I('global_load_dword v21, v1, s[12:13]')
        I('s_load_dwordx16 s[40:55], s[0:1], 0x0')
        I('s_load_dwordx4 s[56:59], s[0:1], 0x40')
        I('s_load_dwordx2 s[60:61], s[0:1], 0x50')
        I('v_lshrrev_b32 v2, 6, v0')
        I('v_bfe_u32 v29, v0, 3, 3')
        I(f'v_readfirstlane_b32 {sW}, v2')
        I('v_and_b32 v30, 7, v0')
        I('v_lshlrev_b32 v30, 4, v30')
        I('v_and_b32 v63, 63, v0')
        I('s_and_b32 s65, s2, 7')
        I('s_lshr_b32 s66, s2, 3')
        I('s_cmp_lt_u32 s2, 192')
        I('s_cselect_b32 s22, 3, 1')
        I(f's_cselect_b32 {sT0}, 0, 24')
        I('s_lshl_b32 s70, s22, 10')
        I('s_lshl_b32 s22, s22, 19')
        I(f's_sub_u32 s71, s66, {sT0}')
        I(f's_lshl_b32 {sT1}, s65, 2')
        I(f's_add_u32 {sT1}, {sT1}, {sW}')
        I(f's_lshl_b32 {sT1}, {sT1}, 4')
        I(f's_mul_i32 s69, {sT1}, s70')
        I(f's_lshl_b32 {sT0}, s71, 7')
        I(f's_add_u32 s69, s69, {sT0}')
        I('v_mad_u32_u24 v52, v29, s70, v30')
        I('s_lshl_b32 s70, s70, 3')
        I('s_add_u32 s70, s70, s69')
        I(f's_lshl_b32 {sT3}, {sW}, 11')
        I(f's_add_u32 m0, {sT3}, {self.QIMG}')
        I('s_mov_b32 s23, 0x20000')
        I('s_mov_b32 s27, 0x20000')
        I(f's_mov_b32 s26, {hx(S * D * 2)}')
        I(f's_lshl_b32 {sT2}, s65, 5')
        I(f's_add_u32 {sT2}, {sT2}, s66')
        I(f's_lshl_b32 {sT2}, {sT2}, 13')
        I(f's_add_u32 {sT2}, {sT2}, {sT3}')
        I('v_lshlrev_b32 v53, 5, v63')
        I(f's_mov_b32 {sT0}, 3584')
        I(f'v_mad_u32_u24 v54, v29, {sT0}, v30')
        I(f's_mul_i32 {sT1}, {sT1}, {sT0}')
        I('v_lshl_add_u32 v55, v29, 10, v30')
        I('s_cmp_lt_u32 s2, 192')
        p.wait_lg_all()
        self.stamp('kernarg')
        I('s_cselect_b32 s20, s42, s46')
        I('s_cselect_b32 s21, s43, s47')
        I('s_and_b32 s21, s21, 0xffff')
        qt = [I(f'buffer_load_dwordx4 v52, {RS}, s69 offen{self.nt0} lds')]
        I(f's_add_u32 m0, {sT3}, {self.QIMG + 1024}')
        I('s_mov_b32 s24, s40')
        qt.append(I(f'buffer_load_dwordx4 v52, {RS}, s70 offen{self.nt0} lds'))
        I('s_and_b32 s25, s41, 0xffff')
        qt.append(I(f'buffer_load_dword v21, v53, {INS}, {sT2} offen{self.nt0x}'))
        self.qt = qt
        I(f's_lshl_b32 {sT0}, s66, 7')
        I(f's_add_u32 {sT1}, {sT1}, {sT0}')
        I(f's_add_u32 {sT2}, {sT1}, {8 * 3584}')
        I('s_cmp_lt_u32 s2, 224')
        I(f's_cselect_b32 s22, {hx(D * F * 2)}, 0')
        for m, ptr in enumerate((50, 52, 54)):
            I(f's_mov_b32 s20, s{ptr}')
            I(f's_and_b32 s21, s{ptr + 1}, 0xffff')
            if m == 2:
                I(f's_lshl_b32 {sT1}, s66, 2')
                I(f's_add_u32 {sT1}, {sT1}, {sW}')
                I(f's_lshl_b32 {sT1}, {sT1}, 14')
                I(f's_lshl_b32 {sT0}, s65, 7')
                I(f's_add_u32 {sT1}, {sT1}, {sT0}')
                I(f's_add_u32 {sT2}, {sT1}, 8192')
            v = 'v55' if m == 2 else 'v54'
            I(f's_add_u32 m0, {sT3}, {self.IMG + m * 8192}')
            I(f'buffer_load_dwordx4 {v}, {RS}, {sT1} offen{self.nt0} lds')
            I(f's_add_u32 m0, {sT3}, {self.IMG + m * 8192 + 1024}')
            I(f'buffer_load_dwordx4 {v}, {RS}, {sT2} offen{self.nt0} lds')
        I(f's_load_dwordx2 {TAGS}, s[60:61], 0x0')
        self.srd(4, 60, 61, WS_BYTES)
        self.srd(16, 60, 61, None)
        I('s_cmp_lt_u32 s2, 192')
        I(f's_cselect_b32 s18, {hx(WS_BYTES)}, 0')
        I(f'v_lshlrev_b32 {vL16}, 4, v63')
        I(f'v_lshlrev_b32 {vL4}, 2, v63')
        I(f's_getreg_b32 {sXCC}, hwreg(HW_REG_XCC_ID, 0, 4)')
        I(f's_and_b32 {sJ}, s66, 15')
        I(f's_lshr_b32 {sT1}, s66, 4')
        I(f's_lshl_b32 {sG}, s65, 1')
        I(f's_add_u32 {sG}, {sG}, {sT1}')
        I(f's_mov_b32 {sONE}, 0x3f803f80')
        I('v_and_b32 v24, 31, v63')
        I('v_lshrrev_b32 v25, 5, v63')
        I('v_and_b32 v26, 15, v63')
        I('v_bfe_u32 v27, v63, 4, 1')
        I('v_lshrrev_b32 v28, 4, v63')
        I(f's_lshl_b32 {sTB}, {sG}, 2')
        I(f's_lshr_b32 {sT0}, {sJ}, 3')
        I(f's_lshl_b32 {sT0}, {sT0}, 1')
        I(f's_add_u32 {sTBP}, {sTB}, {sT0}')
        I(f's_add_u32 {sTB}, {sTB}, {sW}')
        I(f's_and_b32 {sC}, {sJ}, 7')
        I('v_lshrrev_b32 v31, 2, v26')
        I('v_lshl_add_u32 v31, v25, 2, v31')
        I('v_lshlrev_b32 v31, 7, v31')
        I('v_and_b32 v32, 3, v26')
        I('v_lshl_add_u32 v31, v32, 3, v31')
        I('v_lshlrev_b32 v33, 2, v24')
        self.p0()

    def dest_setup(self):
        p, I = self.p, self.I
        I('s_lshl_b32 s67, s65, 7')
        I(f's_add_u32 s67, s67, {32 * 1024}')
        I(f's_lshl_b32 {sT0}, s66, 2')
        I(f's_add_u32 {sT0}, {sT0}, {sW}')
        I(f's_mul_i32 {sT1}, {sT0}, 147')
        I(f's_lshr_b32 {sT1}, {sT1}, 10')
        I(f's_mul_i32 {sT1}, {sT1}, 3')
        I(f's_add_u32 {sT0}, {sT0}, {sT1}')
        I(f's_add_u32 {sT0}, {sT0}, 3')
        I(f's_mul_i32 {sT0}, {sT0}, {BLK}')
        I(f's_add_u32 s68, {sT0}, {hx(W13)}')
        I('s_lshl_b32 s14, s65, 12')
        I('s_add_u32 s14, s14, s68')
        I('s_add_u32 s72, s68, s67')
        I(f's_lshl_b32 {sT0}, s65, 1')
        I(f's_lshr_b32 {sT2}, {sW}, 1')
        I(f's_add_u32 {sT0}, {sT0}, {sT2}')
        I(f's_mul_i32 {sT0}, {sT0}, 112')
        I(f's_lshl_b32 {sT2}, s66, 2')
        I(f's_add_u32 {sT0}, {sT0}, {sT2}')
        I(f's_and_b32 {sT1}, {sW}, 1')
        I(f's_lshl_b32 {sT2}, {sT1}, 1')
        I(f's_add_u32 {sT0}, {sT0}, {sT2}')
        I(f's_lshl_b32 {sT0}, {sT0}, 10')
        I(f's_add_u32 s15, {sT0}, {hx(W4)}')
        I(f's_lshr_b32 {sLD}, s71, 3')
        I(f's_add_u32 {sLD}, {sLD}, 2')
        I(f's_cmp_ge_u32 {sLD}, 3')
        I(f's_cselect_b32 {sT0}, 3, 0')
        I(f's_sub_u32 {sLD}, {sLD}, {sT0}')
        I(f's_and_b32 {sT0}, s71, 7')
        I(f's_lshl_b32 {sT0}, {sT0}, 1')
        I(f's_add_u32 {sT0}, {sT0}, {sT1}')
        I(f's_lshl_b32 {sT2}, {sT0}, 15')
        I(f's_add_u32 {sT2}, {sT2}, {hx(W2)}')
        I(f's_mul_i32 {sT0}, {sT0}, 10')
        I(f's_add_u32 {sLD}, {sLD}, {sT0}')
        I(f's_mul_i32 {sLD}, {sLD}, {BLK}')
        I(f's_add_u32 {sLD}, {sLD}, {hx(W13)}')
        I(f's_add_u32 {sLD2}, {sLD}, s67')
        I('s_cmp_lt_u32 s2, 192')
        I(f's_cselect_b32 {sLD}, {sLD}, {sT2}')
        I(f's_lshl_b32 {sT0}, s65, 12')
        I(f's_add_u32 {sLD}, {sLD}, {sT0}')
        I(f's_lshr_b32 {sT0}, {sW}, 1')
        I(f's_lshl_b32 {sT0}, {sT0}, 11')
        I(f's_add_u32 {sLD}, {sLD}, {sT0}')

    IMG = 131072
    QIMG = 122880

    def rest_read(self):
        out = []
        for ks in range(4):
            for rd in range(2):
                out.append(f'ds_read_b64_tr_b16 {vr(4 * ks + 2 * rd, 2, "a")}, v35 offset:{ks * 2048 + rd * 1024}')
        for ks in range(2):
            for rd in range(2):
                out.append(f'ds_read_b64_tr_b16 {vr(16 + 4 * ks + 2 * rd, 2, "a")}, v36 offset:{ks * 2048 + rd * 1024}')
        return out

    def rest_stores(self):
        I = self.I
        out = [(lambda ks=ks: I(f'buffer_store_dwordx4 {vr(4 * ks, 4, "a")}, {vL16}, {AUX}, s14 offen{off(ks * 1024)} sc1')) for ks in range(4)]
        out += [(lambda n=n: I(f'buffer_store_dwordx4 {vr(16 + 4 * n, 4, "a")}, {vL16}, {AUX}, s15 offen{off(n * 1024)} sc1')) for n in range(2)]

        self.rest_done = []
        out.append(lambda: self.rest_done.append(I(f'buffer_store_dword v37, v33, {AUX}, s72 offen sc1')))
        return out

    def touch_addr(self):
        p, I = self.p, self.I
        I(f's_lshl_b32 {sT0}, {sTB}, 15')
        I(f's_lshl_b32 {sT1}, {sJ}, 11')
        I(f's_add_u32 {sT0}, {sT0}, {sT1}')
        I(f's_add_u32 {sT0}, {sT0}, {hx(OF)}')
        I(f's_lshl_b32 {sT1}, {sTB}, 10')
        I(f's_add_u32 {sT1}, {sT1}, {hx(FLH)}')
        I(f's_lshl_b32 {sT2}, {sG}, 10')
        I(f's_add_u32 {sT2}, {sT2}, {hx(FLI - 1024)}')
        I(f'v_mov_b32 v38, {sT1}')
        I(f'v_mov_b32 v39, {sT2}')
        I('v_cmp_gt_u32 vcc, 8, v26')
        I('v_cndmask_b32 v38, v39, v38, vcc')
        I(f'v_mov_b32 v39, {sT0}')
        I('v_cmp_eq_u32 vcc, 0, v27')
        I('v_cndmask_b32 v38, v38, v39, vcc')
        I('v_lshl_add_u32 v22, v26, 7, v38')
        I(f'v_mov_b32 v38, {sXu[0]}')
        I(f'v_mov_b32 v39, {sXu[1]}')
        I('v_cmp_gt_u32 vcc, 8, v26')
        I('v_cndmask_b32 v38, v39, v38, vcc')
        I('v_lshl_add_u32 v38, v30, 3, v38')
        I('v_and_b32 v39, 1, v26')
        I('v_lshlrev_b32 v39, 7, v39')
        I(f'v_add_u32 v39, {sSu}, v39')
        I('v_cmp_eq_u32 vcc, 0, v27')
        I('v_cndmask_b32 v38, v39, v38, vcc')
        I('v_cmp_eq_u32 vcc, 0, v25')
        I('v_cndmask_b32 v22, v38, v22, vcc')

    def p0_early(self):
        p, I = self.p, self.I
        I(f's_sub_u32 s12, s12, L_pc-{NAME}_kernel')
        I('s_subb_u32 s13, s13, 0')
        I(f's_lshl_b32 {sT0}, {sJ}, 2')
        I(f's_add_u32 {sT0}, {sT0}, {sW}')
        I(f's_mul_i32 {sKV}, {sT0}, {KVW}')
        I(f's_add_u32 {sKV}, {sKV}, {hx(KVP)}')
        I(f'v_lshrrev_b32 {vKV}, 1, v28')
        I(f'v_lshlrev_b32 {vKV}, 8, {vKV}')
        I(f'v_lshl_add_u32 {vKV}, v26, 4, {vKV}')
        I(f'v_lshl_add_u32 {vKV}, v27, 3, {vKV}')
        I(f's_lshl_b32 {sT0}, {sG}, 9')
        I(f'v_add_u32 {vKV}, {sT0}, {vKV}')
        I(f's_lshl_b32 {sT0}, {sG}, 7')
        I(f's_add_u32 {sT0}, {sT0}, 8192')
        I(f'v_lshlrev_b32 {vKZ}, 3, v28')
        I(f'v_lshl_add_u32 {vKZ}, v32, 5, {vKZ}')
        I(f'v_add_u32 {vKZ}, {sT0}, {vKZ}')
        I('v_mov_b32 v40, -1')
        I('v_mov_b32 v41, -1')
        I(f'buffer_store_dwordx2 v[40:41], {vKV}, {WS}, {sKV} offen sc1')
        I(f'buffer_store_dwordx2 v[40:41], {vKZ}, {WS}, {sKV} offen sc1')

    def tr_tile(self, vaddr, base, imm0, kss):
        for n, ks in enumerate(kss):
            for rd in range(2):
                self.I(f'ds_read_b64_tr_b16 {vr(base + 4 * n + 2 * rd, 2)}, {vaddr} offset:{imm0 + ks * 2048 + rd * 1024}')

    def colsum(self, base, srd, so):
        I = self.I
        I('v_mov_b32 v56, 0')
        I('v_mov_b32 v57, 0')
        for r in range(0, 16, 2):
            I(f'v_dot2c_f32_bf16 v56, {sONE}, v{base + r}')
            I(f'v_dot2c_f32_bf16 v57, {sONE}, v{base + r + 1}')
        I('v_add_f32 v56, v56, v57')
        I('v_mov_b32 v57, v56')
        I('v_permlane32_swap_b32 v56, v57')
        I('v_add_f32 v56, v56, v57')
        I('v_cvt_pk_bf16_f32 v57, v56, v56')
        I('v_lshlrev_b32 v57, 16, v57')
        I('v_sub_f32 v57, v56, v57')
        I('v_cvt_pk_bf16_f32 v58, v56, v57')
        if srd is not None:
            return I(f'buffer_store_dword v58, v33, {srd}, {so} offen sc1')

    def p0(self):
        p, I = self.p, self.I
        self.stamp('crit loads issued')
        self.setup1m()
        self.dest_setup()
        self.setup1()
        XA = A(2)
        I('v_lshrrev_b32 v36, 1, v29')
        I('v_lshlrev_b32 v36, 4, v36')
        I('v_xor_b32 v36, v36, v30')
        I(f'v_lshl_add_u32 v{XA + 8}, v29, 10, v36')
        I(f'v_xor_b32 v{XA + 9}, 64, v{XA + 8}')
        I('v_bfe_u32 v36, v24, 1, 3')
        I('v_lshlrev_b32 v36, 4, v36')
        I('v_lshlrev_b32 v37, 7, v24')
        I('v_lshl_add_u32 v37, v25, 3, v37')
        I(f's_lshl_b32 {sT0}, {sW}, 15')
        I(f'v_add_u32 v37, {sT0}, v37')
        for c in range(8):
            I(f'v_xor_b32 v{XA + c}, {16 * c}, v36')
            I(f'v_add_u32 v{XA + c}, v{XA + c}, v37')
        I('v_lshl_add_u32 v52, v27, 5, v31')
        I(f's_and_b32 {sT0}, {sW}, 1')
        I(f's_lshl_b32 {sT0}, {sT0}, 6')
        I(f's_lshr_b32 {sT1}, {sW}, 1')
        I(f's_lshl_b32 {sT1}, {sT1}, 12')
        I(f's_add_u32 {sT0}, {sT0}, {sT1}')
        I(f'v_add_u32 v52, {sT0}, v52')
        I('v_xor_b32 v53, 0x1000, v52')
        I(f'v_add_u32 v52, {self.QIMG}, v52')
        I(f'v_add_u32 v53, {self.QIMG}, v53')
        I('v_lshl_add_u32 v35, v27, 13, v31')
        I(f's_lshl_b32 {sT0}, {sW}, 5')
        I(f's_add_u32 {sT0}, {sT0}, {self.IMG}')
        I(f'v_add_u32 v35, {sT0}, v35')
        I('v_lshl_add_u32 v36, v27, 5, v31')
        I(f's_lshr_b32 {sT0}, {sW}, 1')
        I(f's_lshl_b32 {sT0}, {sT0}, 6')
        I(f's_and_b32 {sT1}, {sW}, 1')
        I(f's_lshl_b32 {sT1}, {sT1}, 12')
        I(f's_add_u32 {sT0}, {sT0}, {sT1}')
        I(f's_add_u32 {sT0}, {sT0}, {self.IMG + 16384}')
        I(f'v_add_u32 v36, {sT0}, v36')
        p.wait_lg_all()
        I(f's_add_u32 s{TAG}, s{TAG}, 0x7f4a7c10')
        I(f's_addc_u32 s{TAG+1}, s{TAG+1}, 0x9e3779b9')
        I(f's_and_b32 s{TAG}, s{TAG}, -16')
        I(f'v_mov_b32 v{vTAG}, s{TAG}')
        I(f'v_mov_b32 v{vTAG+1}, s{TAG+1}')
        p.wait(*self.qt)
        self.stamp('all loads issued')
        I('s_barrier')
        self.stamp('barrier 1')
        Q = A(3)
        self.tr_tile('v52', Q, 0, range(2))
        self.tr_tile('v53', Q + 8, 0, range(2))
        for ks in range(2):
            I(f'buffer_store_dwordx4 {vr(Q + 4 * ks, 4)}, {vL16}, {WS}, {sLD} offen{off(ks * 1024)} sc1')
        tq = self.colsum(Q, AUX, sLD2)
        self.stamp_early('p0 crit issued')
        I(f's_lshl_b32 {sW4t}, {sW}, 15')
        I(f's_lshl_b32 {sLD}, {sTB}, 15')
        xt = []

        def xdma(n):
            blk, pc = divmod(n, 4)
            I(f's_add_u32 m0, {sW4t}, {blk * 4096 + pc * 1024}')
            I(f's_add_u32 {sLD2}, {sLD}, {pc * 8192 + blk * 128}')
            xt.append(I(f'buffer_load_dwordx4 v{XA + 8 + (pc & 1)}, {INS}, {sLD2} offen lds'))
        N1 = self.o.get('xn1', 12)
        q = [(lambda n=n: xdma(n)) for n in range(N1)]
        self.run(q[:3])
        self.bg_on(q[3:], 64)
        self.setup2()
        self.setup3()
        self.setup4()
        self.touch_addr()
        self.bg_off()
        p.wait(tq)
        I('s_barrier')
        self.stamp_early('p0 crit drained')
        self.post0(FLA, True)
        I('s_cmp_lt_u32 s2, 224')
        I(f's_cselect_b32 s18, {hx(WS_BYTES)}, 0')
        xq = [(lambda n=n: xdma(n)) for n in range(N1, 32)]
        self.bg_on(xq, self.o.get('xper', 16))
        self.run(self.rest_read())
        self.setup1b()
        for r in range(4):
            I(f'v_mov_b32 v{TMP + 4 + r}, {sONE}')
        for ks in range(4):
            I(f'v_mfma_f32_32x32x16_bf16 {vr(A(1), 16)}, {vr(TMP + 4, 4)}, {vr(4 * ks, 4, "a")}, {"0" if ks == 0 else vr(A(1), 16)}')
        rs = self.rest_stores()

        I('v_mov_b64 v[38:39], -1')

        def clr():
            I(f's_add_u32 {sT0}, {sKV}, {KVP_SZ}')
            self.clr_toks = [I(f'buffer_store_dwordx2 v[38:39], {vKV}, {WS}, {sT0} offen sc1'),
                             I(f'buffer_store_dwordx2 v[38:39], {vKZ}, {WS}, {sT0} offen sc1')]
        cs = [f'v_cvt_pk_bf16_f32 v{A(1)+1}, v{A(1)}, v{A(1)}', f'v_lshlrev_b32 v{A(1)+1}, 16, v{A(1)+1}',
              f'v_sub_f32 v{A(1)+1}, v{A(1)}, v{A(1)+1}', f'v_cvt_pk_bf16_f32 v37, v{A(1)}, v{A(1)+1}']
        nearly = self.o.get('rs_early', 0)
        self.restq = rs[nearly:]
        rs = rs[:nearly]
        self.clrq = [clr]
        I(f'v_mov_b64 {vr(PQ, 2)}, 0')
        I(f'v_mov_b64 {vr(PQ + 2, 2)}, 0')
        nx = len(xt)
        pre = None
        dots = []
        for r in range(X, X + 128):
            dots.append(f'v_dot2c_f32_bf16 v{PQ + 2 * (r & 1)}, {sONE}, v{r}')
            dots.append(f'v_dot2c_f32_bf16 v{PQ + 1 + 2 * (r & 1)}, v{r}, v{r}')
        nd = 0
        for blk in range(8):
            while len(xt) < min(32, 4 * blk + 4 + self.o.get('xla', 12)):
                self.inbg = True
                xq.pop(0)()
                self.inbg = False
            if self.o.get('xfine') and blk in (1, 3, 5, 7):
                self.stamp(f'xblk{blk}')
            if blk == self.o.get('xpoll', 6):
                self.bg_off()
                skip = p.newlabel('p0pre')
                I(f's_cmp_lg_u32 {sW}, 0')
                I(f's_cbranch_scc1 {skip}')
                p.begin_div()
                pre = self.flag_issue(vFL, '0')
                p.end_div()
                p.label(skip)
            if blk == 1:
                self.run(cs)
            if blk >= self.o.get('xd0', 5):
                k = self.o.get('xdots', 24)
                self.run(dots[nd:nd + k])
                nd += k
            p.wait(xt[4 * blk + 3])
            for u in range(4):
                for r in range(2):
                    I(f'ds_read_b64 {vr(X + 4 * (4 * blk + u) + 2 * r, 2)}, v{XA + 2 * u + r} offset:{blk * 4096}')
        self.run(rs)
        k = self.o.get('xdots2', 32)
        self.run(dots[nd:nd + k])
        nd += k
        self.xstat = dots[nd:] + [f'v_add_f32 v{PQ}, v{PQ}, v{PQ + 2}', f'v_add_f32 v{PQ + 1}, v{PQ + 1}, v{PQ + 3}',
                                  f'v_permlane32_swap_b32 v{PQ}, v{PQ + 1}', f'v_add_f32 v{PQ}, v{PQ}, v{PQ + 1}']
        self.xstat += self.stats_code(PQ, 1) + [f'v_mul_f32 {vC1}, {hx(f2u(math.log2(math.e)))}, {vRS}']
        self.stamp('x in regs')
        skip = p.newlabel('p0poll')
        I(f's_cmp_lg_u32 {sW}, 0')
        I(f's_cbranch_scc1 {skip}')
        p.begin_div()
        self.poll(vFL, '0', 0, mask_low=True, code=1, sleep=2, pre=pre)
        if self.fast:
            I(f's_or_b32 {sT0}, s{TAG}, {sXCC}')
            I(f'v_cmp_ne_u32 vcc, {sT0}, v{vCK}')
            p.nop(1)
            I(f's_and_b32 {sT0}, vcc_lo, 0xffff')
            I(f'v_mov_b32 v{TMP}, {sT0}')
            I(f'ds_write_b32 {vSC}, v{TMP} offset:20480')
        p.end_div()
        p.label(skip)
        p.wait_lg_all()
        I('s_barrier')
        if self.fast:
            I(f'ds_read_b32 v{TMP}, {vSC} offset:20480')
        self.kvb = self.dma_block(0, 0) + self.dma_block(0, 1)
        self.run(self.kvb[:4])
        I(f'v_lshrrev_b32 {vFS}, 1, {vL16}')
        I(f'v_and_b32 {vFS}, 0x38, {vFS}')
        if self.fast:
            I(f'v_readfirstlane_b32 {sMODE}, v{TMP}')
            p.nop(1)

    def res0(self):
        I = self.I
        I(f'v_lshlrev_b32 v{TMP+8}, 6, {vL16}')
        I(f'v_and_b32 v{TMP+8}, 0x7c00, v{TMP+8}')
        I(f'v_lshrrev_b32 v{TMP+9}, 9, {vL16}')
        I(f'v_lshl_add_u32 v{TMP+8}, v{TMP+9}, 4, v{TMP+8}')
        for tl in range(2):
            I(f'buffer_load_dwordx4 {vr(32 + 4 * tl, 4, "a")}, v{TMP+8}, {INS}, {sOu[tl]} offen')

    def stamp_early(self, name):
        self.stamp(name)

    def post0(self, base, with_xcc):
        p, I = self.p, self.I
        skip = p.newlabel('post')
        I(f's_cmp_lg_u32 {sW}, 3')
        I(f's_cbranch_scc1 {skip}')
        p.begin_div()
        if with_xcc:
            I(f'v_or_b32 v{TMP}, {sXCC}, v{vTAG}')
        else:
            I(f'v_mov_b32 v{TMP}, v{vTAG}')
        I(f'v_mov_b32 v{TMP+1}, v{vTAG+1}')
        I(f'v_lshlrev_b32 v{TMP+2}, 1, {vL4}')
        I(f's_lshl_b32 {sT0}, s2, 7')
        I(f's_add_u32 {sT0}, {sT0}, {hx(base)}')
        I('s_mov_b64 exec, 0xffff')
        I(f'buffer_store_dwordx2 {vr(TMP, 2)}, v{TMP+2}, {WS}, {sT0} offen sc1')
        I('s_mov_b64 exec, -1')
        p.end_div()
        p.label(skip)

    def setup1(self):
        p, I = self.p, self.I
        for b in range(4):
            I(f'v_add_u32 v{vRB[b]}, {RING + b * BLK}, {vL16}')
        I(f'v_add_u32 {vSC}, {SCR}, {vL16}')
        I(f's_lshl_b32 {sT0}, {sW}, 5')
        I(f'v_add_u32 {vTW}, {sT0}, v24')
        I(f'v_mul_u32_u24 {vTW}, {TRP}, {vTW}')
        I(f'v_lshl_add_u32 {vTW}, v25, 3, {vTW}')
        I(f'v_add_u32 {vTW}, {SCR}, {vTW}')
        I('v_lshrrev_b32 v43, 2, v26')
        I('v_lshl_add_u32 v43, v28, 3, v43')
        I(f'v_mul_u32_u24 v43, {TRP}, v43')
        I('v_lshl_add_u32 v43, v32, 3, v43')
        I(f's_lshl_b32 {sT0}, {sW}, 5')
        I(f's_add_u32 {sT0}, {sT0}, {SCR}')
        I(f'v_add_u32 {vTA}, {sT0}, v43')
        I(f's_lshr_b32 {sT0}, {sW}, 1')
        I(f's_lshl_b32 {sT0}, {sT0}, 5')
        I(f's_add_u32 {sT0}, {sT0}, {SCR + 128}')
        I(f'v_add_u32 {vTB_}, {sT0}, v43')
        I(f'v_lshlrev_b32 {vGZ}, 4, v30')
        I(f'v_lshl_add_u32 {vGZ}, v25, 7, {vGZ}')
        I(f'v_lshl_add_u32 {vGZ}, v27, 4, {vGZ}')
        I(f'v_add_u32 {vGZ}, 8192, {vGZ}')
        I(f'v_lshlrev_b32 {vGW}, 9, v27')
        I(f'v_lshl_add_u32 {vGW}, v26, 4, {vGW}')
        I(f'v_lshl_add_u32 {vGW}, v25, 3, {vGW}')
        I(f's_lshl_b32 {sT0}, {sW}, 10')
        I(f's_add_u32 {sT0}, {sT0}, {SCR}')
        I(f'v_add_u32 {vGW}, {sT0}, {vGW}')
        I(f's_and_b32 {sT0}, {sW}, 1')
        I(f's_lshl_b32 {sT0}, {sT0}, 8')
        I(f'v_xor_b32 {vL16P}, {sT0}, {vL16}')
        I(f'v_lshlrev_b32 {vL64}, 2, {vL16}')
        I(f'v_bfe_u32 {vHF}, v63, 2, 1')
        I(f'v_lshlrev_b32 {vHF}, 10, {vHF}')
        I(f'v_lshl_add_u32 {vHF}, v32, 3, {vHF}')
        I(f's_lshl_b32 {sFI}, {sG}, 10')
        I(f's_add_u32 {sFI}, {sFI}, {hx(FLI)}')
        I(f'v_lshlrev_b32 {vFI}, 3, v26')
        I(f'v_add_u32 {vFI}, {sFI}, {vFI}')
        I(f's_lshl_b32 {sT0}, {sJ}, 3')
        I(f's_add_u32 {sFI}, {sFI}, {sT0}')
        if self.mapping == 1:
            I(f's_and_b32 {sT0}, {sG}, 1')
            I(f's_lshl_b32 {sT0}, {sT0}, 7')
            I(f's_lshr_b32 {sT1}, {sG}, 1')
            I(f's_add_u32 {sT0}, {sT0}, {sT1}')
            I('v_lshlrev_b32 v44, 3, v26')
            I(f'v_add_u32 v44, {sT0}, v44')
        else:
            I(f's_and_b32 {sT0}, {sG}, 3')
            I(f's_lshl_b32 {sT0}, {sT0}, 6')
            I(f's_lshr_b32 {sT1}, {sG}, 2')
            I(f's_lshl_b32 {sT1}, {sT1}, 1')
            I(f's_add_u32 {sT0}, {sT0}, {sT1}')
            I('v_lshrrev_b32 v44, 1, v30')
            I('v_bfe_u32 v45, v63, 3, 1')
            I(f'v_add3_u32 v44, v44, v45, {sT0}')
        I('v_subrev_u32 v45, 2, v29')
        I('v_lshlrev_b32 v45, 6, v45')
        I('v_lshrrev_b32 v46, 4, v30')
        I(f's_lshr_b32 {sT0}, {sJ}, 1')
        I(f's_lshl_b32 {sT0}, {sT0}, 3')
        I(f'v_add3_u32 v45, v45, v46, {sT0}')
        I('v_subrev_u32 v47, 16, v63')
        I('v_cmp_gt_u32 vcc, 24, v47')
        I('v_cndmask_b32 v44, v44, v45, vcc')
        I(f's_lshl_b32 {sT0}, {sC}, 3')
        I(f's_add_u32 {sT0}, {sT0}, 192')
        I(f'v_add_u32 v45, {sT0}, v46')
        I('v_cmp_eq_u32 vcc, 5, v29')
        I('v_cndmask_b32 v44, v44, v45, vcc')
        if self.mapping == 1:
            I('v_and_b32 v45, 1, v26')
            I('v_lshlrev_b32 v45, 7, v45')
            I('v_lshrrev_b32 v47, 1, v26')
            I(f's_lshl_b32 {sT0}, {sJ}, 3')
            I(f'v_add3_u32 v45, v45, v47, {sT0}')
        else:
            I('v_lshlrev_b32 v45, 6, v32')
            I('v_lshrrev_b32 v47, 2, v26')
            I('v_lshlrev_b32 v47, 1, v47')
            I(f's_lshl_b32 {sT0}, {sC}, 3')
            I(f's_lshr_b32 {sT1}, {sJ}, 3')
            I(f's_add_u32 {sT0}, {sT0}, {sT1}')
            I(f'v_add3_u32 v45, v45, v47, {sT0}')
        I('v_cmp_eq_u32 vcc, 3, v28')
        I('v_cndmask_b32 v44, v44, v45, vcc')
        I('v_lshlrev_b32 v44, 7, v44')
        I(f'v_add_u32 {vFL}, {hx(FLA)}, v44')
        I(f's_mul_i32 {sT0}, {sJ}, 7')
        I(f's_add_u32 {sT1}, {sT0}, 6')
        I(f's_lshr_b32 {sT0}, {sT0}, 2')
        I(f's_lshr_b32 {sT1}, {sT1}, 2')
        I(f'v_add_u32 v44, {sT0}, v29')
        I(f'v_min_u32 v44, {sT1}, v44')
        I('v_lshl_add_u32 v44, v44, 3, v46')
        I('v_subrev_u32 v45, 24, v63')
        I('v_and_b32 v45, 31, v45')
        I('v_lshlrev_b32 v45, 3, v45')
        I(f'v_add_u32 v45, {sC}, v45')
        I('v_cmp_gt_u32 vcc, 24, v63')
        I('v_cndmask_b32 v44, v45, v44, vcc')
        I('v_lshlrev_b32 v44, 7, v44')
        I(f'v_add_u32 {vFB}, {hx(FLB)}, v44')
        I('v_lshlrev_b32 v44, 3, v27')
        I('v_sub_u32 v44, v26, v44')
        I('v_and_b32 v45, 1, v44')
        I('v_lshlrev_b32 v45, 4, v45')
        I('v_mov_b32 v46, 0x3f80')
        I('v_lshlrev_b32 v45, v45, v46')
        I('v_lshrrev_b32 v44, 1, v44')
        for r in range(4):
            I(f'v_cmp_eq_u32 vcc, {r}, v44')
            I(f'v_cndmask_b32 v{ACC + 16 + r}, 0, v45, vcc')
        I(f'ds_write_b128 {vSC}, {vr(ACC + 16, 4)} offset:{CST - SCR + 2048}')

    PIMG = 156672

    def setup1m(self):
        p, I = self.p, self.I
        self.srd(20, 44, 45, H * DH * DH * 2)
        I(f's_lshl_b32 {sT0}, {sJ}, 10')
        I(f's_lshl_b32 {sT1}, {sW}, 8')
        I(f's_add_u32 {sT0}, {sT0}, {sT1}')
        I(f's_add_u32 m0, {sT1}, {self.PIMG}')
        I(f'buffer_load_dword {vL4}, {RS}, {sT0} offen lds')
        self.p0_early()

    def setup1b(self):
        p, I = self.p, self.I
        I('v_lshrrev_b32 v44, 2, v26')
        I('v_lshl_add_u32 v44, v25, 2, v44')
        I('v_lshlrev_b32 v44, 5, v44')
        I('v_lshl_add_u32 v44, v32, 3, v44')
        I(f's_and_b32 {sT0}, {sW}, 1')
        I(f's_lshl_b32 {sT1}, {sT0}, 9')
        I(f's_add_u32 {sT1}, {sT1}, {self.PIMG}')
        I(f'v_add_u32 v44, {sT1}, v44')
        I(f'ds_read_b64_tr_b16 {vr(ACC + 8, 2)}, v44')
        I(f'ds_read_b64_tr_b16 {vr(ACC + 10, 2)}, v44 offset:256')
        I('v_lshlrev_b32 v45, 31, v27')
        I('v_lshrrev_b32 v46, 16, v45')
        I('v_or_b32 v45, v45, v46')
        I(f's_lshl_b32 {sT0}, {sT0}, 10')
        I(f'v_add_u32 v44, {sT0}, {vSC}')
        for r in range(4):
            I(f'v_xor_b32 v{ACC + 8 + r}, v45, v{ACC + 8 + r}')
        I(f'ds_write_b128 v44, {vr(ACC + 8, 4)} offset:{CST - SCR}')

    def setup2(self):
        I = self.I
        I(f'v_and_b32 v34, -4, v63')
        I(f'v_lshl_add_u32 v34, v32, 7, v34')
        I(f's_lshr_b32 {sT0}, {sW}, 1')
        I(f's_lshl_b32 {sT0}, {sT0}, 9')
        I(f's_and_b32 {sT1}, {sW}, 1')
        I(f's_lshl_b32 {sT1}, {sT1}, 6')
        I(f's_add_u32 {sT0}, {sT0}, {sT1}')
        I(f'v_add_u32 {vCS}, {sT0}, v34')
        I(f's_lshl_b32 {sW8K}, {sW}, 13')
        I(f's_mul_i32 {sT0}, {sJ}, {10 * BLK}')
        I(f's_add_u32 {sT0}, {sT0}, {hx(W13)}')
        I(f's_lshl_b32 {sW4K}, {sW}, 12')
        I(f's_add_u32 {sW13}, {sT0}, {sW4K}')
        I(f's_lshl_b32 {sQ4}, {sW}, 8')
        I(f's_add_u32 {sQ4}, {sQ4}, 32768')
        I(f's_add_u32 {sW13c}, {sT0}, 32768')
        I(f's_lshl_b32 {sT0}, {sTB}, 15')
        I(f's_add_u32 {sXin}, {sT0}, {hx(XF)}')
        I(f's_lshl_b32 {sT1}, {sJ}, 11')
        I(f's_add_u32 {sT0}, {sT0}, {sT1}')
        I(f's_add_u32 {sOout}, {sT0}, {hx(OF)}')
        I(f's_lshl_b32 {sT0}, {sTB}, 11')
        I(f's_add_u32 {sSin}, {sT0}, {hx(ST)}')

    def setup3(self):
        I = self.I
        I(f's_lshr_b32 {sT3}, {sC}, 2')
        I(f's_xor_b32 {sT3}, {sT3}, {sW}')
        I(f's_and_b32 {sT3}, {sT3}, 1')
        I(f's_add_u32 {sT3}, {sT3}, {sTBP}')
        I(f's_lshl_b32 {sT0}, {sT3}, 11')
        I(f's_lshl_b32 {sT1}, {sC}, 8')
        I(f's_add_u32 {sT0}, {sT0}, {sT1}')
        I(f's_add_u32 {sSu}, {sT0}, {hx(ST)}')
        I(f's_lshl_b32 {sT0}, {sT3}, 10')
        I(f's_lshl_b32 {sT1}, {sC}, 3')
        I(f's_add_u32 {sT0}, {sT0}, {sT1}')
        I(f's_add_u32 {sFSo}, {sT0}, {hx(FLH)}')
        I(f's_lshl_b32 {sT0}, {sTB}, 10')
        I(f's_add_u32 {sFSi}, {sT0}, {hx(FLH)}')
        I(f's_mul_i32 {sT0}, {sTB}, {112 * 1024}')
        I(f's_mul_i32 {sT1}, {sJ}, 7168')
        I(f's_add_u32 {sT0}, {sT0}, {sT1}')
        I(f's_add_u32 {sHout}, {sT0}, {hx(HF)}')
        I(f's_lshl_b32 {sT0}, {sTB}, 10')
        I(f's_lshl_b32 {sT1}, {sJ}, 3')
        I(f's_add_u32 {sT0}, {sT0}, {sT1}')
        I(f's_add_u32 {sFHo}, {sT0}, {hx(FLH)}')
        I(f's_lshl_b32 {sT0}, {sTBP}, 10')
        I(f's_lshl_b32 {sT1}, {sW}, 5')
        I(f's_add_u32 {sT0}, {sT0}, {sT1}')
        I(f's_add_u32 {sFHi}, {sT0}, {hx(FLH)}')
        for tl in range(2):
            I(f's_lshr_b32 {sT3}, {sC}, 2')
            I(f's_xor_b32 {sT3}, {sT3}, {tl}')
            I(f's_add_u32 {sT3}, {sT3}, {sTBP}')
            I(f's_lshl_b32 {sT0}, {sT3}, 15')
            I(f's_add_u32 {sT1}, {sT0}, {sW8K}')
            I(f's_add_u32 {sOin[tl]}, {sT1}, {hx(OF)}')
            I(f's_lshl_b32 {sT1}, {sC}, 2')
            I(f's_add_u32 {sT1}, {sT1}, {sW}')
            I(f's_lshl_b32 {sT2}, {sT1}, 10')
            I(f's_add_u32 {sT2}, {sT2}, {sT0}')
            I(f's_add_u32 {sXu[tl]}, {sT2}, {hx(XF)}')
            I(f's_lshl_b32 {sT2}, {sT1}, 5')
            I(f's_add_u32 {sOu[tl]}, {sT2}, {sT0}')
            I(f's_lshr_b32 {sT0}, {sW}, 1')
            I(f's_xor_b32 {sT0}, {sT0}, {tl}')
            I(f's_lshl_b32 {sT1}, {sC}, 1')
            I(f's_add_u32 {sT0}, {sT0}, {sT1}')
            I(f's_lshl_b32 {sT1}, {sT0}, 15')
            I(f's_add_u32 {sT1}, {sT1}, {sW8K}')
            I(f's_add_u32 {sW2[tl]}, {sT1}, {hx(W2)}')
            I(f's_mul_i32 {sT0}, {sT0}, {112 * 1024}')
            I(f's_mul_i32 {sT1}, {sW}, {28 * 1024}')
            I(f's_add_u32 {sT0}, {sT0}, {sT1}')
            I(f's_add_u32 {sW4[tl]}, {sT0}, {hx(W4)}')
        for u in range(1, 4):
            I(f's_xor_b32 {sT0}, {sW}, {u}')
            I(f's_mul_i32 {sT0}, {sT0}, 6144')
            I(f's_add_u32 {sRW[u-1]}, {sT0}, {(u - 1) * 2048}')
        I(f's_mul_i32 {sRW[3]}, {sW}, 6144')

    def setup4(self):
        I = self.I
        self.srd(20, 56, 57, S * D * 2)
        for tl in range(2):
            I(f's_lshr_b32 {sT3}, {sC}, 2')
            I(f's_xor_b32 {sT3}, {sT3}, {tl}')
            I(f's_add_u32 {sT3}, {sT3}, {sTBP}')
            I(f's_mul_i32 {sT0}, {sT3}, {112 * 1024}')
            I(f's_mul_i32 {sT1}, {sW}, {28 * 1024}')
            I(f's_add_u32 {sT0}, {sT0}, {sT1}')
            I(f's_add_u32 {sT0}, {sT0}, {hx(HF)}')
            for pl in range(4):
                I(f's_add_u32 {sT1}, {sC}, {pl}')
                I(f's_and_b32 {sT1}, {sT1}, 3')
                I(f's_mul_i32 {sT1}, {sT1}, 7168')
                I(f's_add_u32 s{sH + 8 * tl + 2 * pl}, {sT0}, {sT1}')
                I(f's_add_u32 s{sH + 8 * tl + 2 * pl + 1}, s{sH + 8 * tl + 2 * pl}, 4096')

    def load_x(self, streg, stat_pos, fslot):
        I = self.I

        def xl(ks):
            def f():
                so = sXin
                if ks >= 4:
                    so = sLD
                    if ks % 4 == 0:
                        I(f's_add_u32 {sLD}, {sXin}, {ks * 1024}')
                I(f'buffer_load_dwordx4 {vr(X + 4 * ks, 4)}, {vL16}, {WS}, {so} offen{off((ks % 4) * 1024)} sc1')
                if fslot is not None and ks == stat_pos - self.o['LA'] - 1:
                    self.flag_issue(vFS, sFSi, fslot)
            return f

        def sl(c):
            def f():
                if c == 0 and fslot is not None:
                    self.flag_check(vFS, sFSi, fslot, 8)
                for cc in range(4 * c, 4 * c + 4):
                    I(f'buffer_load_dword v{streg + cc}, {vL4}, {WS}, {sSin} offen{off(cc * 256)} sc1')
            return f
        return [xl(k) for k in range(stat_pos)] + [sl(c) for c in range(2)] + [xl(k) for k in range(stat_pos, 32)]

    def stats_code(self, streg, n=8):
        regs = [streg + c for c in range(n)]
        out = []
        while len(regs) > 1:
            nxt = []
            for a, b in zip(regs[0::2], regs[1::2]):
                out.append(f'v_add_f32 v{a}, v{a}, v{b}')
                nxt.append(a)
            regs = nxt
        s = regs[0]
        t = s + 1
        out += [f'v_mul_f32 v{s}, {hx(f2u(1.0 / 512))}, v{s}',
                f'v_mov_b32 v{t}, v{s}',
                f'v_permlane32_swap_b32 v{s}, v{t}',
                f'v_fma_f32 v{t}, -v{s}, v{s}, v{t}',
                f'v_max_f32 v{t}, 0, v{t}',
                f'v_add_f32 {vS2}, {hx(f2u(1e-5))}, v{t}',
                f'v_rsq_f32 {vRS}, {vS2}',
                f'v_cvt_pk_bf16_f32 v{MF}, -v{s}, -v{s}',
                f'v_mov_b32 v{MF+1}, v{MF}',
                f'v_mov_b32 v{MF+2}, v{MF}',
                f'v_mov_b32 v{MF+3}, v{MF}']
        return out

    def phi_read(self):
        r = [self.stage(), self.stage()]
        for h in range(2):
            self.I(f'ds_read_b128 {r[h]}, {vSC} offset:{CST - SCR + 1024 * h}')
        return r

    def feature_map(self, src, phi, sink, between=()):
        p, I = self.p, self.I
        KF = TMP
        for h in range(2):
            for r in range(4 * h, 4 * h + 4):
                I(f'v_cvt_pk_bf16_f32 v{KF + r}, v{src + 2 * r}, v{src + 2 * r + 1}')
        for h in range(2):
            I(f'v_mfma_f32_32x32x16_bf16 {vr(A(2 + h), 16)}, {phi[h]}, {vr(KF + 4 * h, 4)}, 0')
        self.run(between)
        M = TMP + 8
        m = lambda h, s: M + 2 * h + s
        for h in range(2):
            for s in range(2):
                b = A(2 + h) + 8 * s
                I(f'v_max3_f32 v{m(h, s)}, v{b}, v{b+1}, v{b+2}')
                I(f'v_max3_f32 v{TMP + 2 * h + s}, v{b+3}, v{b+4}, v{b+5}')
                I(f'v_max3_f32 v{m(h, s)}, v{b+6}, v{b+7}, v{m(h, s)}')
                I(f'v_max_f32 v{m(h, s)}, v{m(h, s)}, v{TMP + 2 * h + s}')

        def cross(op):
            for h in range(2):
                I(f'v_permlane32_swap_b32 v{m(h, 0)}, v{m(h, 1)}')
            for h in range(2):
                I(f'{op} v{m(h, 0)}, v{m(h, 0)}, v{m(h, 1)}')
        cross('v_max_f32')
        for h in range(2):
            I(f'v_mul_f32 v{m(h, 1)}, v{m(h, 0)}, {vC1}')
            I(f'v_mul_f32 v{m(h, 0)}, v{m(h, 0)}, {vC1}')
        for h in range(2):
            I(f'v_permlane32_swap_b32 v{m(h, 0)}, v{m(h, 1)}')
        c2 = 'v[44:45]'
        for h in range(2):
            for s in range(2):
                b = A(2 + h) + 8 * s
                mm = vr(M + 2 * h, 2)
                for r in range(0, 8, 2):
                    I(f'v_pk_fma_f32 {vr(b + r, 2)}, {vr(b + r, 2)}, {c2}, {mm} op_sel:[0,0,{s}] op_sel_hi:[1,0,{s}] neg_lo:[0,0,1] neg_hi:[0,0,1]')
        for h in range(2):
            for r in range(16):
                I(f'v_exp_f32 v{A(2 + h) + r}, v{A(2 + h) + r}')
        for h in range(2):
            for s in range(2):
                b = A(2 + h) + 8 * s
                t = TMP + 4 * h + 2 * s
                I(f'v_pk_add_f32 {vr(t, 2)}, {vr(b, 2)}, {vr(b + 2, 2)}')
                I(f'v_pk_add_f32 {vr(t, 2)}, {vr(t, 2)}, {vr(b + 4, 2)}')
                I(f'v_pk_add_f32 {vr(t, 2)}, {vr(t, 2)}, {vr(b + 6, 2)}')
                I(f'v_add_f32 v{m(h, s)}, v{t}, v{t+1}')
        cross('v_add_f32')
        for h in range(2):
            I(f'v_rcp_f32 v{m(h, 0)}, v{m(h, 0)}')
        for h in range(2):
            I(f'v_mov_b32 v{m(h, 1)}, v{m(h, 0)}')
        for h in range(2):
            I(f'v_permlane32_swap_b32 v{m(h, 0)}, v{m(h, 1)}')
        for h in range(2):
            for s in range(2):
                b = A(2 + h) + 8 * s
                mm = vr(M + 2 * h, 2)
                for r in range(0, 8, 2):
                    I(f'v_pk_mul_f32 {vr(b + r, 2)}, {vr(b + r, 2)}, {mm} op_sel:[0,{s}] op_sel_hi:[1,{s}]')
            for g in range(4):
                sink(h, g, A(2 + h) + 4 * g)

    def stream_events(self, ld, pos, gap_of, extra=(), bks=29, la0=None):
        LA = self.o['LA']
        LA0 = la0 or self.o.get('LA0', 7)
        self.run(ld[:LA0])
        rest = list(ld[LA0:]) + list(extra)
        tot = len(ld) + len(extra)
        ev = {}
        for ks in range(32):
            want = min(tot if ks >= bks else len(ld), pos[ks] + 1 + LA)
            must = pos[min(ks + 3, 31)] + 1
            k = 0
            while tot - len(rest) < want and (k < 2 or tot - len(rest) < must):
                ev.setdefault(gap_of(ks) + min(k, 1), []).append(rest.pop(0))
                k += 1
        return ev, rest

    def p1(self, L):
        p, I = self.p, self.I
        sk, sv, sq = self.slot(L, 0), self.slot(L, 1), self.slot(L, 2)
        phi = []
        xr = lambda ks: vr(X + 4 * ks, 4) if ks < 32 else vr(MF, 4)
        if L == 0:
            self.bg_on(self.kvb[4:9 + self.o.get('va0', 3)], 64)
            self.run(self.xstat)
            self.bg_off()
            rest = self.kvb[9 + self.o.get('va0', 3):] + ([self.res0] if self.o.get('res0', 1) == 1 else []) + self.clrq + self.sched(L, 'A0')
            p.wait(*self.dma[(0, 0)][:4])
            I('s_barrier')
            if not self.restq:
                self.post0(FLB, False)
            self.stamp('k,v in LDS')

            def vis(t, n):
                def f():
                    while len(self.dma[(0, t)]) < n:
                        rest.pop(0)()
                    p.wait(*self.dma[(0, t)][:n])
                    I('s_barrier')
                return f
            steps = [(A(0), sk, ks, xr(ks), ks == 0) for ks in range(33)] + [(A(1), sv, ks, xr(ks), ks == 0) for ks in range(33)]
            cuts = {16: vis(0, 9), 33: vis(1, 4), 49: vis(1, 9)}
            ev = {63: [lambda: phi.extend(self.phi_read())]}
            self.mstream(steps, events=ev, cuts=cuts, bg=rest, bg_gap=self.o.get('gapA0', 2))
        else:
            streg = PQ
            SP = self.o.get('SP1', 24)
            ld = self.load_x(streg, SP, 384 + 64)
            pos = [ks if ks < SP else ks + 2 for ks in range(32)]
            cuts = {}
            extra = self.sched(L, 'A0')
            ev, rest = self.stream_events(ld, pos, lambda ks: 2 * ks, extra, self.o.get('bks1', 27))
            steps = []
            for ks in list(range(31)) + [32, 31]:
                steps.append((A(0), sk, ks, xr(ks), ks == 0))
                steps.append((A(1), sv, ks, xr(ks), ks == 0))
            st = self.stats_code(streg) + [f'v_mul_f32 {vC1}, {hx(f2u(math.log2(math.e)))}, {vRS}']
            ev.setdefault(63, []).append(lambda: phi.extend(self.phi_read()))
            if any(isinstance(it, tuple) and it[1] in (4, 5) for it in self.plan[L].get('A0', [])):
                cuts[36] = lambda: I('s_barrier')
            left = self.mstream(steps, events=ev, fill=[(2 * SP + 1, t, 62) for t in st], cuts=cuts)
            assert not left
        self.stamp('p1 kv gemm')
        if any(isinstance(it, tuple) and it[1] in (4, 5) for it in self.plan[L].get('A', [])):
            I('s_barrier')
        vep = []
        for r in range(16):
            vep.append(f'v_mul_f32 v{A(1) + r}, v{A(1) + r}, {vRS}')
        for g in range(4):
            b = A(1) + 4 * g
            vep.append(f'v_cvt_pk_bf16_f32 v{b}, v{b}, v{b+1}')
            vep.append(f'v_cvt_pk_bf16_f32 v{b+1}, v{b+2}, v{b+3}')
            vep.append(f'ds_write_b64 {vTW}, {vr(b, 2)} offset:{128 + 16 * g}')

        def sink_k(h, g, b):
            I(f'v_cvt_pk_bf16_f32 v{b}, v{b}, v{b+1}')
            I(f'v_cvt_pk_bf16_f32 v{b+1}, v{b+2}, v{b+3}')
            I(f'ds_write_b64 {vTW}, {vr(b, 2)} offset:{64 * h + 16 * g}')
        q = rest + self.sched(L, 'A')
        self.bg_on(q, self.o.get('perA', 64))
        self.feature_map(A(0), phi, sink_k, between=vep)
        self.bg_off()
        for r in range(4):
            I(f'v_mov_b32 v{TMP + r}, {sONE}')
        p.wait_lg_all()
        I('s_barrier')
        self.stamp('p1 k softmax')
        fa = [A(1) + 4 * i for i in range(4)]
        fb = [A(2) + 4 * i for i in range(4)]
        for s in range(4):
            for base, reg in ((vTA, fa[s]), (vTB_, fb[s])):
                for rd in range(2):
                    I(f'ds_read_b64_tr_b16 {vr(reg + 2 * rd, 2)}, {base} offset:{(32 * s + 4 * rd) * TRP}')
        if L:
            I(f's_add_u32 {sKV}, {sKV}, {KVP_SZ}')
        for s in range(4):
            I(f'v_mfma_f32_16x16x32_bf16 {vr(A(0), 4)}, {vr(fa[s], 4)}, {vr(fb[s], 4)}, {"0" if s == 0 else vr(A(0), 4)}')
            I(f'v_mfma_f32_16x16x32_bf16 {vr(A(0) + 4, 4)}, {vr(fa[s], 4)}, {vr(TMP, 4)}, {"0" if s == 0 else vr(A(0) + 4, 4)}')
        if L == 0:
            p.wait(*self.clr_toks)
        for n, vo in enumerate((vKV, vKZ)):
            b = A(0) + 4 * n
            d = A(0) + 8 + 2 * n
            I(f'v_cvt_pk_bf16_f32 v{d}, v{b}, v{b+1}')
            I(f'v_cvt_pk_bf16_f32 v{d+1}, v{b+2}, v{b+3}')
            I(f'v_min_u32 v{d}, -2, v{d}')
            I(f'buffer_store_dwordx2 {vr(d, 2)}, {vo}, {WS}, {sKV} offen sc1')
        self.stamp('p1 kv partial')
        if L == 0 and self.restq:
            p.wait(*self.rest_done)
        p.wait(*self.need(L, 2))
        I('s_barrier')
        if L == 0 and self.restq:
            self.post0(FLB, False)
        steps = [(A(1), sq, ks, vr(X + 4 * ks, 4), ks == 0) for ks in range(32)] + [(A(1), sq, 32, vr(MF, 4), False)]
        phi = []
        ev = {30: [lambda: phi.extend(self.phi_read())]}
        w2 = []
        for cbl in range(2):
            for i in range(8):
                def f(cbl=cbl, i=i):
                    if i == 4:
                        I(f's_add_u32 {sLD}, {sW2[cbl]}, 4096')
                    I(f'buffer_load_dwordx4 {vr(self.W2R + 4 * (cbl * 8 + i), 4)}, {vL16P}, {WS}, {sW2[cbl] if i < 4 else sLD} offen{off((i % 4) * 1024)}')
                w2.append(f)
        bg = w2 + self.sched(L, 'B')
        gl = self.gather_list(self.GR)
        g = self.o.get('gath0', (33, 33))[L]
        while g < 33 and gl:
            assert g >= 17 + (9 - len(gl))
            ev.setdefault(g, []).append(gl.pop(0))
            g += self.o.get('gstep', 2)
        self.mstream(steps, events=ev, bg=bg, bg_gap=self.o.get('gapB', 2), bg_start=1)
        self.stamp('p1 q gemm')

        def sink_q(h, g, b):
            d = PQ + 8 * h + 2 * g
            I(f'v_cvt_pk_bf16_f32 v{d}, v{b}, v{b+1}')
            I(f'v_cvt_pk_bf16_f32 v{d+1}, v{b+2}, v{b+3}')
        q = bg + [lambda: None] * self.o.get('gdelay', 0) + gl
        q += self.sched(L, 'C0')
        self.bg_on(q, self.o.get('perC', 64))
        self.feature_map(A(1), phi, sink_q)
        self.bg_off()
        self.stamp('p1 q done')

    GR = X + 64
    W2R = X

    def gather_list(self, GR):
        I = self.p.I
        out = []
        for i in range(8):
            def f(i=i):
                if i == 4:
                    I(f's_add_u32 {sLD2}, {sKV}, 4096')
                I(f'buffer_load_dwordx4 {vr(GR + 4 * i, 4)}, {vL16}, {WS}, {sKV if i < 4 else sLD2} offen{off((i % 4) * 1024)} sc1')
            out.append(f)
        out.append(lambda: I(f'buffer_load_dwordx4 {vr(GR + 32, 4)}, {vGZ}, {WS}, {sKV} offen sc1'))
        return out

    def gather_issue(self, GR):
        for f in self.gather_list(GR):
            f()

    def gather_test(self, GR):
        I = self.p.I
        t = TMP
        I(f'v_max3_u32 v{t}, v{GR}, v{GR+4}, v{GR+8}')
        I(f'v_max3_u32 v{t}, v{GR+12}, v{GR+16}, v{t}')
        I(f'v_max3_u32 v{t}, v{GR+20}, v{GR+24}, v{t}')
        I(f'v_max3_u32 v{t}, v{GR+28}, v{GR+32}, v{t}')
        I(f'v_cmp_eq_u32 vcc, -1, v{t}')

    def p2a(self, L):
        p, I = self.p, self.I
        GR = self.GR
        idn = self.stage()
        I(f'ds_read_b128 {idn}, {vSC} offset:{CST - SCR + 2048}')
        stub, back = p.newlabel('gstub'), p.newlabel('gback')
        self.gather_test(GR)
        I(f's_cbranch_vccnz {stub}')
        p.label(back)

        def emit():
            lp = p.newlabel('gl')
            p.label(stub)
            p.I(f's_mov_b32 {sCNT}, 0')
            p.label(lp)
            self.gather_issue(GR)
            p.wait_vm_all()
            self.gather_test(GR)
            p.I(f's_cbranch_vccz {back}')
            self.spin_tail(lp, 2, 2)
        self.stubs.append(emit)
        self.stamp('G checked')
        self.bg_on(self.sched(L, 'C'), self.o.get('perC2', 40))
        Z, K = A(0), A(0) + 4
        I(f'v_mfma_f32_16x16x32_bf16 {vr(Z, 4)}, {idn}, {vr(GR + 32, 4)}, 0')
        for i in range(8):
            I(f'v_mfma_f32_16x16x32_bf16 {vr(K, 4)}, {idn}, {vr(GR + 4 * i, 4)}, {"0" if i == 0 else vr(K, 4)}')
        for sh in (1, 2, 4):
            for r in range(4):
                I(f'v_add_f32_dpp v{Z + r}, v{Z + r}, v{Z + r} row_ror:{sh} row_mask:0xf bank_mask:0xf')
        for n, b in enumerate((Z, K)):
            d = A(0) + 8 + 2 * n
            I(f'v_cvt_pk_bf16_f32 v{d}, v{b}, v{b+1}')
            I(f'v_cvt_pk_bf16_f32 v{d+1}, v{b+2}, v{b+3}')
            I(f'ds_write_b64 {vGW}, {vr(d, 2)} offset:{256 if n == 0 else 0}')
        self.bg_off()
        p.wait_lg_all()
        I('s_barrier')
        kf = [self.stage() for _ in range(4)]
        for i in (0, 2, 1, 3):
            I(f'ds_read_b128 {kf[i]}, {vSC} offset:{i * 1024}')

        for s in range(2):
            for h in range(2):
                I(f'v_mfma_f32_32x32x16_bf16 {vr(A(h), 16)}, {kf[2 * h + s]}, {vr(PQ + 8 * h + 4 * s, 4)}, {"0" if s == 0 else vr(A(h), 16)}')
        if L == 0:
            for r in range(8):
                I(f'v_accvgpr_read_b32 v{RES + r}, a{32 + r}')
        else:
            self.res_load()
        self.red_addr()
        toks = []
        for h in range(2):
            b = A(h)
            I(f'v_add_f32 v{b + 8}, {hx(f2u(1e-6))}, v{b + 8}')
            I(f'v_rcp_f32 v{b + 8}, v{b + 8}')
            for r in range(0, 8, 2):
                I(f'v_pk_mul_f32 {vr(b + r, 2)}, {vr(b + r, 2)}, {vr(b + 8, 2)} op_sel_hi:[1,0]')
            for r in range(4):
                I(f'v_cvt_pk_bf16_f32 v{TMP + 4 * h + r}, v{b + 2 * r}, v{b + 2 * r + 1}')
            toks += self.st_group(TMP + 4 * h, 4, vL16, sOout, h * 1024)
        self.stamp('o stored')
        bef = self.sched(L, 'D')
        if L == 0:
            pass
            for tl in range(2):
                b = RES + 4 * tl
                bef += [f'v_permlane32_swap_b32 v{b}, v{b+2}', f'v_permlane32_swap_b32 v{b+1}, v{b+3}']
        self.hop(3 * L, toks, before=bef)
        self.stamp('o hop')

    def res_load(self):
        for tl in range(2):
            self.I(f'buffer_load_dwordx4 {vr(RES + 4 * tl, 4)}, {vL16}, {WS}, {sXu[tl]} offen sc1')

    def res_init(self):
        I = self.I
        for tl in range(2):
            b = A(2 * tl)
            for r in range(4):
                I(f'v_lshlrev_b32 v{b + 2 * r}, 16, v{RES + 4 * tl + r}')
                I(f'v_and_b32 v{b + 2 * r + 1}, 0xffff0000, v{RES + 4 * tl + r}')
            for r in range(8, 16, 2):
                I(f'v_mov_b64 {vr(b + r, 2)}, 0')

    def red_addr(self):
        I = self.I
        for u in range(4):
            I(f'v_add_u32 v{PQ + u}, {sRW[u]}, {vSC}')
        I(f's_add_u32 {sT0}, {sRW[3]}, {SCR}')
        I(f'v_add_u32 v{PQ + 4}, {sT0}, {vL4}')
        I(f's_and_b32 {sT0}, {sW}, 1')
        I(f's_lshl_b32 {sT0}, {sT0}, 8')
        I(f's_add_u32 {sT0}, {sT0}, {SCR}')
        I(f'v_add_u32 v{PQ + 5}, {sT0}, {vL4}')

    def red_write(self, tl):
        src = [A(2 * tl) + 8, A(2 * tl + 1), A(2 * tl + 1) + 8]
        out = []
        for u in range(3):
            out.append(f'ds_write_b128 v{PQ + u}, {vr(src[u], 4)}')
            out.append(f'ds_write_b128 v{PQ + u}, {vr(src[u] + 4, 4)} offset:1024')
        return out

    def stats_out(self, slot):
        p, I = self.p, self.I
        skip = p.newlabel('sto')
        I(f's_cmp_lt_u32 {sW}, 2')
        I(f's_cbranch_scc1 {skip}')
        p.begin_div()
        for u in range(4):
            I(f'ds_read_b32 v{TMP + u}, v{PQ + 5} offset:{u * 6144}')
        I(f'v_add_f32 v{TMP}, v{TMP}, v{TMP + 1}')
        I(f'v_add_f32 v{TMP + 2}, v{TMP + 2}, v{TMP + 3}')
        I(f'v_add_f32 v{TMP}, v{TMP}, v{TMP + 2}')
        t = self.st_group(TMP, 1, vL4, sSu)
        p.wait(*t)
        I('s_mov_b64 exec, 1')
        self.st_group(vTAG, 2, 'off', sFSo, slot)
        I('s_mov_b64 exec, -1')
        p.end_div()
        p.label(skip)

    def finalize(self, tl, final, toks, pk=True):
        b = A(2 * tl)
        dst = [b + 8, b + 12, b + 16, b + 20, b + 24, b + 28]
        out = []
        for u in range(3):
            for q in range(2):
                out.append(f'ds_read_b128 {vr(dst[2 * u + q], 4)}, v{PQ + 3} offset:{u * 2048 + q * 1024}')
        for u in range(3):
            for q in range(2):
                if pk:
                    for h in range(0, 4, 2):
                        out.append(f'v_pk_add_f32 {vr(b + 4 * q + h, 2)}, {vr(b + 4 * q + h, 2)}, {vr(dst[2 * u + q] + h, 2)}')
                else:
                    for h in range(4):
                        out.append(f'v_add_f32 v{b + 4 * q + h}, v{b + 4 * q + h}, v{dst[2 * u + q] + h}')
        o = b + 8
        for r in range(4):
            out.append(f'v_cvt_pk_bf16_f32 v{o + r}, v{b + 2 * r}, v{b + 2 * r + 1}')
        if final:
            out.append(f'v_permlane32_swap_b32 v{o}, v{o+2}')
            out.append(f'v_permlane32_swap_b32 v{o+1}, v{o+3}')
            out.append(f'buffer_store_dwordx4 {vr(o, 4)}, {vOUT}, {OUT}, {sOu[tl]} offen' + self.o.get('outmod', ''))
            return out
        out.append(lambda: toks.extend(self.st_group(o, 4, vL16, sXu[tl])))
        out.append(f'v_mov_b64 {vr(b, 2)}, 0')
        for r in range(4):
            out.append(f'v_dot2c_f32_bf16 v{b}, {sONE}, v{o + r}')
            out.append(f'v_dot2c_f32_bf16 v{b+1}, v{o + r}, v{o + r}')
        out.append(f'v_permlane32_swap_b32 v{b}, v{b+1}')
        out.append(f'v_add_f32 v{b}, v{b}, v{b+1}')
        return out

    def ksplit(self, order, areg, breg, load, nl0, final, ev, hooks=None, mix=(), behind=(), behind_n=None):
        p, I = self.p, self.I
        N = len(order)
        mix, behind = list(mix), list(behind)
        steps = []
        seen = set()
        last0 = max(n for n, o in enumerate(order) if o[0] == 0)
        first1 = min(n for n, o in enumerate(order) if o[0] == 1)
        nl = nl0
        for n, (tl, key) in enumerate(order):
            g = len(steps)
            if nl < N:
                if hooks:
                    hooks(nl, g)
                ev.setdefault(g, []).append(lambda nl=nl: load(nl))
                nl += 1
                if mix and n >= 1:
                    ev.setdefault(g + 1, []).append(mix.pop(0))
            else:
                for k in range(2):
                    q = mix or (behind if n >= N - (behind_n or self.o.get('behind_n', 5)) else None)
                    if q:
                        ev.setdefault(g + k, []).append(q.pop(0))
            for cbl in range(2):
                a = 2 * tl + cbl
                steps.append((A(a), None, areg(key, cbl), breg(n), a not in seen and cbl == 1))
                seen.add(a)
        toks = []
        gm = 2 * last0 + 1
        for k, w in enumerate(self.red_write(0)):
            ev.setdefault(gm + 2 + k, []).append(w)

        def mid():
            p.wait_lg_all()
            I('s_barrier')
        ev.setdefault(gm + 8, []).append(mid)
        f0 = self.finalize(0, final, toks, pk=False)
        f0.insert(30, 's_barrier')
        cut = 36 if not final else len(f0)
        left = self.mstream(steps, events=ev, fill=[(gm + 8, it) for it in f0[:cut]])
        if self.o.get('fine'):
            self.stamp('mfma end')
        rest = [it[1] for it in left] + f0[cut:] + mix + behind
        if 's_barrier' in rest:
            k = rest.index('s_barrier')
            self.run(rest[:k + 1])
            rest = rest[k + 1:]
        k0 = min(len(rest), 5)
        self.run(rest[:k0])
        rest = rest[k0:]
        w1 = self.red_write(1)
        per = -(-len(rest) // 6)
        for k, w in enumerate(w1):
            self.run([w] + rest[k * per:(k + 1) * per])
        p.wait_lg_all()
        I('s_barrier')
        self.run(self.finalize(1, final, toks))
        if not final:
            toks.append(I(f'ds_write_b32 v{PQ + 4}, v{A(0)}'))
            toks.append(I(f'ds_write_b32 v{PQ + 4}, v{A(2)} offset:256'))
        return toks

    def p2(self, L):
        p, I = self.p, self.I

        def load(n):
            tl, i = divmod(n, 8)
            if i == 4:
                I(f's_add_u32 {sLD}, {sOin[tl]}, 4096')
            I(f'buffer_load_dwordx4 {vr(self.GR + 4 * n, 4)}, {vL16}, {WS}, {sOin[tl] if i < 4 else sLD} offen{off((i % 4) * 1024)} sc1')
        LA = self.o.get('LA2', 8)
        q = [(lambda n=n: load(n)) for n in range(LA)]
        self.bg_on(q, 12)
        self.res_init()
        self.bg_off()
        order = [divmod(n, 8) for n in range(16)]
        ev = {}
        behind = self.sched(L, 'E0')
        toks = self.ksplit(order, lambda i, cbl: vr(self.W2R + 4 * (cbl * 8 + i), 4), lambda n: vr(self.GR + 4 * n, 4), load, LA, False, ev,
                           behind=behind)
        self.stamp('p2 done')
        self.hop(3 * L + 1, toks, before=self.sched(L, 'E'), stats=L * 512 + 384, extra_wait=self.need_later(L, 3, 4, 5))
        self.stamp('x1 hop')

    def need_later(self, L, *tiles):
        class Lazy(list):
            def __iter__(s):
                return iter(self.need(L, *tiles))
        return Lazy()

    def geglu(self, L, acc, tile, toks, pk=False):
        out = []
        T = [TMP + i for i in range(8)]
        if pk:
            for r in range(0, 8, 2):
                out.append(f'v_pk_mul_f32 {vr(T[r], 2)}, {vr(acc + r, 2)}, {vr(acc + r, 2)}')
            for r in range(0, 8, 2):
                out.append(f'v_pk_fma_f32 {vr(T[r], 2)}, {vr(T[r], 2)}, v[44:45], v[44:45] op_sel:[0,1,0] op_sel_hi:[1,1,0]')
            for r in range(0, 8, 2):
                out.append(f'v_pk_mul_f32 {vr(T[r], 2)}, {vr(T[r], 2)}, {vr(acc + r, 2)}')
            for r in range(8):
                out.append(f'v_exp_f32 v{T[r]}, v{T[r]}')
            for r in range(0, 8, 2):
                out.append(f'v_pk_mul_f32 {vr(acc + 8 + r, 2)}, {vr(acc + r, 2)}, {vr(acc + 8 + r, 2)}')
            for r in range(0, 8, 2):
                out.append(f'v_pk_fma_f32 {vr(T[r], 2)}, {vr(T[r], 2)}, v[46:47], v[46:47] op_sel:[0,0,0] op_sel_hi:[1,0,0]')
            for r in range(8):
                out.append(f'v_rcp_f32 v{T[r]}, v{T[r]}')
            for r in range(0, 8, 2):
                out.append(f'v_pk_mul_f32 {vr(acc + 8 + r, 2)}, {vr(acc + 8 + r, 2)}, {vr(T[r], 2)}')
            for r in range(4):
                out.append(f'v_cvt_pk_bf16_f32 v{TMP + 8 + r}, v{acc + 8 + 2 * r}, v{acc + 9 + 2 * r}')
        else:
            for r in range(8):
                out.append(f'v_mul_f32 v{T[r]}, v{acc + r}, v{acc + r}')
            for r in range(8):
                out.append(f'v_fma_f32 v{T[r]}, v{T[r]}, {vC3}, {vC1}')
            for r in range(8):
                out.append(f'v_mul_f32 v{T[r]}, v{T[r]}, v{acc + r}')
            for r in range(8):
                out.append(f'v_exp_f32 v{T[r]}, v{T[r]}')
                out.append(f'v_mul_f32 v{acc + 8 + r}, v{acc + r}, v{acc + 8 + r}')
            for r in range(8):
                out.append(f'v_fma_f32 v{T[r]}, v{T[r]}, {vS2}, {vS2}')
            for r in range(8):
                out.append(f'v_rcp_f32 v{T[r]}, v{T[r]}')
                if r:
                    out.append(f'v_mul_f32 v{acc + 7 + r}, v{acc + 7 + r}, v{T[r-1]}')
            out.append(f'v_cvt_pk_bf16_f32 v{TMP + 8}, v{acc + 8}, v{acc + 9}')
            out.append(f'v_mul_f32 v{acc + 15}, v{acc + 15}, v{T[7]}')
            for r in range(1, 4):
                out.append(f'v_cvt_pk_bf16_f32 v{TMP + 8 + r}, v{acc + 8 + 2 * r}, v{acc + 9 + 2 * r}')

        def store():
            ph = self.perm(L, tile)
            if tile == 0:
                self.I(f's_add_u32 {sLD2}, {sHout}, 4096')
            toks[tile] = self.I(f'buffer_store_dwordx4 {vr(TMP + 8, 4)}, {vL16}, {WS}, {sHout if ph < 4 else sLD2} offen{off((ph % 4) * 1024)} sc1')
        out.append(store)
        return out

    def h_post(self, L, stage, tok):
        def f():
            self.p.wait(tok())
            self.p.I('s_mov_b64 exec, 1')
            self.st_group(vTAG, 2, 'off', sFHo, L * 512 + stage * 128)
            self.p.I('s_mov_b64 exec, -1')
        return f

    def h_order(self):
        o = []
        for tl in range(2):
            o += [(tl, pl, t) for t in range(3) for pl in range(4)]
        s1 = len(o)
        for tl in range(2):
            o += [(tl, pl, t) for t in (3, 4) for pl in range(4)]
        s2 = len(o)
        for tl in range(2):
            o += [(tl, pl, t) for t in (5, 6) for pl in range(4)]
        return o, s1, s2

    def h_load(self, n):
        tl, pl, t = self.hord[n]
        self.I(f'buffer_load_dwordx4 {vr(X + 4 * (n % 32), 4)}, {vL16}, {WS}, s{sH + 8 * tl + 2 * pl + (t >> 2)} offen{off((t % 4) * 1024)} sc1')

    def p3(self, L):
        p, I = self.p, self.I
        streg = PQ
        SP = self.o.get('SP3', 24)
        ld = self.load_x(streg, SP, L * 512 + 384)
        slot = lambda t: self.slot(L, 3 + t)
        acc = lambda t: A(t % 4)
        xr = lambda ks: vr(X + 4 * ks, 4) if ks < 32 else vr(MF, 4)
        steps = []
        n2 = 0
        num, den = self.o.get('skew', ((2, 3), (2, 3)))[L]
        first = {}
        for ks in range(33):
            first[ks] = len(steps)
            steps.append((acc(0), slot(0), ks, xr(ks), ks == 0))
            steps.append((acc(1), slot(1), ks, xr(ks), ks == 0))
            while ks < 32 and n2 < ((ks + 1) * num) // den:
                steps.append((acc(2), slot(2), n2, xr(n2), n2 == 0))
                n2 += 1
        end = {0: len(steps) - 2, 1: len(steps) - 1}
        start = {}
        for t in range(2, 7):
            start[t] = len(steps)
            for ks in range(n2 if t == 2 else 0, 33):
                steps.append((acc(t), slot(t), ks, xr(ks), ks == 0))
            end[t] = len(steps) - 1
        pos = [ks if ks < SP else ks + 2 for ks in range(32)]
        fx = self.sched(L, 'FX')
        if fx:
            nld, npos, n0, tot = [], {}, self.o.get('fx0', 4), len(fx)
            for n, f in enumerate(ld):
                npos[n] = len(nld)
                nld.append(f)
                while fx and n >= n0 and (tot - len(fx)) * (len(ld) - n0) < (n - n0 + 1) * tot:
                    nld.append(fx.pop(0))
            ld, pos = nld, [npos[x] for x in pos]
        pendq = self.sched(L, 'F0')
        popper = lambda: pendq.pop(0)() if pendq else None
        ev, rest = self.stream_events(ld, pos, lambda ks: first[ks], [popper] * len(pendq), self.o.get('bks3', 0))
        assert all(r is popper for r in rest)
        c1 = -2.0 * math.sqrt(2.0 / math.pi) * math.log2(math.e)
        st = self.stats_code(streg) + [
            f'v_mul_f32 {vC1}, {hx(f2u(c1))}, {vRS}',
            f'v_mul_f32 {vC3}, {vRS}, {vRS}',
            f'v_mul_f32 {vC3}, {hx(f2u(0.044715))}, {vC3}',
            f'v_mul_f32 {vC3}, {vC3}, {vC1}']
        fill = [(first[SP] + 1, t, end[0]) for t in st]
        toks = {}
        for t in range(6):
            dl = start.get(t + 4, 10**6)
            if t == 2:
                dl = min(dl, start[5] - 8)
            if t == 4:
                dl = start[6] + 4
            fill += [(end[t] + 3, it, dl) for it in self.geglu(L, acc(t), t, toks)]
        cuts = {}

        def cut(win, needs):
            def f():
                for t in needs:
                    while len(self.dma[(L, t)]) < 9:
                        pendq.pop(0)()
                    p.wait(*self.dma[(L, t)])
                I('s_barrier')
                if self.o.get('fine'):
                    self.stamp(f'cut {win}')
                pendq.extend(self.sched(L, win))
            return f
        cuts[start[2]] = cut('F2', [])
        cuts[start[3]] = cut('F3', [6])
        cuts[start[4]] = cut('F4', [7])
        cuts[start[5]] = cut('F5', [8])
        cuts[start[6]] = cut('F6', [9])
        self.hord, self.hs1, self.hs2 = self.h_order()
        self.hord = [(tl, pl, self.perm(L, t)) for tl, pl, t in self.hord]
        ev.setdefault(start[5] + 16, []).append(self.h_post(L, 0, lambda: toks[2]))
        ev.setdefault(start[6] + self.o.get('post1', 28), []).append(self.h_post(L, 1, lambda: toks[4]))
        ev.setdefault(start[6] + 2, []).append(self.res_load)
        g0 = start[6] + self.o.get('hchk', 8)
        ev.setdefault(g0, []).append(lambda: self.flag_issue(vHF, sFHi, L * 512))
        left = self.mstream(steps, events=ev, fill=fill, cuts=cuts, bg=pendq, bg_gap=self.o['gapF'][L], bg_start=first[32])
        self.run(list(pendq))
        self.flag_check(vHF, sFHi, L * 512, 4)
        LA = self.o['LA']
        q = [(lambda n=n: self.h_load(n)) for n in range(LA)]
        self.bg_on(q, 24)
        self.run(left)
        self.run(self.geglu(L, acc(6), 6, toks, pk=True))
        self.bg_off()
        self.htoks = toks
        self.stamp('p3 done')

    def p4(self, L):
        p, I = self.p, self.I
        final = L == 1
        LA = self.o['LA']
        s1, s2 = self.hs1, self.hs2
        if final:
            I(f'v_lshlrev_b32 {vOUT}, 6, {vL16}')
            I(f'v_and_b32 {vOUT}, 0x7c00, {vOUT}')
            I(f'v_lshrrev_b32 v{TMP}, 9, {vL16}')
            I(f'v_lshl_add_u32 {vOUT}, v{TMP}, 4, {vOUT}')
        self.res_init()
        self.red_addr()
        ev = {}
        FL = self.o.get('flead', LA)

        def hooks(nl, g):
            for st, s in ((1, s1), (2, s2)):
                if nl == s:
                    ev.setdefault(g, []).append(lambda st=st: self.flag_check(vHF, sFHi, L * 512 + st * 128, 4 + st))
                if nl == s - FL:
                    ev.setdefault(g, []).append(lambda st=st: self.flag_issue(vHF, sFHi, L * 512 + st * 128))
        ev.setdefault(2 * self.o.get('post2', LA), []).append(self.h_post(L, 2, lambda: self.htoks[6]))
        order = [(tl, (pl, t)) for tl, pl, t in self.hord]
        toks = self.ksplit(order, lambda k, cbl: vr(4 * (cbl * 28 + k[0] * 7 + k[1]), 4, 'a'), lambda n: vr(X + 4 * (n % 32), 4),
                           self.h_load, LA, final, ev, hooks=hooks, mix=self.sched(L, 'P4'), behind=self.sched(L, 'G0'))
        self.stamp('p4 done')
        if not final:
            self.hop(2, toks, before=self.sched(L, 'G'), stats=384 + 64, extra_wait=self.need_later(1, 0, 1))
            self.stamp('x2 hop')

    def zero_init(self):
        for tl in range(2):
            for r in range(0, 16, 2):
                self.I(f'v_mov_b64 {vr(A(2 * tl) + r, 2)}, 0')

    def res_add(self, tl):
        out = []
        b = A(2 * tl)
        for r in range(4):
            out.append(f'v_lshlrev_b32 v{TMP + 2 * r}, 16, v{RES + 4 * tl + r}')
            out.append(f'v_and_b32 v{TMP + 2 * r + 1}, 0xffff0000, v{RES + 4 * tl + r}')
            out.append(f'v_pk_add_f32 {vr(b + 2 * r, 2)}, {vr(b + 2 * r, 2)}, {vr(TMP + 2 * r, 2)}')
        return out

    def default_plan(self):
        c = lambda lab: ['code:' + lab] if self.o.get('codepf', 1) and not self.stop else []
        return {
            0: {'A0': ['skip'] * 6 + [(0, 2)] + ['skip'] * 4 + ['rest', 'touchf'], 'C0': ['fbi'], 'C': ['fbc', (0, 3)], 'D': [(0, 4, 'a')] + c('L_p3_0'), 'E0': [(0, 4), (0, 5, 'a')], 'E': [(0, 5)],
                'F0': [(0, 6)], 'F2': [(0, 7), (0, 8)], 'F3': [(0, 9)], 'F4': ['w4:18'], 'F5': ['w4:19'], 'F6': ['w4:19'],
                'P4': c('L_p1_1') + [(1, 0), (1, 1)], 'G0': [(1, 2)]},
            1: {'A0': [(1, 4, 'a'), (1, 5, 'a'), 'warmw2'], 'A': ['skip'] * 8 + ['touchf'], 'B': c('L_p3_1'), 'E0': [(1, 4), (1, 5)], 'F0': [(1, 6)],
                'F2': [(1, 7), (1, 8)], 'F3': [(1, 9)]},
        }

    def dump_prof(self):
        I = self.I
        I(f's_lshl_b32 {sT0}, s2, 2')
        I(f's_add_u32 {sT0}, {sT0}, {sW}')
        I(f's_lshl_b32 {sT0}, {sT0}, 9')
        I(f's_add_u32 {sT0}, {sT0}, {hx(PROF)}')
        I(f'buffer_store_dword v{vP2}, {vL4}, {WS}, {sT0} offen')

    def build(self):
        p, I = self.p, self.I
        self.plan = self.default_plan()
        for L, d in (self.o.get('plan') or {}).items():
            self.plan[L].update(d)
        self.w4q = self.w4_loads()
        if self.prof:
            I('s_memtime s[88:89]')
            I('s_memrealtime s[90:91]')
            p.wait_lg_all()
            I(f'v_mov_b32 v{vP2}, 0')
            I(f'v_writelane_b32 v{vP2}, s88, 0')
            I(f'v_writelane_b32 v{vP2}, s90, 60')
            self.stamps = ['start']
            self.nstamp = 1
        if self.o.get('pad'):
            I('s_memrealtime s[90:91]')
        self.prologue()
        self.stamp('p0 synced')
        done = self.stop == 'p0'
        for L in range(2):
            for name, f in (('p1', self.p1), ('p2a', self.p2a), ('p2', self.p2), ('p3', self.p3), ('p4', self.p4)):
                if done:
                    break
                p.label(f'L_{name}_{L}')
                self.wt = name in self.o.get('wt', (('p2a', 'p2'), ('p2a',)))[L]
                f(L)
                if self.stop == f'{name}_{L}':
                    done = True
        assert done or not self.w4q
        p.label('L_finish')
        if self.prof:
            I('s_memrealtime s[90:91]')
            I('s_memtime s[88:89]')
            p.wait_lg_all()
            I(f'v_writelane_b32 v{vP2}, s90, 61')
            I(f'v_writelane_b32 v{vP2}, s88, 62')
            self.dump_prof()
        I('s_cmp_lg_u32 s2, 0')
        I('s_cbranch_scc1 L_end')
        I(f's_cmp_lg_u32 {sW}, 0')
        I('s_cbranch_scc1 L_end')
        I('s_mov_b64 exec, 1')
        I(f'buffer_store_dwordx2 {vr(vTAG, 2)}, off, {WS}, 0')
        p.label('L_end')
        I('s_endpgm')
        for e in self.stubs:
            p.hist, p.alts, p.vm, p.lg, p.sm, p.pend = [], [], [], [], [], {}
            e()
        p.label('L_timeout')
        I(f'v_mov_b32 v{TMP}, {sCNT}')
        I(f'v_mov_b32 v{TMP+1}, 0')
        I('s_mov_b64 exec, 1')
        I(f'global_store_dword v{TMP+1}, v{TMP}, {sDBG}')
        I('s_endpgm')
        p.label('L_codeend')
        return self.wrap(p.text())

    def wrap(self, body):
        ref = open(os.path.join(os.path.dirname(os.path.abspath(__file__)), '..', 'cdna_kernels', NAME + '.s.ref')).read()
        hdr = []
        for line in ref.splitlines():
            if line.startswith('; @launch'):
                break
            hdr.append(line)
        out = '\n'.join(hdr) + '\n'
        out += f'; @launch grid=(256,1,1) block=(256,1,1) lds={LDS_BYTES}\n'
        out += '.amdgcn_target "amdgcn-amd-amdhsa--gfx950"\n.text\n'
        out += f'.globl {NAME}_kernel\n.p2align 8\n.type {NAME}_kernel,@function\n{NAME}_kernel:\n'
        out += body
        out += f'''.section .rodata,"a"
.p2align 6
.amdhsa_kernel {NAME}_kernel
  .amdhsa_next_free_vgpr 512
  .amdhsa_next_free_sgpr 102
  .amdhsa_accum_offset 256
  .amdhsa_group_segment_fixed_size 0
  .amdhsa_kernarg_size 88
  .amdhsa_user_sgpr_count 2
  .amdhsa_user_sgpr_kernarg_segment_ptr 1
  .amdhsa_system_sgpr_workgroup_id_x 1
.end_amdhsa_kernel
'''
        return out


if __name__ == '__main__':
    import argparse, ast
    ap = argparse.ArgumentParser()
    ap.add_argument('-o', default=None)
    ap.add_argument('--stop', default=None)
    ap.add_argument('--prof', action='store_true')
    ap.add_argument('--safe', action='store_true')
    ap.add_argument('--map', type=int, default=1)
    ap.add_argument('--opts', default='{}')
    a = ap.parse_args()
    g = Gen(stop=a.stop, prof=a.prof, fast=not a.safe, mapping=a.map, opts=ast.literal_eval(a.opts))
    txt = g.build()
    path = a.o or os.path.join(os.path.dirname(os.path.abspath(__file__)), '..', 'cdna_kernels', NAME + '.s')
    if g.o.get('align', 1):
        from align import align
        txt, nw, mis = align(txt)
    open(path, 'w').write(txt)
    if a.prof:
        open(path + '.stamps', 'w').write('\n'.join(g.stamps))
    print('wrote', path, 'lines', txt.count('\n'), 'late fill', g.late)
```
